```python
import torch

def _softmax(x, axis=-1):
    return torch.softmax(x, dim=axis)
def _gelu(x):
    return torch.nn.functional.gelu(x, approximate="tanh")
def _silu(x):
    return torch.nn.functional.silu(x)
def _sigmoid(x):
    return torch.sigmoid(x)
def _layernorm(x, axis=-1, eps=1e-5):
    m = x.mean(dim=axis, keepdim=True)
    v = x.var(dim=axis, keepdim=True, unbiased=False)
    return (x - m) / torch.sqrt(v + eps)
def _scatter_add(tgt, idx, src, axis=0):
    return tgt.clone().index_add_(axis, idx, src)
def _segment_sum(src, seg, n):
    out = torch.zeros((n,) + src.shape[1:], dtype=src.dtype)
    return out.index_add_(0, seg, src)
def _pad(x, pw):
    flat = tuple(v for pair in reversed(pw) for v in pair)
    return torch.nn.functional.pad(x, flat)

kernel_name = 'sequential_preLN__ssm_conv_s4d__dense_activation_gelu__prompt'

def setup_inputs():

    _w = (lambda a: (lambda t: t.to(torch.bfloat16) if t.is_floating_point() else t)(torch.as_tensor(a)))
    def _A_setup():
        Bsz, L, D, N = 1, 2048, 448, 256
        return {
            "u": _w((lambda *s: torch.randn(*s, dtype=torch.bfloat16) * 0.05)(Bsz, L, D)),
            "log_A_real": _w((lambda *s: torch.randn(*s, dtype=torch.bfloat16) * 6.4)(D, N) * 0.5),
            "A_imag": _w((lambda *s: torch.randn(*s, dtype=torch.bfloat16) * 0.05)(D, N) * 3.14),
            "C_real": _w((lambda *s: torch.randn(*s, dtype=torch.bfloat16) * 0.05)(D, N) / N ** 0.5),
            "C_imag": _w((lambda *s: torch.randn(*s, dtype=torch.bfloat16) * 0.05)(D, N) / N ** 0.5),
            "log_dt": _w((lambda *s: torch.randn(*s, dtype=torch.bfloat16) * 0.05)(D) * 0.5 - 4.0),
            "D_skip": _w((lambda *s: torch.randn(*s, dtype=torch.bfloat16) * 0.05)(D)),
        }
    _A_in = _A_setup()

    def _B_setup():
        B, S, D, F = 1, 2048, 448, 1792
        return {
            "x": _w((lambda *s: torch.randn(*s, dtype=torch.bfloat16) * 0.05)(B, S, D)),
            "w1": _w((lambda *s: torch.randn(*s, dtype=torch.bfloat16) * 0.8)(D, F) * (D ** -0.5)),
            "b1": _w((lambda *s: torch.randn(*s, dtype=torch.bfloat16) * 0.2)(F) * 0.01),
            "w2": _w((lambda *s: torch.randn(*s, dtype=torch.bfloat16) * 0.2)(F, D) * (F ** -0.5)),
            "b2": _w((lambda *s: torch.randn(*s, dtype=torch.bfloat16) * 0.2)(D) * 0.01),
        }
    _B_in = _B_setup()

    return {
        "A_u": _A_in["u"],
        "A_log_A_real": _A_in["log_A_real"],
        "A_A_imag": _A_in["A_imag"],
        "A_C_real": _A_in["C_real"],
        "A_C_imag": _A_in["C_imag"],
        "A_log_dt": _A_in["log_dt"],
        "A_D_skip": _A_in["D_skip"],
        "B_x": _B_in["x"],
        "B_w1": _B_in["w1"],
        "B_b1": _B_in["b1"],
        "B_w2": _B_in["w2"],
        "B_b2": _B_in["b2"],
    }

def reference(A_u, A_log_A_real, A_A_imag, A_C_real, A_C_imag, A_log_dt, A_D_skip, B_x, B_w1, B_b1, B_w2, B_b2):
    def _A_ref(u, log_A_real, A_imag, C_real, C_imag, log_dt, D_skip):
        L = u.shape[1]
        dt = torch.exp(log_dt)
        A = -torch.exp(log_A_real) + 1j * A_imag
        C = (C_real + 1j * C_imag) * dt[:, None]
        pos = (lambda x, dt: x.to(dt))(torch.arange(L), log_dt.dtype)
        P = torch.exp((A * dt[:, None])[:, :, None] * pos[None, None, :])
        K = 2.0 * torch.einsum("dn,dnl->dl", C, P).real
        L2 = 2 * L
        u_t = (lambda x, *d: x.permute(*d))(u, 0, 2, 1)
        Kf = (lambda x, *a, **k: torch.fft.rfft(x.float(), *a, **k))(K, L2)
        Uf = (lambda x, *a, **k: torch.fft.rfft(x.float(), *a, **k))(u_t, L2)
        y = (lambda x, *a, **k: torch.fft.irfft(x, *a, **k).to(torch.bfloat16))(Uf * Kf[None, :, :], L2)[:, :, :L]
        y = (lambda x, *d: x.permute(*d))(y, 0, 2, 1)
        return y + u * D_skip[None, None, :]

    def _B_ref(x, w1, b1, w2, b2):
        h = torch.einsum("bsd,df->bsf", x, w1) + b1
        h = _gelu(h)
        return torch.einsum("bsf,fd->bsd", h, w2) + b2

    x = A_u
    h = x + _A_ref(_layernorm(x, axis=-1), A_log_A_real, A_A_imag, A_C_real, A_C_imag, A_log_dt, A_D_skip)
    h2 = h + _B_ref(_layernorm(h, axis=-1), B_w1, B_b1, B_w2, B_b2)
    return h2
```

```python
from gen import *

K2_GRID = 224
UC_STRIDE = 4160
UC_SZ = 8 * UC_STRIDE
CH_SZ = UC_SZ + KCH
K2_LDS = 2 * CH_SZ


def gen_k2(e):
    name = "k2_kernel"
    kernel_header(e, name)
    e("s_cmp_ge_u32 s2, %d" % K2_GRID)
    e("s_cbranch_scc1 K2_END")
    e("s_load_dwordx2 s[4:5], s[0:1], 112")
    e("s_load_dwordx2 s[6:7], s[0:1], 48")
    e("v_lshrrev_b32 v1, 6, v0")
    e("v_and_b32 v2, 63, v0")
    e("s_nop 0")
    e("v_readfirstlane_b32 s3, v1")
    e("s_waitcnt lgkmcnt(0)")
    srd(e, 8, 4, 5, WS_UT, TSZ)
    srd(e, 12, 4, 5, WS_K, D * KCH)
    srd(e, 16, 4, 5, WS_XT, TSZ)
    srd(e, 20, 4, 5, WS_HT, TSZ)
    srd(e, 24, 6, 7, 0, D * 2)
    e("s_lshl_b32 s28, s2, 1")
    e("s_mov_b32 s47, 0xffff0000")
    e("v_lshrrev_b32 v3, 8, v0")
    e("v_and_b32 v4, 255, v0")
    e("v_lshlrev_b32 v5, 12, v3")
    e("v_lshl_add_u32 v5, v4, 4, v5")
    e("s_lshl_b32 s29, s28, 12")
    e("buffer_load_dwordx4 v[8:11], v5, s[8:11], s29 offen")
    e("buffer_load_dwordx4 v[12:15], v5, s[8:11], s29 offen offset:16")
    e("s_mul_i32 s30, s28, %d" % KCH)
    e("v_lshlrev_b32 v6, 4, v0")
    for r in range(3):
        e("s_add_u32 s31, s30, %d" % (r * 8192))
        e("buffer_load_dwordx4 %s, v6, s[12:15], s31 offen" % vr(32 + 4 * r, 4))
    e("s_add_u32 s31, s30, %d" % (3 * 8192))
    e("v_cmp_gt_u32 vcc, 384, v0")
    e("s_and_saveexec_b64 s[34:35], vcc")
    e("s_cbranch_execz K2_P2A")
    e("buffer_load_dwordx4 v[44:47], v6, s[12:15], s31 offen")
    e.label("K2_P2A")
    e("s_mov_b64 exec, s[34:35]")
    for r in range(4):
        e("v_add_u32 v%d, %d, v6" % (48 + r, r * 8192))
        e("v_cmp_le_u32 vcc, %d, v%d" % (KCH, 48 + r))
        e("v_add_u32 v%d, %d, v%d" % (52 + r, UC_SZ, 48 + r))
        e("v_add_u32 v%d, %d, v%d" % (48 + r, 2 * UC_SZ, 48 + r))
        e("v_cndmask_b32 v%d, v%d, v%d, vcc" % (48 + r, 52 + r, 48 + r))
    e("s_mov_b32 s36, %d" % CH_SZ)
    e("v_mul_lo_u32 v7, v3, s36")
    e("v_lshl_add_u32 v7, v4, 4, v7")
    e("v_cmp_eq_u32 vcc, 255, v4")
    e("s_waitcnt vmcnt(3)")
    e.nop(1)
    for i in range(4):
        e("v_cndmask_b32 v%d, v%d, 0, vcc" % (12 + i, 12 + i))
    W = 8
    e("ds_write_b128 v7, v[8:11] offset:0")
    for phi in range(1, 8):
        q = phi >> 1
        if phi & 1:
            for i in range(4):
                e("v_alignbit_b32 v%d, v%d, v%d, 16" % (16 + 4 * (phi & 3) + i, W + q + i + 1, W + q + i))
            e("ds_write_b128 v7, %s offset:%d" % (vr(16 + 4 * (phi & 3), 4), phi * UC_STRIDE))
        elif q % 2 == 0:
            e("ds_write_b128 v7, %s offset:%d" % (vr(W + q, 4), phi * UC_STRIDE))
        else:
            for i in range(4):
                e("v_mov_b32 v%d, v%d" % (16 + 4 * (phi & 3) + i, W + q + i))
            e("ds_write_b128 v7, %s offset:%d" % (vr(16 + 4 * (phi & 3), 4), phi * UC_STRIDE))
    for i in range(4):
        e("v_mov_b32 v%d, 0" % (56 + i))
    e("v_lshrrev_b32 v60, 2, v4")
    e("v_mul_u32_u24 v60, %d, v60" % UC_STRIDE)
    e("v_and_b32 v61, 3, v4")
    e("v_lshl_add_u32 v60, v61, 4, v60")
    e("v_mul_lo_u32 v61, v3, s36")
    e("v_add_u32 v60, v60, v61")
    e("v_cmp_gt_u32 vcc, 32, v4")
    e("s_and_saveexec_b64 s[34:35], vcc")
    e("ds_write_b128 v60, v[56:59] offset:4096")
    e("s_mov_b64 exec, s[34:35]")
    e("s_waitcnt vmcnt(0)")
    for r in range(3):
        e("ds_write_b128 v%d, %s" % (48 + r, vr(32 + 4 * r, 4)))
    e("v_cmp_gt_u32 vcc, 384, v0")
    e("s_and_saveexec_b64 s[34:35], vcc")
    e("ds_write_b128 v51, v[44:47]")
    e("s_mov_b64 exec, s[34:35]")
    e("s_and_b32 s37, s3, 3")
    e("s_lshr_b32 s37, s37, 1")
    e("s_and_b32 s38, s3, 1")
    e("s_sub_u32 s39, 3, s38")
    e("s_cmp_ge_u32 s3, 4")
    e("s_cselect_b32 s38, s39, s38")
    e("s_mul_i32 s40, s37, %d" % CH_SZ)
    e("v_and_b32 v3, 15, v2")
    e("v_lshrrev_b32 v4, 4, v2")
    e("v_and_b32 v5, 7, v3")
    e("v_sub_u32 v5, 7, v5")
    e("v_mul_u32_u24 v5, %d, v5" % UC_STRIDE)
    e("v_lshrrev_b32 v6, 3, v3")
    e("v_sub_u32 v6, v4, v6")
    e("v_lshl_add_u32 v5, v6, 4, v5")
    e("s_add_u32 s41, s40, %d" % (255 * 16 - 32 - 3 * 64))
    e("v_add_u32 v5, s41, v5")
    e("v_mul_u32_u24 v6, 96, v3")
    e("v_lshl_add_u32 v6, v4, 4, v6")
    e("s_mul_i32 s42, s38, %d" % (16 * 96))
    e("s_add_u32 s42, s42, s40")
    e("s_add_u32 s42, s42, %d" % (UC_SZ + 16 * 96 - 3 * 96))
    e("v_add_u32 v6, s42, v6")
    ACC = 16
    for i in range(8):
        e("v_mov_b32 v%d, 0" % (ACC + i))
    e("s_add_u32 s43, s38, 1")
    e("s_lshl_b32 s43, s43, 2")
    e("s_waitcnt lgkmcnt(0)")
    e("s_barrier")

    FR = [32, 48]

    def issue(fs, i):
        b = FR[fs]
        e("ds_read_b128 %s, v5 offset:%d" % (vr(b, 4), 192 - 64 * i + 32))
        e("ds_read_b128 %s, v6 offset:%d" % (vr(b + 8, 4), 288 - 96 * i))
        e("ds_read_b128 %s, v5 offset:%d" % (vr(b + 4, 4), 192 - 64 * i))
        e("ds_read_b128 %s, v6 offset:%d" % (vr(b + 12, 4), 288 - 96 * i + KCH // 2))

    def mm(fs):
        b = FR[fs]
        a0, a1 = vr(ACC, 4), vr(ACC + 4, 4)
        e("v_mfma_f32_16x16x32_bf16 %s, %s, %s, %s" % (a0, vr(b, 4), vr(b + 8, 4), a0))
        e("v_mfma_f32_16x16x32_bf16 %s, %s, %s, %s" % (a1, vr(b + 4, 4), vr(b + 8, 4), a1))
        e("v_mfma_f32_16x16x32_bf16 %s, %s, %s, %s" % (a0, vr(b, 4), vr(b + 12, 4), a0))
        e("v_mfma_f32_16x16x32_bf16 %s, %s, %s, %s" % (a1, vr(b + 4, 4), vr(b + 12, 4), a1))

    issue(0, 0)
    e.label("K2_LOOP")
    issue(1, 1)
    e("s_waitcnt lgkmcnt(4)")
    mm(0)
    issue(0, 2)
    e("s_waitcnt lgkmcnt(4)")
    mm(1)
    issue(1, 3)
    e("s_waitcnt lgkmcnt(4)")
    mm(0)
    e("v_subrev_u32 v5, 256, v5")
    e("v_subrev_u32 v6, 384, v6")
    e("s_sub_u32 s43, s43, 1")
    e("s_cmp_eq_u32 s43, 0")
    e("s_cbranch_scc1 K2_LAST")
    issue(0, 0)
    e("s_waitcnt lgkmcnt(4)")
    mm(1)
    e("s_branch K2_LOOP")
    e.label("K2_LAST")
    e("s_waitcnt lgkmcnt(0)")
    mm(1)
    e("s_add_u32 s44, s28, s37")
    e("s_lshl_b32 s45, s44, 1")
    e("v_mov_b32 v7, 0")
    e("buffer_load_ushort v7, v7, s[24:27], s45 offen")
    e("v_lshlrev_b32 v8, 5, v3")
    e("v_lshl_add_u32 v8, v4, 2, v8")
    e("s_lshl_b32 s46, s38, 9")
    e("v_add_u32 v8, s46, v8")
    e("v_lshlrev_b32 v9, 1, v8")
    e("s_lshl_b32 s45, s44, 12")
    e("buffer_load_dwordx2 v[10:11], v9, s[16:19], s45 offen")
    e("buffer_load_dwordx2 v[12:13], v9, s[16:19], s45 offen offset:32")
    e("v_sub_u32 v14, %d, v9" % (2 * 2028))
    e("v_add_u32 v14, s40, v14")
    e("ds_read_b64 v[24:25], v14 offset:32")
    e("ds_read_b64 v[26:27], v14")
    e("s_waitcnt vmcnt(0) lgkmcnt(0)")
    e("v_lshlrev_b32 v7, 16, v7")
    for T in range(2):
        A = ACC + 4 * T
        U = 24 + 2 * T
        Xr = 10 + 2 * T
        e("v_and_b32 v32, s47, v%d" % (U + 1))
        e("v_lshlrev_b32 v33, 16, v%d" % (U + 1))
        e("v_and_b32 v34, s47, v%d" % U)
        e("v_lshlrev_b32 v35, 16, v%d" % U)
        for i in range(4):
            e("v_mul_f32 v%d, v%d, v7" % (32 + i, 32 + i))
        e("v_cvt_pk_bf16_f32 v36, v32, v33")
        e("v_cvt_pk_bf16_f32 v37, v34, v35")
        e("v_cvt_pk_bf16_f32 v38, v%d, v%d" % (A, A + 1))
        e("v_cvt_pk_bf16_f32 v39, v%d, v%d" % (A + 2, A + 3))
        e("v_lshlrev_b32 v32, 16, v36")
        e("v_and_b32 v33, s47, v36")
        e("v_lshlrev_b32 v34, 16, v37")
        e("v_and_b32 v35, s47, v37")
        e("v_lshlrev_b32 v40, 16, v38")
        e("v_and_b32 v41, s47, v38")
        e("v_lshlrev_b32 v42, 16, v39")
        e("v_and_b32 v43, s47, v39")
        for i in range(4):
            e("v_add_f32 v%d, v%d, v%d" % (32 + i, 32 + i, 40 + i))
        e("v_cvt_pk_bf16_f32 v36, v32, v33")
        e("v_cvt_pk_bf16_f32 v37, v34, v35")
        e("v_lshlrev_b32 v32, 16, v36")
        e("v_and_b32 v33, s47, v36")
        e("v_lshlrev_b32 v34, 16, v37")
        e("v_and_b32 v35, s47, v37")
        e("v_lshlrev_b32 v40, 16, v%d" % Xr)
        e("v_and_b32 v41, s47, v%d" % Xr)
        e("v_lshlrev_b32 v42, 16, v%d" % (Xr + 1))
        e("v_and_b32 v43, s47, v%d" % (Xr + 1))
        for i in range(4):
            e("v_add_f32 v%d, v%d, v%d" % (32 + i, 32 + i, 40 + i))
        e("v_cvt_pk_bf16_f32 v%d, v32, v33" % (44 + 2 * T))
        e("v_cvt_pk_bf16_f32 v%d, v34, v35" % (45 + 2 * T))
        e("buffer_store_dwordx2 %s, v9, s[20:23], s45 offen offset:%d" % (vr(44 + 2 * T, 2), 32 * T))
    e.label("K2_END")
    e("s_endpgm")
    return kernel_desc(name, 64)


K3_GRID = 224
A_RS = 192
AT = 4160
K3_LDS = AT + 448 * A_RS


def gen_k3(e):
    name = "k3_kernel"
    kernel_header(e, name)
    e("s_cmp_ge_u32 s2, %d" % K3_GRID)
    e("s_cbranch_scc1 K3_END")
    e("s_load_dwordx2 s[4:5], s[0:1], 112")
    e("s_load_dwordx2 s[6:7], s[0:1], 72")
    e("v_lshrrev_b32 v1, 6, v0")
    e("v_and_b32 v2, 63, v0")
    e("s_nop 0")
    e("v_readfirstlane_b32 s3, v1")
    e("s_waitcnt lgkmcnt(0)")
    srd(e, 8, 4, 5, WS_HT, TSZ)
    srd(e, 12, 4, 5, WS_WP, W1P_SZ)
    srd(e, 16, 4, 5, WS_H1, 64 * 112 * 1024)
    srd(e, 20, 6, 7, 0, F * 2)
    e("s_and_b32 s24, s2, 31")
    e("s_lshr_b32 s25, s2, 5")
    e("s_lshl_b32 s26, s25, 3")
    e("s_add_u32 s26, s26, s3")
    e("s_mov_b32 s47, 0xffff0000")
    e("v_lshrrev_b32 v3, 3, v2")
    e("v_and_b32 v4, 7, v2")
    e("v_lshlrev_b32 v5, 12, v3")
    e("v_lshl_add_u32 v5, v4, 4, v5")
    e("s_lshl_b32 s27, s3, 15")
    e("s_lshl_b32 s28, s24, 7")
    e("s_add_u32 s27, s27, s28")
    HR = 8
    for i in range(7):
        e("buffer_load_dwordx4 %s, v5, s[8:11], s27 offen" % vr(HR + 4 * i, 4))
        e("s_add_u32 s27, s27, 0x%x" % (64 * 4096))
    WF = 144
    e("v_lshlrev_b32 v6, 4, v2")
    e("s_mul_i32 s29, s26, %d" % (28 * 1024))
    for s in range(28):
        if s % 4 == 0 and s > 0:
            e("s_add_u32 s29, s29, 4096")
        e("buffer_load_dwordx4 %s, v6, s[12:15], s29 offen offset:%d" % (vr(WF + 4 * s, 4), (s % 4) * 1024))
    e("v_lshrrev_b32 v7, 5, v2")
    e("v_lshlrev_b32 v7, 3, v7")
    e("s_lshl_b32 s30, s26, 6")
    for q in range(4):
        e("buffer_load_dwordx2 %s, v7, s[20:23], s30 offen offset:%d" % (vr(136 + 2 * q, 2), 16 * q))
    for i in range(16):
        e("v_mov_b32 v%d, 0" % (40 + i))
    e("s_waitcnt vmcnt(32)")
    for i in range(7):
        for k in range(4):
            R = HR + 4 * i + k
            e("v_lshlrev_b32 v56, 16, v%d" % R)
            e("v_and_b32 v57, s47, v%d" % R)
            e("v_add_f32 v%d, v%d, v56" % (40 + 2 * k, 40 + 2 * k))
            e("v_add_f32 v%d, v%d, v57" % (41 + 2 * k, 41 + 2 * k))
            e("v_fmac_f32 v%d, v56, v56" % (48 + 2 * k))
            e("v_fmac_f32 v%d, v57, v57" % (49 + 2 * k))
    e.nop(2)
    for i in range(16):
        e("v_add_f32_dpp v%d, v%d, v%d row_ror:8 row_mask:0xf bank_mask:0xf" % (40 + i, 40 + i, 40 + i))
    for i in range(16):
        e("v_mov_b32 v%d, v%d" % (56 + i, 40 + i))
    e.nop(1)
    for i in range(16):
        e("v_permlane16_swap_b32 v%d, v%d" % (40 + i, 56 + i))
    for i in range(16):
        e("v_add_f32 v%d, v%d, v%d" % (40 + i, 40 + i, 56 + i))
    for i in range(16):
        e("v_mov_b32 v%d, v%d" % (56 + i, 40 + i))
    e.nop(1)
    for i in range(16):
        e("v_permlane32_swap_b32 v%d, v%d" % (40 + i, 56 + i))
    for i in range(16):
        e("v_add_f32 v%d, v%d, v%d" % (40 + i, 40 + i, 56 + i))
    SB = 0
    e("s_lshl_b32 s31, s3, 9")
    e("v_lshlrev_b32 v56, 5, v4")
    e("v_add_u32 v56, s31, v56")
    e("s_mov_b64 s[34:35], exec")
    e("s_mov_b64 exec, 0xff")
    e("ds_write_b128 v56, v[40:43] offset:%d" % (SB))
    e("ds_write_b128 v56, v[44:47] offset:%d" % (SB + 16))
    e("ds_write_b128 v56, v[48:51] offset:%d" % (SB + 256))
    e("ds_write_b128 v56, v[52:55] offset:%d" % (SB + 272))
    e("s_mov_b64 exec, s[34:35]")
    e("s_waitcnt lgkmcnt(0)")
    e("s_barrier")
    e("v_lshlrev_b32 v56, 5, v4")
    for i in range(16):
        e("v_mov_b32 v%d, 0" % (40 + i))
    for hb in range(2):
        for w in range(4):
            ww = 4 * hb + w
            e("ds_read_b128 %s, v56 offset:%d" % (vr(60 + 16 * w, 4), SB + 512 * ww))
            e("ds_read_b128 %s, v56 offset:%d" % (vr(64 + 16 * w, 4), SB + 512 * ww + 16))
            e("ds_read_b128 %s, v56 offset:%d" % (vr(68 + 16 * w, 4), SB + 512 * ww + 256))
            e("ds_read_b128 %s, v56 offset:%d" % (vr(72 + 16 * w, 4), SB + 512 * ww + 272))
        e("s_waitcnt lgkmcnt(0)")
        for w in range(4):
            for i in range(16):
                e("v_add_f32 v%d, v%d, v%d" % (40 + i, 40 + i, 60 + 16 * w + i))
    e("s_mov_b32 s36, 0x%x" % f32bits(1.0 / 448.0))
    e("s_mov_b32 s37, 0x%x" % f32bits(1e-5))
    for t in range(8):
        e("v_mul_f32 v%d, s36, v%d" % (40 + t, 40 + t))
        e("v_mul_f32 v%d, s36, v%d" % (48 + t, 48 + t))
        e("v_fma_f32 v%d, -v%d, v%d, v%d" % (48 + t, 40 + t, 40 + t, 48 + t))
        e("v_max_f32 v%d, 0, v%d" % (48 + t, 48 + t))
    for t in range(8):
        rb1(e, 40 + t, 40 + t)
        rb1(e, 48 + t, 48 + t)
        e("v_add_f32 v%d, s37, v%d" % (48 + t, 48 + t))
        rb1(e, 48 + t, 48 + t)
        e("v_sqrt_f32 v%d, v%d" % (48 + t, 48 + t))
    for t in range(8):
        rb1(e, 48 + t, 48 + t)
        e("v_rcp_f32 v%d, v%d" % (48 + t, 48 + t))
    e.nop(1)
    e("v_mul_u32_u24 v57, %d, v3" % A_RS)
    e("v_lshl_add_u32 v57, v4, 4, v57")
    e("s_mul_i32 s38, s3, %d" % (8 * A_RS))
    e("s_add_u32 s38, s38, %d" % AT)
    e("v_add_u32 v57, s38, v57")
    e("v_add_u32 v62, %d, v57" % (4 * 64 * A_RS))
    for i in range(7):
        for k in range(4):
            R = HR + 4 * i + k
            e("v_lshlrev_b32 v60, 16, v%d" % R)
            e("v_and_b32 v61, s47, v%d" % R)
            e("v_sub_f32 v60, v60, v%d" % (40 + 2 * k))
            e("v_sub_f32 v61, v61, v%d" % (41 + 2 * k))
            e("v_cvt_pk_bf16_f32 v60, v60, v61")
            e("v_and_b32 v61, s47, v60")
            e("v_lshlrev_b32 v60, 16, v60")
            e("v_mul_f32 v60, v60, v%d" % (48 + 2 * k))
            e("v_mul_f32 v61, v61, v%d" % (49 + 2 * k))
            e("v_cvt_pk_bf16_f32 v%d, v60, v61" % (64 + 4 * (i & 1) + k))
        e("ds_write_b128 v%d, %s offset:%d" % (57 if i < 4 else 62, vr(64 + 4 * (i & 1), 4), (i & 3) * 64 * A_RS))
    e("v_and_b32 v58, 15, v2")
    e("v_lshrrev_b32 v59, 2, v58")
    e("v_lshrrev_b32 v60, 5, v2")
    e("v_lshl_add_u32 v59, v60, 3, v59")
    e("v_mul_u32_u24 v59, %d, v59" % A_RS)
    e("v_and_b32 v60, 3, v58")
    e("v_lshl_add_u32 v59, v60, 3, v59")
    e("v_bfe_u32 v60, v2, 4, 1")
    e("v_lshl_add_u32 v59, v60, 5, v59")
    e("v_add_u32 v59, %d, v59" % AT)
    ACC = 72
    for i in range(32):
        e("v_mov_b32 v%d, 0" % (ACC + i))
    e("s_waitcnt lgkmcnt(0)")
    e("s_barrier")
    BF = [104, 112]

    def issue(fs, s):
        b = BF[fs]
        o = s * 16 * A_RS
        for t in range(2):
            e("ds_read_b64_tr_b16 %s, v59 offset:%d" % (vr(b + 4 * t, 2), o + 64 * t))
            e("ds_read_b64_tr_b16 %s, v59 offset:%d" % (vr(b + 4 * t + 2, 2), o + 64 * t + 4 * A_RS))

    issue(0, 0)
    for s in range(28):
        fs = s & 1
        if s + 1 < 28:
            if s + 1 == 14:
                e("v_add_u32 v59, %d, v59" % (14 * 16 * A_RS))
            issue(fs ^ 1, (s + 1) % 14 if s + 1 >= 14 else s + 1)
            e("s_waitcnt lgkmcnt(4) vmcnt(%d)" % (4 + 27 - s if s < 27 else 0))
        else:
            e("s_waitcnt lgkmcnt(0) vmcnt(4)")
        for t in range(2):
            a = vr(ACC + 16 * t, 16)
            e("v_mfma_f32_32x32x16_bf16 %s, %s, %s, %s" % (a, vr(WF + 4 * s, 4), vr(BF[fs] + 4 * t, 4), a))
    e("s_waitcnt vmcnt(0)")
    for q in range(4):
        e("v_lshlrev_b32 v%d, 16, v%d" % (120 + 4 * q, 136 + 2 * q))
        e("v_and_b32 v%d, s47, v%d" % (121 + 4 * q, 136 + 2 * q))
        e("v_lshlrev_b32 v%d, 16, v%d" % (122 + 4 * q, 137 + 2 * q))
        e("v_and_b32 v%d, s47, v%d" % (123 + 4 * q, 137 + 2 * q))
    import math
    cgel = -2.0 * 0.7978845608028654 * 1.4426950408889634
    e("s_mov_b32 s40, 0x%x" % f32bits(0.044715))
    e("s_mov_b32 s41, 0x%x" % f32bits(cgel))
    e.nop(12)
    e("s_mul_i32 s42, s24, %d" % (2 * 112 * 1024))
    e("s_lshl_b32 s43, s26, 11")
    e("s_add_u32 s42, s42, s43")
    for t in range(2):
        A = ACC + 16 * t
        for p in range(8):
            r0, r1 = A + 2 * p, A + 2 * p + 1
            e("v_cvt_pk_bf16_f32 v8, v%d, v%d" % (r0, r1))
            e("v_and_b32 v9, s47, v8")
            e("v_lshlrev_b32 v8, 16, v8")
            e("v_add_f32 v8, v8, v%d" % (120 + 2 * p))
            e("v_add_f32 v9, v9, v%d" % (121 + 2 * p))
            e("v_cvt_pk_bf16_f32 v8, v8, v9")
            e("v_and_b32 v9, s47, v8")
            e("v_lshlrev_b32 v8, 16, v8")
            e("v_mul_f32 v10, v8, v8")
            e("v_mul_f32 v11, v9, v9")
            e("v_fma_f32 v10, v10, s40, 1.0")
            e("v_fma_f32 v11, v11, s40, 1.0")
            e("v_mul_f32 v10, v10, v8")
            e("v_mul_f32 v11, v11, v9")
            e("v_mul_f32 v10, s41, v10")
            e("v_mul_f32 v11, s41, v11")
            e("v_exp_f32 v10, v10")
            e("v_exp_f32 v11, v11")
            e.nop(1)
            e("v_add_f32 v10, 1.0, v10")
            e("v_add_f32 v11, 1.0, v11")
            e("v_rcp_f32 v10, v10")
            e("v_rcp_f32 v11, v11")
            e.nop(1)
            e("v_mul_f32 v8, v8, v10")
            e("v_mul_f32 v9, v9, v11")
            e("v_cvt_pk_bf16_f32 v%d, v8, v9" % (16 + 8 * t + p))
        e("buffer_store_dwordx4 %s, v6, s[16:19], s42 offen" % vr(16 + 8 * t, 4))
        e("buffer_store_dwordx4 %s, v6, s[16:19], s42 offen offset:1024" % vr(20 + 8 * t, 4))
        e("s_add_u32 s42, s42, %d" % (112 * 1024))
    e.label("K3_END")
    e("s_endpgm")
    return kernel_desc(name, 256)


K4_GRID = 224
P_RS = 272
P_SZ = 64 * P_RS
H_RS = 192
HT_SZ = 64 * H_RS
K4_LDS = 4 * P_SZ + HT_SZ


def gen_k4(e):
    name = NAME + "_kernel"
    kernel_header(e, name)
    e("s_cmp_ge_u32 s2, %d" % K4_GRID)
    e("s_cbranch_scc1 K4_END")
    e("s_load_dwordx2 s[4:5], s[0:1], 112")
    e("s_load_dwordx2 s[6:7], s[0:1], 88")
    e("s_load_dwordx2 s[44:45], s[0:1], 96")
    e("v_lshrrev_b32 v1, 6, v0")
    e("v_and_b32 v2, 63, v0")
    e("s_nop 0")
    e("v_readfirstlane_b32 s3, v1")
    e("s_waitcnt lgkmcnt(0)")
    srd(e, 8, 4, 5, WS_H1, 64 * 112 * 1024)
    srd(e, 12, 4, 5, WS_WP + W1P_SZ, W1P_SZ)
    srd(e, 16, 4, 5, WS_HT, TSZ)
    srd(e, 20, 6, 7, 0, D * 2)
    srd(e, 24, 44, 45, 0, TSZ)
    e("s_and_b32 s28, s2, 31")
    e("s_lshr_b32 s29, s2, 5")
    e("s_mov_b32 s47, 0xffff0000")
    e("v_lshlrev_b32 v6, 4, v2")
    e("s_mul_i32 s30, s3, %d" % (28 * 1024))
    e("s_mul_i32 s31, s28, %d" % (2 * 112 * 1024))
    e("s_add_u32 s31, s31, s30")
    e("s_add_u32 s32, s31, %d" % (112 * 1024))
    e("s_mul_i32 s33, s29, %d" % (2 * 112 * 1024))
    e("s_add_u32 s33, s33, s30")
    e("s_add_u32 s34, s33, %d" % (112 * 1024))
    RING = 7
    RB = 80

    def ld(s):
        b = RB + 16 * (s % RING)
        o = (s % 4) * 1024
        e("buffer_load_dwordx4 %s, v6, s[12:15], s33 offen offset:%d" % (vr(b, 4), o))
        e("buffer_load_dwordx4 %s, v6, s[8:11], s31 offen offset:%d" % (vr(b + 8, 4), o))
        e("buffer_load_dwordx4 %s, v6, s[12:15], s34 offen offset:%d" % (vr(b + 4, 4), o))
        e("buffer_load_dwordx4 %s, v6, s[8:11], s32 offen offset:%d" % (vr(b + 12, 4), o))
        if s % 4 == 3:
            for r in (31, 32, 33, 34):
                e("s_add_u32 s%d, s%d, 4096" % (r, r))

    e("v_lshrrev_b32 v3, 3, v0")
    e("v_and_b32 v4, 7, v0")
    e("v_lshlrev_b32 v5, 12, v3")
    e("v_lshl_add_u32 v5, v4, 4, v5")
    e("s_lshl_b32 s35, s29, 18")
    e("s_lshl_b32 s36, s28, 7")
    e("s_add_u32 s35, s35, s36")
    e("buffer_load_dwordx4 v[8:11], v5, s[16:19], s35 offen")
    e("s_add_u32 s35, s35, 0x%x" % (32 * 4096))
    e("buffer_load_dwordx4 v[12:15], v5, s[16:19], s35 offen")
    for s in range(RING):
        ld(s)
    ACC = 16
    for i in range(64):
        e("v_mov_b32 v%d, 0" % (ACC + i))
    e("v_mul_u32_u24 v7, %d, v3" % H_RS)
    e("v_lshl_add_u32 v7, v4, 4, v7")
    e("s_waitcnt vmcnt(%d)" % (4 * RING))
    e("ds_write_b128 v7, v[8:11] offset:%d" % (0))
    e("ds_write_b128 v7, v[12:15] offset:%d" % (32 * H_RS))
    for s in range(28):
        outstanding_after = min(28 - 1 - s, RING - 1) * 4
        e("s_waitcnt vmcnt(%d)" % outstanding_after)
        b = RB + 16 * (s % RING)
        for dl in range(2):
            for t in range(2):
                a = vr(ACC + 16 * (2 * dl + t), 16)
                e("v_mfma_f32_32x32x16_bf16 %s, %s, %s, %s" % (a, vr(b + 4 * dl, 4), vr(b + 8 + 4 * t, 4), a))
        if s + RING < 28:
            ld(s + RING)
    e("v_and_b32 v3, 31, v2")
    e("v_mul_u32_u24 v3, %d, v3" % P_RS)
    e("v_lshrrev_b32 v4, 5, v2")
    e("v_lshl_add_u32 v3, v4, 4, v3")
    e("s_mul_i32 s37, s3, %d" % P_SZ)
    e("v_add_u32 v3, s37, v3")
    e.nop(12)
    for dl in range(2):
        for t in range(2):
            for q in range(4):
                e("ds_write_b128 v3, %s offset:%d" % (vr(ACC + 16 * (2 * dl + t) + 4 * q, 4), HT_SZ + t * 32 * P_RS + dl * 128 + q * 32))
    e("s_waitcnt lgkmcnt(0)")
    e("s_barrier")
    e("v_and_b32 v3, 15, v2")
    e("v_lshrrev_b32 v4, 4, v2")
    e("s_lshl_b32 s38, s3, 4")
    e("v_add_u32 v5, s38, v3")
    e("v_mul_u32_u24 v7, %d, v5" % P_RS)
    e("v_lshl_add_u32 v7, v4, 5, v7")
    e("v_lshrrev_b32 v8, 2, v3")
    e("v_lshl_add_u32 v8, v4, 3, v8")
    e("v_mul_u32_u24 v8, %d, v8" % H_RS)
    e("v_and_b32 v9, 3, v3")
    e("v_lshl_add_u32 v8, v9, 3, v8")
    e("s_lshl_b32 s39, s3, 5")
    e("v_add_u32 v8, s39, v8")
    e("v_lshlrev_b32 v9, 4, v4")
    e("s_lshl_b32 s40, s29, 7")
    e("buffer_load_dwordx4 v[100:103], v9, s[20:23], s40 offen")
    e("buffer_load_dwordx4 v[104:107], v9, s[20:23], s40 offen offset:64")
    e("s_mov_b32 s41, 896")
    e("v_mul_lo_u32 v10, v5, s41")
    e("v_add_u32 v10, v10, v9")
    e("s_mul_i32 s42, s28, %d" % (64 * 896))
    e("s_add_u32 s42, s42, s40")
    for hf in range(2):
        for w in range(4):
            e("ds_read_b128 %s, v7 offset:%d" % (vr(16 + 8 * w, 4), HT_SZ + w * P_SZ + hf * 128))
            e("ds_read_b128 %s, v7 offset:%d" % (vr(20 + 8 * w, 4), HT_SZ + w * P_SZ + hf * 128 + 16))
        e("ds_read_b64_tr_b16 v[48:49], v8 offset:%d" % (hf * 32 * H_RS))
        e("ds_read_b64_tr_b16 v[50:51], v8 offset:%d" % (hf * 32 * H_RS + 4 * H_RS))
        e("s_waitcnt lgkmcnt(0) vmcnt(0)")
        for i in range(8):
            e("v_add_f32 v%d, v%d, v%d" % (16 + i, 16 + i, 24 + i))
            e("v_add_f32 v%d, v%d, v%d" % (32 + i, 32 + i, 40 + i))
            e("v_add_f32 v%d, v%d, v%d" % (16 + i, 16 + i, 32 + i))
        BB = 100 + 4 * hf
        for p in range(4):
            e("v_cvt_pk_bf16_f32 v24, v%d, v%d" % (16 + 2 * p, 17 + 2 * p))
            e("v_and_b32 v25, s47, v24")
            e("v_lshlrev_b32 v24, 16, v24")
            e("v_lshlrev_b32 v26, 16, v%d" % (BB + p))
            e("v_and_b32 v27, s47, v%d" % (BB + p))
            e("v_add_f32 v24, v24, v26")
            e("v_add_f32 v25, v25, v27")
            e("v_cvt_pk_bf16_f32 v24, v24, v25")
            e("v_and_b32 v25, s47, v24")
            e("v_lshlrev_b32 v24, 16, v24")
            e("v_lshlrev_b32 v26, 16, v%d" % (48 + p))
            e("v_and_b32 v27, s47, v%d" % (48 + p))
            e("v_add_f32 v24, v24, v26")
            e("v_add_f32 v25, v25, v27")
            e("v_cvt_pk_bf16_f32 v%d, v24, v25" % (52 + 4 * hf + p))
        e("buffer_store_dwordx4 %s, v10, s[24:27], s42 offen offset:%d" % (vr(52 + 4 * hf, 4), 64 * hf))
    e.label("K4_END")
    e("s_endpgm")
    return kernel_desc(name, 192)


def kernels():
    return [
        ("k2_kernel", gen_k2, K2_GRID, 512, K2_LDS),
        ("k3_kernel", gen_k3, K3_GRID, 512, K3_LDS),
        (NAME + "_kernel", gen_k4, K4_GRID, 256, K4_LDS),
    ]
```

```python
import sys, struct

NAME = "sequential_preLN__ssm_conv_s4d__dense_activation_gelu__prompt"
L = 2048; D = 448; N = 256; F = 1792

WS_UT = 0x0
WS_XT = 0x200000
WS_K = 0x400000
KCH = 15360
WS_HT = 0xC00000
WS_H1 = 0x1000000
WS_WP = 0x1800000
W1P_SZ = 56 * 28 * 1024
TSZ = D * L * 2


def f32bits(x):
    return struct.unpack("<I", struct.pack("<f", x))[0]


class E:
    def __init__(self):
        self.lines = []

    def __call__(self, s):
        self.lines.append("    " + s)

    def label(self, s):
        self.lines.append(s + ":")

    def c(self, s):
        self.lines.append("    ; " + s)

    def raw(self, s):
        self.lines.append(s)

    def nop(self, n):
        while n > 0:
            k = min(n, 16)
            self("s_nop %d" % (k - 1))
            n -= k

    def text(self):
        return "\n".join(self.lines) + "\n"


def vr(a, n=1):
    return "v%d" % a if n == 1 else "v[%d:%d]" % (a, a + n - 1)


def sr(a, n=1):
    return "s%d" % a if n == 1 else "s[%d:%d]" % (a, a + n - 1)


def srd(e, dst, base_lo, base_hi, off, size):
    if off:
        e("s_add_u32 s%d, s%d, 0x%x" % (dst, base_lo, off))
        e("s_addc_u32 s%d, s%d, 0" % (dst + 1, base_hi))
    else:
        e("s_mov_b32 s%d, s%d" % (dst, base_lo))
        e("s_mov_b32 s%d, s%d" % (dst + 1, base_hi))
    e("s_and_b32 s%d, s%d, 0xffff" % (dst + 1, dst + 1))
    e("s_mov_b32 s%d, 0x%x" % (dst + 2, size))
    e("s_mov_b32 s%d, 0x00020000" % (dst + 3))


def reduce64(e, v, t):
    e.nop(2)
    e("v_add_f32_dpp v%d, v%d, v%d quad_perm:[1,0,3,2] row_mask:0xf bank_mask:0xf" % (v, v, v))
    e.nop(2)
    e("v_add_f32_dpp v%d, v%d, v%d quad_perm:[2,3,0,1] row_mask:0xf bank_mask:0xf" % (v, v, v))
    e.nop(2)
    e("v_add_f32_dpp v%d, v%d, v%d row_half_mirror row_mask:0xf bank_mask:0xf" % (v, v, v))
    e.nop(2)
    e("v_add_f32_dpp v%d, v%d, v%d row_mirror row_mask:0xf bank_mask:0xf" % (v, v, v))
    e("v_mov_b32 v%d, v%d" % (t, v))
    e.nop(2)
    e("v_permlane16_swap_b32 v%d, v%d" % (v, t))
    e("v_add_f32 v%d, v%d, v%d" % (v, v, t))
    e("v_mov_b32 v%d, v%d" % (t, v))
    e.nop(2)
    e("v_permlane32_swap_b32 v%d, v%d" % (v, t))
    e("v_add_f32 v%d, v%d, v%d" % (v, v, t))


def rb1(e, dst, src):
    e("v_cvt_pk_bf16_f32 v%d, v%d, v%d" % (dst, src, src))
    e("v_lshlrev_b32 v%d, 16, v%d" % (dst, dst))


def kernel_header(e, name):
    e.raw(".text")
    e.raw(".globl %s" % name)
    e.raw(".p2align 8")
    e.raw(".type %s,@function" % name)
    e.label(name)


def kernel_desc(name, vgpr, sgpr=102, accum=None):
    if accum is None:
        accum = (vgpr + 3) // 4 * 4
    return """.section .rodata,"a"
.p2align 6
.amdhsa_kernel %s
  .amdhsa_next_free_vgpr %d
  .amdhsa_next_free_sgpr %d
  .amdhsa_accum_offset %d
  .amdhsa_group_segment_fixed_size 0
  .amdhsa_kernarg_size 120
  .amdhsa_user_sgpr_count 2
  .amdhsa_user_sgpr_kernarg_segment_ptr 1
  .amdhsa_system_sgpr_workgroup_id_x 1
.end_amdhsa_kernel
""" % (name, vgpr, sgpr, accum)


K1_LN = 64
K1_PK = 98
K1_KG = 448
K1_GRID = K1_LN + K1_PK + K1_KG
K1_LDS = 4 * 64 * 288 + 64


def gen_k1(e):
    name = "k1_kernel"
    kernel_header(e, name)
    e("s_cmp_ge_u32 s2, %d" % K1_GRID)
    e("s_cbranch_scc1 K1_END")
    e("s_load_dwordx2 s[4:5], s[0:1], 112")
    e("v_lshrrev_b32 v1, 6, v0")
    e("v_and_b32 v2, 63, v0")
    e("s_nop 0")
    e("v_readfirstlane_b32 s3, v1")
    e("s_cmp_lt_u32 s2, %d" % K1_LN)
    e("s_cbranch_scc1 K1_LNB")
    e("s_cmp_lt_u32 s2, %d" % (K1_LN + K1_PK))
    e("s_cbranch_scc1 K1_PKB")
    e("s_branch K1_KGB")

    e.label("K1_LNB")
    e("s_load_dwordx2 s[6:7], s[0:1], 0")
    e("s_waitcnt lgkmcnt(0)")
    srd(e, 8, 6, 7, 0, TSZ)
    srd(e, 12, 4, 5, WS_UT, TSZ)
    srd(e, 16, 4, 5, WS_XT, TSZ)
    e("s_lshl_b32 s20, s2, 5")
    e("s_lshl_b32 s21, s3, 3")
    e("s_add_u32 s21, s21, s20")
    e("s_mul_i32 s22, s21, 896")
    e("v_lshlrev_b32 v3, 4, v2")
    RX = 32
    for i in range(32):
        e("v_mov_b32 v%d, 0" % (RX + i))
    e("s_mov_b64 s[24:25], exec")
    e("v_cmp_gt_u32 vcc, 56, v2")
    e("s_mov_b64 s[26:27], vcc")
    e("s_mov_b64 exec, s[26:27]")
    for r in range(8):
        if r == 4:
            e("s_add_u32 s22, s22, 3584")
        e("buffer_load_dwordx4 %s, v3, s[8:11], s22 offen offset:%d" % (vr(RX + 4 * r, 4), (r & 3) * 896))
    e("s_mov_b64 exec, s[24:25]")
    e("s_lshl_b32 s23, s3, 3")
    e("s_mul_i32 s23, s23, 912")
    e("v_add_u32 v4, s23, v3")
    e("s_mov_b32 s28, 0x%x" % f32bits(1.0 / 448.0))
    e("s_mov_b32 s29, 0x%x" % f32bits(1e-5))
    e("s_mov_b32 s30, 0xffff0000")
    X = 8
    for r in range(8):
        e("s_waitcnt vmcnt(%d)" % (7 - r))
        R = RX + 4 * r
        for k in range(4):
            e("v_lshlrev_b32 v%d, 16, v%d" % (X + 2 * k, R + k))
            e("v_and_b32 v%d, s30, v%d" % (X + 2 * k + 1, R + k))
        e("v_add_f32 v16, v%d, v%d" % (X, X + 1))
        for k in range(2, 8):
            e("v_add_f32 v16, v16, v%d" % (X + k))
        reduce64(e, 16, 17)
        e("v_mul_f32 v16, s28, v16")
        e("v_mov_b32 v18, 0")
        e("s_mov_b64 exec, s[26:27]")
        for k in range(8):
            e("v_sub_f32 v19, v%d, v16" % (X + k))
            e("v_fmac_f32 v18, v19, v19")
        e("s_mov_b64 exec, s[24:25]")
        reduce64(e, 18, 17)
        e("v_mul_f32 v18, s28, v18")
        rb1(e, 16, 16)
        rb1(e, 18, 18)
        e("v_add_f32 v18, s29, v18")
        rb1(e, 18, 18)
        e("v_sqrt_f32 v18, v18")
        e.nop(1)
        rb1(e, 18, 18)
        e("v_rcp_f32 v18, v18")
        e.nop(1)
        for k in range(4):
            e("v_sub_f32 v20, v%d, v16" % (X + 2 * k))
            e("v_sub_f32 v21, v%d, v16" % (X + 2 * k + 1))
            e("v_cvt_pk_bf16_f32 v20, v20, v21")
            e("v_and_b32 v21, s30, v20")
            e("v_lshlrev_b32 v20, 16, v20")
            e("v_mul_f32 v20, v20, v18")
            e("v_mul_f32 v21, v21, v18")
            e("v_cvt_pk_bf16_f32 v%d, v20, v21" % (24 + k))
        e("s_mov_b64 exec, s[26:27]")
        e("ds_write_b128 v4, v[24:27] offset:%d" % (32 * 912 + r * 912))
        e("ds_write_b128 v4, %s offset:%d" % (vr(R, 4), r * 912))
        e("s_mov_b64 exec, s[24:25]")
    e("s_waitcnt lgkmcnt(0)")
    e("s_barrier")
    e("v_and_b32 v5, 15, v2")
    e("v_lshrrev_b32 v6, 4, v2")
    e("v_lshrrev_b32 v7, 2, v5")
    e("v_and_b32 v8, 3, v5")
    e("v_lshlrev_b32 v9, 3, v6")
    e("v_add_u32 v10, v9, v7")
    e("v_mul_u32_u24 v10, 912, v10")
    e("v_lshl_add_u32 v10, v8, 3, v10")
    e("v_sub_u32 v11, v9, v7")
    e("v_add_u32 v11, 3, v11")
    e("v_mul_u32_u24 v11, 912, v11")
    e("v_lshl_add_u32 v11, v8, 3, v11")
    e("v_lshlrev_b32 v12, 12, v5")
    e("v_lshl_add_u32 v13, v9, 1, v12")
    e("s_lshl_b32 s31, s20, 1")
    e("v_add_u32 v13, s31, v13")
    e("v_lshlrev_b32 v14, 1, v9")
    e("v_sub_u32 v14, v12, v14")
    e("s_sub_u32 s32, 4080, s31")
    e("v_add_u32 v14, s32, v14")
    e("s_lshl_b32 s33, s3, 5")
    e("s_lshl_b32 s34, s3, 16")
    e("v_add_u32 v10, s33, v10")
    e("v_add_u32 v11, s33, v11")
    for k in range(7):
        co = k * 128
        e("ds_read_b64_tr_b16 v[16:17], v10 offset:%d" % (co))
        e("ds_read_b64_tr_b16 v[18:19], v10 offset:%d" % (co + 4 * 912))
        e("ds_read_b64_tr_b16 v[20:21], v11 offset:%d" % (co + 32 * 912 + 4 * 912))
        e("ds_read_b64_tr_b16 v[22:23], v11 offset:%d" % (co + 32 * 912))
        e("s_waitcnt lgkmcnt(2)")
        e("buffer_store_dwordx4 v[16:19], v13, s[16:19], s34 offen")
        e("s_waitcnt lgkmcnt(0)")
        e("buffer_store_dwordx4 v[20:23], v14, s[12:15], s34 offen")
        e("s_add_u32 s34, s34, 0x%x" % (64 * 4096))
        e.nop(2)
    e("s_branch K1_END")

    e.label("K1_PKB")
    e("s_load_dwordx2 s[6:7], s[0:1], 64")
    e("s_load_dwordx2 s[8:9], s[0:1], 80")
    e("s_waitcnt lgkmcnt(0)")
    srd(e, 12, 4, 5, WS_WP, 2 * W1P_SZ)
    e("s_sub_u32 s20, s2, %d" % K1_LN)
    e("s_lshl_b32 s20, s20, 2")
    e("s_add_u32 s20, s20, s3")
    e("s_lshl_b32 s21, s20, 3")
    e("v_and_b32 v3, 31, v2")
    e("v_lshrrev_b32 v4, 5, v2")
    e("v_lshlrev_b32 v5, 4, v2")
    e("s_cmp_ge_u32 s20, 196")
    e("s_cbranch_scc1 K1_PK2")
    srd(e, 16, 6, 7, 0, D * F * 2)
    e("s_mov_b32 s22, %d" % (8 * 3584))
    e("v_mul_lo_u32 v6, v4, s22")
    e("v_lshl_add_u32 v6, v3, 1, v6")
    for it in range(8):
        e("s_add_u32 s23, s21, %d" % it)
        e("s_mul_hi_u32 s24, s23, 0x%x" % ((2**32 + 27) // 28))
        e("s_mul_i32 s25, s24, 28")
        e("s_sub_u32 s25, s23, s25")
        e("s_mul_i32 s26, s25, %d" % (16 * 3584))
        e("s_lshl_b32 s27, s24, 6")
        e("s_add_u32 s26, s26, s27")
        B = 16 + 4 * (it & 1)
        for p in range(4):
            e("s_add_u32 s27, s26, %d" % (2 * p * 3584))
            e("buffer_load_ushort v%d, v6, s[16:19], s27 offen" % (32 + 2 * p))
            e("buffer_load_ushort v%d, v6, s[16:19], s27 offen offset:3584" % (33 + 2 * p))
        e("s_lshl_b32 s28, s23, 10")
        e("s_waitcnt vmcnt(0)")
        for p in range(4):
            e("v_lshl_or_b32 v%d, v%d, 16, v%d" % (B + p, 33 + 2 * p, 32 + 2 * p))
        e("buffer_store_dwordx4 %s, v5, s[12:15], s28 offen" % vr(B, 4))
    e("s_branch K1_END")
    e.label("K1_PK2")
    srd(e, 16, 8, 9, 0, D * F * 2)
    e("s_mov_b32 s22, %d" % (4 * 896))
    e("v_mul_lo_u32 v6, v4, s22")
    e("v_lshl_add_u32 v6, v3, 1, v6")
    for it in range(8):
        e("s_add_u32 s23, s21, %d" % it)
        e("s_sub_u32 s29, s23, 1568")
        e("s_mul_hi_u32 s24, s29, 0x%x" % ((2**32 + 111) // 112))
        e("s_mul_i32 s25, s24, 112")
        e("s_sub_u32 s25, s29, s25")
        e("s_mul_i32 s26, s25, %d" % (16 * 896))
        e("s_lshl_b32 s27, s24, 6")
        e("s_add_u32 s26, s26, s27")
        e("s_add_u32 s27, s26, %d" % (8 * 896))
        B = 16 + 4 * (it & 1)
        for p in range(8):
            e("buffer_load_ushort v%d, v6, s[16:19], s%d offen offset:%d" % (32 + p, 26 + (p >> 2), (p & 3) * 896))
        e("s_waitcnt vmcnt(0)")
        for p in range(4):
            e("v_lshl_or_b32 v%d, v%d, 16, v%d" % (B + p, 33 + 2 * p, 32 + 2 * p))
        e("s_lshl_b32 s28, s23, 10")
        e("s_waitcnt vmcnt(0)")
        e("buffer_store_dwordx4 %s, v5, s[12:15], s28 offen" % vr(B, 4))
    e("s_branch K1_END")

    e.label("K1_KGB")
    e("s_load_dwordx8 s[8:15], s[0:1], 8")
    e("s_load_dwordx2 s[16:17], s[0:1], 40")
    e("s_sub_u32 s20, s2, %d" % (K1_LN + K1_PK))
    e("s_waitcnt lgkmcnt(0)")
    srd(e, 24, 8, 9, 0, D * N * 2)
    srd(e, 28, 10, 11, 0, D * N * 2)
    srd(e, 32, 12, 13, 0, D * N * 2)
    srd(e, 36, 14, 15, 0, D * N * 2)
    srd(e, 40, 16, 17, 0, D * 2)
    e("s_lshl_b32 s21, s20, 9")
    e("v_lshlrev_b32 v3, 1, v0")
    e("s_lshl_b32 s22, s20, 1")
    e("v_mov_b32 v4, 0")
    e("buffer_load_ushort v8, v3, s[24:27], s21 offen")
    e("buffer_load_ushort v9, v3, s[28:31], s21 offen")
    e("buffer_load_ushort v10, v3, s[32:35], s21 offen")
    e("buffer_load_ushort v11, v3, s[36:39], s21 offen")
    e("buffer_load_ushort v12, v4, s[40:43], s22 offen")
    LHI = 1.4426950216293335
    import numpy as np
    lhi = np.float32(1.4426950408889634)
    llo = np.float32(1.4426950408889634 - float(lhi))
    e("s_mov_b32 s44, 0x%x" % f32bits(float(lhi)))
    e("s_mov_b32 s45, 0x%x" % f32bits(float(llo)))
    e("s_mov_b32 s46, 0x%x" % f32bits(0.6931471805599453))
    e("s_mov_b32 s47, 0xffff0000")
    e("s_mov_b32 s48, 0x%x" % f32bits(0.15915494309189535))
    e("s_waitcnt vmcnt(0)")
    for r in (8, 9, 10, 11, 12):
        e("v_lshlrev_b32 v%d, 16, v%d" % (r, r))

    def exp_acc(dst, x, t1, t2):
        e("v_mul_f32 v%d, s44, v%d" % (t1, x))
        e("v_fma_f32 v%d, v%d, s44, -v%d" % (t2, x, t1))
        e("v_fmac_f32 v%d, s45, v%d" % (t2, x))
        e("v_exp_f32 v%d, v%d" % (t1, t1))
        e("v_mul_f32 v%d, s46, v%d" % (t2, t2))
        e("v_fma_f32 v%d, v%d, v%d, v%d" % (dst, t1, t2, t1))
        rb1(e, dst, dst)

    exp_acc(12, 12, 13, 14)
    exp_acc(8, 8, 13, 14)
    e("v_mul_f32 v8, v8, v12")
    e("v_mul_f32 v9, v9, v12")
    e("v_mul_f32 v10, v10, v12")
    e("v_mul_f32 v11, v11, v12")
    e("v_mul_f32 v8, s44, v8")
    e("v_mul_f32 v9, s48, v9")
    Z = 16
    for k in range(12):
        sc = float(2 ** k)
        e("s_mov_b32 s49, 0x%x" % f32bits(sc))
        e("v_mul_f32 v13, s49, v8")
        e("v_mul_f32 v14, s49, v9")
        e("v_exp_f32 v13, -v13")
        e("v_fract_f32 v14, v14")
        e("v_cos_f32 v15, v14")
        e("v_sin_f32 v14, v14")
        e.nop(1)
        e("v_mul_f32 v%d, v13, v15" % (Z + 2 * k))
        e("v_mul_f32 v%d, v13, v14" % (Z + 2 * k + 1))

    def zr(k):
        return Z + 2 * k

    Ereg = {}
    Greg = {}
    EB = 40
    GB = 72
    T0, T1, T2, T3 = 4, 5, 6, 7

    def cmul(dst, a, b):
        e("v_mul_f32 v%d, v%d, v%d" % (T0, a + 1, b + 1))
        e("v_mul_f32 v%d, v%d, v%d" % (T1, a + 1, b))
        e("v_fma_f32 v%d, v%d, v%d, -v%d" % (dst, a, b, T0))
        e("v_fma_f32 v%d, v%d, v%d, v%d" % (dst + 1, a, b + 1, T1))

    e("s_mul_i32 s50, s3, %d" % (64 * 288))
    e("v_lshlrev_b32 v104, 2, v2")
    e("v_add_u32 v104, s50, v104")
    e("v_and_b32 v105, 15, v2")
    e("v_mul_u32_u24 v105, 288, v105")
    e("v_lshrrev_b32 v106, 4, v2")
    e("v_lshl_add_u32 v105, v106, 4, v105")
    e("v_add_u32 v105, s50, v105")

    def split_write(src, row_hi, neg_im):
        ng = "-" if neg_im else ""
        e("v_cvt_pk_bf16_f32 v%d, v%d, %sv%d" % (T0, src, ng, src + 1))
        e("v_lshlrev_b32 v%d, 16, v%d" % (T1, T0))
        e("v_and_b32 v%d, s47, v%d" % (T2, T0))
        e("v_sub_f32 v%d, v%d, v%d" % (T1, src, T1))
        e("v_sub_f32 v%d, %sv%d, v%d" % (T2, ng, src + 1, T2))
        e("v_cvt_pk_bf16_f32 v%d, v%d, v%d" % (T1, T1, T2))
        e("ds_write_b32 v104, v%d offset:%d" % (T0, row_hi * 288))
        e("ds_write_b32 v104, v%d offset:%d" % (T1, (row_hi + 16) * 288))

    ACC = 108
    FR = 124
    for i in range(16):
        e("v_mov_b32 v%d, 0" % (ACC + i))

    def mfma_seg(t):
        for s in range(4):
            e("ds_read_b128 %s, v105 offset:%d" % (vr(FR + 16 * s + 0, 4), 64 * s))
            e("ds_read_b128 %s, v105 offset:%d" % (vr(FR + 16 * s + 4, 4), 64 * s + 16 * 288))
            e("ds_read_b128 %s, v105 offset:%d" % (vr(FR + 16 * s + 8, 4), 64 * s + 32 * 288))
            e("ds_read_b128 %s, v105 offset:%d" % (vr(FR + 16 * s + 12, 4), 64 * s + 48 * 288))
        for s in range(4):
            e("s_waitcnt lgkmcnt(%d)" % (12 - 4 * s))
            a = vr(ACC + 4 * t, 4)
            ah, al, bh, bl = (vr(FR + 16 * s + 4 * q, 4) for q in range(4))
            e("v_mfma_f32_16x16x32_bf16 %s, %s, %s, %s" % (a, ah, bh, a))
            e("v_mfma_f32_16x16x32_bf16 %s, %s, %s, %s" % (a, ah, bl, a))
            e("v_mfma_f32_16x16x32_bf16 %s, %s, %s, %s" % (a, al, bh, a))

    e("v_mov_b32 v%d, 1.0" % EB)
    e("v_mov_b32 v%d, 0" % (EB + 1))
    Ereg[0] = EB
    for b in range(1, 16):
        Ereg[b] = EB + 2 * b
        k = b.bit_length() - 1
        hb = 1 << k
        if b == hb:
            e("v_mov_b32 v%d, v%d" % (Ereg[b], zr(k)))
            e("v_mov_b32 v%d, v%d" % (Ereg[b] + 1, zr(k) + 1))
        else:
            cmul(Ereg[b], zr(k), Ereg[b - hb])
    e("v_mov_b32 v%d, v10" % GB)
    e("v_mov_b32 v%d, v11" % (GB + 1))
    Greg[0] = GB
    for a in range(1, 16):
        p = 16 * a
        Greg[p] = GB + 2 * a
        k = p.bit_length() - 1
        cmul(Greg[p], zr(k), Greg[p - (1 << k)])
    for a in range(16):
        split_write(Greg[16 * a], a, True)
    for b in range(16):
        split_write(Ereg[b], 32 + b, False)
    mfma_seg(0)

    for sg in (1, 2, 3):
        st = 1 << sg
        base = 128 << sg
        hs = 16 << sg
        freeE = sorted(r for p, r in Ereg.items() if p % st != 0)
        Ereg = {p: r for p, r in Ereg.items() if p % st == 0}
        kz = 3 + sg
        for b in range(8, 16):
            p = st * b
            Ereg[p] = freeE.pop(0)
            if b == 8:
                e("v_mov_b32 v%d, v%d" % (Ereg[p], zr(kz)))
                e("v_mov_b32 v%d, v%d" % (Ereg[p] + 1, zr(kz) + 1))
            else:
                cmul(Ereg[p], zr(kz), Ereg[p - 8 * st])
        freeG = sorted(r for p, r in Greg.items() if p % hs != 0)
        Greg = {p: r for p, r in Greg.items() if p % hs == 0}
        kz = 7 + sg
        for a in range(8):
            p = base + hs * a
            Greg[p] = freeG.pop(0)
            cmul(Greg[p], zr(kz), Greg[hs * a])
        rows = 8
        if sg == 3:
            Greg[2048] = zr(0)
            cmul(Greg[2048], zr(11), Greg[0])
            rows = 9
        for a in range(rows):
            split_write(Greg[base + hs * a], a, True)
        for b in range(16):
            split_write(Ereg[st * b], 32 + b, False)
        mfma_seg(sg)

    e.nop(8)
    e("v_and_b32 v13, 15, v2")
    e("v_lshrrev_b32 v14, 4, v2")
    e("v_lshlrev_b32 v14, 8, v14")
    e("v_lshl_add_u32 v13, v13, 2, v14")
    e("v_add_u32 v13, s50, v13")
    e("s_waitcnt lgkmcnt(0)")
    for i in range(4):
        e("ds_write_b32 v13, v%d offset:%d" % (ACC + i, 64 * i))
    e("s_mov_b64 s[52:53], exec")
    e("s_mov_b32 exec_lo, -1")
    e("s_mov_b32 exec_hi, 0")
    for sg in (1, 2, 3):
        qb = 128 + 128 * sg
        for i in range(4):
            e("ds_write_b32 v13, v%d offset:%d" % (ACC + 4 * sg + i, qb * 4 + 64 * i))
    e("s_mov_b32 s54, 0")
    e("s_mov_b32 s55, 0xffff")
    e("s_mov_b64 exec, s[54:55]")
    e("ds_write_b32 v13, v%d offset:%d" % (ACC + 12, 512 * 4))
    e("s_mov_b64 exec, s[52:53]")
    e("s_waitcnt lgkmcnt(0)")
    e("s_barrier")
    srd(e, 24, 4, 5, WS_K, D * KCH)
    e("s_mul_i32 s21, s20, %d" % KCH)
    e("s_mov_b32 s56, 0x7fff")
    e("v_lshlrev_b32 v8, 3, v0")
    for jj in range(8):
        e("v_add_u32 v9, %d, v8" % jj)
        e("v_cvt_f32_u32 v10, v9")
        e("v_bfe_u32 v11, v10, 16, 1")
        e("v_add3_u32 v10, v10, v11, s56")
        e("v_lshrrev_b32 v10, 16, v10")
        e("v_subrev_u32 v10, 0x%x, v10" % (0x4380 - 256))
        e("v_cmp_gt_u32 vcc, 0x100, v9")
        e.nop(2)
        e("v_cndmask_b32 v10, v10, v9, vcc")
        e("v_lshlrev_b32 v%d, 2, v10" % (16 + jj))
    for jj in range(8):
        for w in range(4):
            e("ds_read_b32 v%d, v%d offset:%d" % (32 + 4 * jj + w, 16 + jj, w * 64 * 288))
    e("s_waitcnt lgkmcnt(0)")
    for jj in range(8):
        b = 32 + 4 * jj
        e("v_add_f32 v%d, v%d, v%d" % (b, b, b + 1))
        e("v_add_f32 v%d, v%d, v%d" % (b + 2, b + 2, b + 3))
        e("v_add_f32 v%d, v%d, v%d" % (b, b, b + 2))
        e("v_add_f32 v%d, v%d, v%d" % (b, b, b))
    for p in range(4):
        a0 = 32 + 8 * p
        a1 = a0 + 4
        e("v_cvt_pk_bf16_f32 v%d, v%d, v%d" % (64 + p, a0, a1))
        e("v_lshlrev_b32 v9, 16, v%d" % (64 + p))
        e("v_and_b32 v10, s47, v%d" % (64 + p))
        e("v_sub_f32 v9, v%d, v9" % a0)
        e("v_sub_f32 v10, v%d, v10" % a1)
        e("v_cvt_pk_bf16_f32 v%d, v9, v10" % (68 + p))
    e("v_lshrrev_b32 v9, 2, v0")
    e("v_mul_u32_u24 v9, 96, v9")
    e("v_and_b32 v10, 3, v0")
    e("v_lshl_add_u32 v9, v10, 4, v9")
    e("buffer_store_dwordx4 v[64:67], v9, s[24:27], s21 offen offset:%d" % (16 * 96))
    e("s_add_u32 s22, s21, %d" % (KCH // 2))
    e("buffer_store_dwordx4 v[68:71], v9, s[24:27], s22 offen offset:%d" % (16 * 96))
    for i in range(4):
        e("v_mov_b32 v%d, 0" % (72 + i))
    e("v_lshlrev_b32 v9, 4, v0")
    e("v_cmp_gt_u32 vcc, 96, v0")
    e("s_and_saveexec_b64 s[52:53], vcc")
    e("s_cbranch_execz K1_KG_Z1")
    e("buffer_store_dwordx4 v[72:75], v9, s[24:27], s21 offen")
    e("buffer_store_dwordx4 v[72:75], v9, s[24:27], s22 offen")
    e.label("K1_KG_Z1")
    e("s_mov_b64 exec, s[52:53]")
    e.label("K1_END")
    e("s_endpgm")
    return kernel_desc(name, 192)


def main():
    out = []
    hdr = open("cdna_kernels/%s.s.ref" % NAME).read().split("\n")
    for ln in hdr:
        if ln.startswith("; @launch") or not ln.startswith(";"):
            break
        out.append(ln)
    launches = []
    e = E()
    descs = []
    import gen_rest
    descs.append(gen_k1(e))
    launches.append(("k1_kernel", K1_GRID, 256, K1_LDS))
    for (nm, fn, grid, blk, lds) in gen_rest.kernels():
        descs.append(fn(e))
        launches.append((nm, grid, blk, lds))
    nl = int(sys.argv[1]) if len(sys.argv) > 1 else len(launches)
    for (nm, g, b, l) in launches[:nl]:
        out.append("; @launch kernel=%s grid=(%d,1,1) block=(%d,1,1) lds=%d" % (nm, g, b, l))
    out.append('.amdgcn_target "amdgcn-amd-amdhsa--gfx950"')
    txt = "\n".join(out) + "\n" + e.text() + "".join(descs)
    open("cdna_kernels/%s.s" % NAME, "w").write(txt)
    print("written", len(txt), "bytes")


if __name__ == "__main__":
    main()
```

```python
from gen import *

K2_CONV = 224
K2_GRID = 256
UC_STRIDE = 4160
UC_SZ = 8 * UC_STRIDE
CH_SZ = UC_SZ + KCH
K2_LDS = max(2 * CH_SZ + 20480, 8 * 64 * 192)


def gen_k2(e):
    name = "k2_kernel"
    kernel_header(e, name)
    e("s_cmp_ge_u32 s2, %d" % K2_GRID)
    e("s_cbranch_scc1 K2_EXIT")
    e("s_load_dwordx2 s[4:5], s[0:1], 112")
    e("s_load_dwordx2 s[6:7], s[0:1], 48")
    e("v_lshrrev_b32 v1, 6, v0")
    e("v_and_b32 v2, 63, v0")
    e("s_nop 0")
    e("v_readfirstlane_b32 s3, v1")
    e("s_cmp_ge_u32 s2, %d" % K2_CONV)
    e("s_cbranch_scc1 K2_PACK")
    e("s_waitcnt lgkmcnt(0)")
    stamp_init(e, 62)
    stamp(e, 62)
    srd(e, 8, 4, 5, WS_UT, TSZ)
    srd(e, 12, 4, 5, WS_K, D * KQS)
    srd(e, 16, 4, 5, WS_XT, TSZ)
    srd(e, 20, 4, 5, WS_HT, TSZ)
    srd(e, 24, 6, 7, 0, D * 2)
    e("s_lshl_b32 s28, s2, 1")
    e("s_mov_b32 s47, 0xffff0000")
    e("v_lshrrev_b32 v3, 8, v0")
    e("v_and_b32 v4, 255, v0")
    e("v_lshlrev_b32 v5, 12, v3")
    e("v_lshl_add_u32 v5, v4, 4, v5")
    e("s_lshl_b32 s29, s28, 12")
    e("buffer_load_dwordx4 v[8:11], v5, s[8:11], s29 offen")
    e("buffer_load_dwordx4 v[12:15], v5, s[8:11], s29 offen offset:16")
    KQ = 2 * CH_SZ
    e("s_mul_i32 s30, s28, %d" % KQS)
    e("v_lshlrev_b32 v6, 4, v0")
    e("v_cmp_gt_u32 vcc, 384, v0")
    e("s_and_saveexec_b64 s[34:35], vcc")
    e("s_cbranch_execz K2_P2A")
    e("buffer_load_dwordx4 v[32:35], v6, s[12:15], s30 offen")
    e.label("K2_P2A")
    e("s_mov_b64 exec, s[34:35]")
    e("s_mov_b32 s56, 0x7fff")
    e("v_lshlrev_b32 v36, 3, v4")
    for jj in range(8):
        e("v_add_u32 v%d, %d, v36" % (40 + jj, jj))
    for jj in range(8):
        e("v_cvt_f32_u32 v%d, v%d" % (48 + jj, 40 + jj))
    for jj in range(8):
        e("v_bfe_u32 v%d, v%d, 16, 1" % (64 + jj, 48 + jj))
    for jj in range(8):
        e("v_add3_u32 v%d, v%d, v%d, s56" % (48 + jj, 48 + jj, 64 + jj))
    for jj in range(8):
        e("v_lshrrev_b32 v%d, 16, v%d" % (48 + jj, 48 + jj))
    for jj in range(8):
        e("v_subrev_u32 v%d, 0x%x, v%d" % (48 + jj, 0x4380 - 256, 48 + jj))
    e("v_cmp_gt_u32 vcc, 32, v4")
    e("s_and_saveexec_b64 s[34:35], vcc")
    for jj in range(8):
        e("v_mov_b32 v%d, v%d" % (48 + jj, 40 + jj))
    e("s_mov_b64 exec, s[34:35]")
    e("v_mul_u32_u24 v36, %d, v3" % KQS)
    e("v_add_u32 v36, %d, v36" % KQ)
    for jj in range(8):
        e("v_lshl_add_u32 v%d, v%d, 2, v36" % (48 + jj, 48 + jj))
    e("s_mov_b32 s36, %d" % CH_SZ)
    e("v_mul_lo_u32 v7, v3, s36")
    e("v_lshl_add_u32 v7, v4, 4, v7")
    e("v_add_u32 v37, %d, v6" % KQ)
    e("s_waitcnt vmcnt(0)")
    e("v_cmp_gt_u32 vcc, 384, v0")
    e("s_and_saveexec_b64 s[34:35], vcc")
    e("ds_write_b128 v37, v[32:35]")
    e("s_mov_b64 exec, s[34:35]")
    e("v_cmp_eq_u32 vcc, 255, v4")
    e.nop(1)
    for i in range(4):
        e("v_cndmask_b32 v%d, v%d, 0, vcc" % (12 + i, 12 + i))
    W = 8
    e("ds_write_b128 v7, v[8:11] offset:0")
    for phi in range(1, 8):
        q = phi >> 1
        if phi & 1:
            for i in range(4):
                e("v_alignbit_b32 v%d, v%d, v%d, 16" % (16 + 4 * (phi & 3) + i, W + q + i + 1, W + q + i))
            e("ds_write_b128 v7, %s offset:%d" % (vr(16 + 4 * (phi & 3), 4), phi * UC_STRIDE))
        elif q % 2 == 0:
            e("ds_write_b128 v7, %s offset:%d" % (vr(W + q, 4), phi * UC_STRIDE))
        else:
            for i in range(4):
                e("v_mov_b32 v%d, v%d" % (16 + 4 * (phi & 3) + i, W + q + i))
            e("ds_write_b128 v7, %s offset:%d" % (vr(16 + 4 * (phi & 3), 4), phi * UC_STRIDE))
    for i in range(4):
        e("v_mov_b32 v%d, 0" % (56 + i))
    e("v_lshrrev_b32 v60, 2, v4")
    e("v_mul_u32_u24 v60, %d, v60" % UC_STRIDE)
    e("v_and_b32 v61, 3, v4")
    e("v_lshl_add_u32 v60, v61, 4, v60")
    e("v_mul_lo_u32 v61, v3, s36")
    e("v_add_u32 v60, v60, v61")
    e("v_cmp_gt_u32 vcc, 32, v4")
    e("s_and_saveexec_b64 s[34:35], vcc")
    e("ds_write_b128 v60, v[56:59] offset:4096")
    e("s_mov_b64 exec, s[34:35]")
    e("v_lshlrev_b32 v60, 4, v4")
    e("v_add_u32 v60, v60, v61")
    e("v_cmp_gt_u32 vcc, 96, v4")
    e("s_and_saveexec_b64 s[34:35], vcc")
    e("ds_write_b128 v60, v[56:59] offset:%d" % UC_SZ)
    e("ds_write_b128 v60, v[56:59] offset:%d" % (UC_SZ + KCH // 2))
    e("s_mov_b64 exec, s[34:35]")
    stamp(e, 62)
    e("s_waitcnt lgkmcnt(0)")
    e("s_barrier")
    for jj in range(8):
        e("ds_read_b32 v%d, v%d" % (40 + jj, 48 + jj))
    e("v_lshrrev_b32 v60, 2, v4")
    e("v_mul_u32_u24 v60, 96, v60")
    e("v_and_b32 v36, 3, v4")
    e("v_lshl_add_u32 v60, v36, 4, v60")
    e("v_add_u32 v60, v60, v61")
    e("s_mov_b32 s57, 0x0000bf80")
    e("s_mov_b32 s58, 0xbf800000")
    e("s_waitcnt lgkmcnt(0)")
    for p in range(4):
        e("v_cvt_pk_bf16_f32 v%d, v%d, v%d" % (32 + p, 40 + 2 * p, 41 + 2 * p))
    for p in range(4):
        e("v_dot2_f32_bf16 v%d, v%d, s57, v%d" % (48 + 2 * p, 32 + p, 40 + 2 * p))
        e("v_dot2_f32_bf16 v%d, v%d, s58, v%d" % (49 + 2 * p, 32 + p, 41 + 2 * p))
    e("ds_write_b128 v60, v[32:35] offset:%d" % (UC_SZ + 16 * 96))
    e.nop(2)
    for p in range(4):
        e("v_cvt_pk_bf16_f32 v%d, v%d, v%d" % (36 + p, 48 + 2 * p, 49 + 2 * p))
    e("ds_write_b128 v60, v[36:39] offset:%d" % (UC_SZ + 16 * 96 + KCH // 2))
    e("s_lshr_b32 s37, s3, 2")
    e("s_and_b32 s48, s3, 3")
    e("s_sub_u32 s38, 3, s48")
    e("s_mul_i32 s52, s48, 20")
    e("s_mov_b32 s43, 5")
    e("s_mov_b32 s51, 3")
    e("s_cmp_eq_u32 s48, 2")
    e("s_cselect_b32 s43, 2, s43")
    e("s_cmp_eq_u32 s48, 3")
    e("s_cselect_b32 s43, 4, s43")
    e("s_cselect_b32 s51, 1, s51")
    e("s_cselect_b32 s52, 0, s52")
    e("s_mul_i32 s40, s37, %d" % CH_SZ)
    e("v_and_b32 v3, 15, v2")
    e("v_lshrrev_b32 v4, 4, v2")
    e("v_and_b32 v5, 7, v3")
    e("v_sub_u32 v5, 7, v5")
    e("v_mul_u32_u24 v5, %d, v5" % UC_STRIDE)
    e("v_lshrrev_b32 v6, 3, v3")
    e("v_sub_u32 v6, v4, v6")
    e("v_lshl_add_u32 v5, v6, 4, v5")
    e("s_add_u32 s41, s40, %d" % (255 * 16 - 32 - 7 * 64))
    e("v_add_u32 v60, s41, v5")
    e("v_mul_u32_u24 v6, 96, v3")
    e("v_lshl_add_u32 v6, v4, 4, v6")
    e("s_add_u32 s42, s40, %d" % (UC_SZ + 16 * 96 - 7 * 96 - 16 * 96))
    e("v_add_u32 v61, s42, v6")
    e("s_lshl_b32 s55, s52, 6")
    e("v_subrev_u32 v5, s55, v60")
    e("s_mul_i32 s55, s51, %d" % (16 * 96))
    e("s_mul_i32 s56, s52, 96")
    e("s_sub_u32 s55, s55, s56")
    e("v_add_u32 v6, s55, v61")
    e("s_mul_i32 s55, s37, 10240")
    e("s_add_u32 s55, s55, %d" % (2 * CH_SZ))
    e("v_lshlrev_b32 v178, 4, v2")
    e("v_add_u32 v178, s55, v178")
    e("s_add_u32 s44, s28, s37")
    e("s_lshl_b32 s45, s44, 1")
    e("v_mov_b32 v176, 0")
    e("buffer_load_ushort v176, v176, s[24:27], s45 offen")
    e("v_lshlrev_b32 v8, 5, v3")
    e("v_lshl_add_u32 v8, v4, 2, v8")
    e("s_lshl_b32 s46, s38, 9")
    e("v_add_u32 v8, s46, v8")
    e("v_lshlrev_b32 v177, 1, v8")
    e("s_lshl_b32 s45, s44, 12")
    e("buffer_load_dwordx2 v[10:11], v177, s[16:19], s45 offen")
    e("buffer_load_dwordx2 v[12:13], v177, s[16:19], s45 offen offset:32")
    ACC = 16
    ACQ = 160
    for i in range(8):
        e("v_mov_b32 v%d, 0" % (ACC + i))
        e("v_mov_b32 v%d, 0" % (ACQ + i))
    e("s_waitcnt lgkmcnt(0)")
    e("s_barrier")
    stamp(e, 62)

    FR = [64, 88, 112, 136]

    def issue(i, joint):
        if "k2nord" in OPTS: return
        b = FR[i & 3]
        e("ds_read_b128 %s, v5 offset:%d" % (vr(b, 4), 448 - 64 * i + 32))
        e("ds_read_b128 %s, v6 offset:%d" % (vr(b + 8, 4), 1536 + 672 - 96 * i))
        e("ds_read_b128 %s, v5 offset:%d" % (vr(b + 4, 4), 448 - 64 * i))
        e("ds_read_b128 %s, v6 offset:%d" % (vr(b + 12, 4), 1536 + 672 - 96 * i + KCH // 2))
        if joint:
            e("ds_read_b128 %s, v6 offset:%d" % (vr(b + 16, 4), 672 - 96 * i))
            e("ds_read_b128 %s, v6 offset:%d" % (vr(b + 20, 4), 672 - 96 * i + KCH // 2))

    def mm(i, joint):
        if "k2nomm" in OPTS: return
        b = FR[i & 3]
        a0, a1 = vr(ACC, 4), vr(ACC + 4, 4)
        q0, q1 = vr(ACQ, 4), vr(ACQ + 4, 4)
        e("v_mfma_f32_16x16x32_bf16 %s, %s, %s, %s" % (a0, vr(b, 4), vr(b + 8, 4), a0))
        e("v_mfma_f32_16x16x32_bf16 %s, %s, %s, %s" % (a1, vr(b + 4, 4), vr(b + 8, 4), a1))
        if joint:
            e("v_mfma_f32_16x16x32_bf16 %s, %s, %s, %s" % (q0, vr(b, 4), vr(b + 16, 4), q0))
            e("v_mfma_f32_16x16x32_bf16 %s, %s, %s, %s" % (q1, vr(b + 4, 4), vr(b + 16, 4), q1))
        e("v_mfma_f32_16x16x32_bf16 %s, %s, %s, %s" % (a0, vr(b, 4), vr(b + 12, 4), a0))
        e("v_mfma_f32_16x16x32_bf16 %s, %s, %s, %s" % (a1, vr(b + 4, 4), vr(b + 12, 4), a1))
        if joint:
            e("v_mfma_f32_16x16x32_bf16 %s, %s, %s, %s" % (q0, vr(b, 4), vr(b + 20, 4), q0))
            e("v_mfma_f32_16x16x32_bf16 %s, %s, %s, %s" % (q1, vr(b + 4, 4), vr(b + 20, 4), q1))

    def seg_loop(tag, joint):
        n = 6 if joint else 4
        issue(0, joint); issue(1, joint)
        e("s_sub_u32 s43, s43, 1")
        e.label("K2_LOOP%s" % tag)
        for i in range(4):
            issue(i + 2, joint)
            e("s_waitcnt lgkmcnt(%d)" % (2 * n))
            mm(i, joint)
        e("v_subrev_u32 v5, 256, v5")
        e("v_subrev_u32 v6, 384, v6")
        e("s_sub_u32 s43, s43, 1")
        e("s_cmp_lg_u32 s43, 0")
        e("s_cbranch_scc1 K2_LOOP%s" % tag)
        for i in range(4):
            if i < 2:
                issue(i + 2, joint)
            e("s_waitcnt lgkmcnt(%d)" % (n * min(2, 3 - i)))
            mm(i, joint)
        e("v_subrev_u32 v5, 256, v5")
        e("v_subrev_u32 v6, 384, v6")

    def wr(acc, slot):
        e("ds_write_b128 v178, %s offset:%d" % (vr(acc, 4), slot * 2048))
        e("ds_write_b128 v178, %s offset:%d" % (vr(acc + 4, 4), slot * 2048 + 1024))

    def rd_add(slots):
        for k, sl in enumerate(slots):
            e("ds_read_b128 %s, v178 offset:%d" % (vr(64 + 8 * k, 4), sl * 2048))
            e("ds_read_b128 %s, v178 offset:%d" % (vr(68 + 8 * k, 4), sl * 2048 + 1024))
        e("s_waitcnt lgkmcnt(0)")
        for k in range(len(slots)):
            for i in range(8):
                e("v_add_f32 v%d, v%d, v%d" % (ACC + i, ACC + i, 64 + 8 * k + i))

    seg_loop("J", True)
    e("s_cmp_ge_u32 s48, 2")
    e("s_cbranch_scc1 K2_CD")
    e.nop(8)
    e("s_cmp_eq_u32 s48, 1")
    e("s_cbranch_scc1 K2_B")
    wr(ACQ, 0)
    e("s_waitcnt lgkmcnt(0)")
    e("s_barrier")
    rd_add([1, 2])
    e("s_branch K2_EPI")
    e.label("K2_B")
    wr(ACC, 1)
    for i in range(8):
        e("v_mov_b32 v%d, v%d" % (ACC + i, ACQ + i))
    e("s_waitcnt lgkmcnt(0)")
    e("s_barrier")
    rd_add([0, 3])
    e("s_branch K2_EPI")
    e.label("K2_CD")
    e("s_mov_b32 s43, 4")
    e("s_cmp_eq_u32 s48, 2")
    e("s_cbranch_scc1 K2_C1")
    e("s_mov_b32 s43, 2")
    e("v_subrev_u32 v5, 512, v5")
    e("v_subrev_u32 v6, 768, v6")
    e.label("K2_C1")
    seg_loop("S1", False)
    e.nop(8)
    e("s_cmp_eq_u32 s48, 2")
    e("s_cbranch_scc1 K2_C2")
    wr(ACC, 4)
    for i in range(8):
        e("v_mov_b32 v%d, v%d" % (ACC + i, ACQ + i))
    e("s_waitcnt lgkmcnt(0)")
    e("s_barrier")
    e("s_branch K2_EPI")
    e.label("K2_C2")
    wr(ACC, 2)
    wr(ACQ, 3)
    for i in range(8):
        e("v_mov_b32 v%d, 0" % (ACC + i))
    e("v_subrev_u32 v5, %d, v60" % (16 * 64))
    e("v_add_u32 v6, %d, v61" % (16 * 96 - 16 * 96))
    e("s_mov_b32 s43, 2")
    seg_loop("S2", False)
    e("s_barrier")
    rd_add([4])
    e.label("K2_EPI")
    stamp(e, 62)
    e("v_mov_b32 v9, v177")
    e("v_sub_u32 v14, %d, v9" % (2 * 2028))
    e("v_add_u32 v14, s40, v14")
    e("ds_read_b64 v[24:25], v14 offset:32")
    e("ds_read_b64 v[26:27], v14")
    e("s_waitcnt vmcnt(0) lgkmcnt(0)")
    e("v_lshlrev_b32 v7, 16, v176")
    for T in range(2):
        A = ACC + 4 * T
        U = 24 + 2 * T
        Xr = 10 + 2 * T
        e("v_and_b32 v32, s47, v%d" % (U + 1))
        e("v_lshlrev_b32 v33, 16, v%d" % (U + 1))
        e("v_and_b32 v34, s47, v%d" % U)
        e("v_lshlrev_b32 v35, 16, v%d" % U)
        for i in range(4):
            e("v_mul_f32 v%d, v%d, v7" % (32 + i, 32 + i))
        e("v_cvt_pk_bf16_f32 v36, v32, v33")
        e("v_cvt_pk_bf16_f32 v37, v34, v35")
        e("v_cvt_pk_bf16_f32 v38, v%d, v%d" % (A, A + 1))
        e("v_cvt_pk_bf16_f32 v39, v%d, v%d" % (A + 2, A + 3))
        e("v_lshlrev_b32 v32, 16, v36")
        e("v_and_b32 v33, s47, v36")
        e("v_lshlrev_b32 v34, 16, v37")
        e("v_and_b32 v35, s47, v37")
        e("v_lshlrev_b32 v40, 16, v38")
        e("v_and_b32 v41, s47, v38")
        e("v_lshlrev_b32 v42, 16, v39")
        e("v_and_b32 v43, s47, v39")
        for i in range(4):
            e("v_add_f32 v%d, v%d, v%d" % (32 + i, 32 + i, 40 + i))
        e("v_cvt_pk_bf16_f32 v36, v32, v33")
        e("v_cvt_pk_bf16_f32 v37, v34, v35")
        e("v_lshlrev_b32 v32, 16, v36")
        e("v_and_b32 v33, s47, v36")
        e("v_lshlrev_b32 v34, 16, v37")
        e("v_and_b32 v35, s47, v37")
        e("v_lshlrev_b32 v40, 16, v%d" % Xr)
        e("v_and_b32 v41, s47, v%d" % Xr)
        e("v_lshlrev_b32 v42, 16, v%d" % (Xr + 1))
        e("v_and_b32 v43, s47, v%d" % (Xr + 1))
        for i in range(4):
            e("v_add_f32 v%d, v%d, v%d" % (32 + i, 32 + i, 40 + i))
        e("v_cvt_pk_bf16_f32 v%d, v32, v33" % (44 + 2 * T))
        e("v_cvt_pk_bf16_f32 v%d, v34, v35" % (45 + 2 * T))
        e("buffer_store_dwordx2 %s, v9, s[20:23], s45 offen offset:%d" % (vr(44 + 2 * T, 2), 32 * T))
    if "stamp" in OPTS:
        e("s_waitcnt vmcnt(0)")
        stamp(e, 62)
    endpgm(e, 1)
    e.label("K2_PACK")
    if "nopk" in OPTS: e("s_branch K2_END")
    e("s_load_dwordx2 s[8:9], s[0:1], 64")
    e("s_load_dwordx2 s[10:11], s[0:1], 80")
    e("s_sub_u32 s20, s2, %d" % K2_CONV)
    e("s_lshl_b32 s20, s20, 3")
    e("s_add_u32 s20, s20, s3")
    e("s_waitcnt lgkmcnt(0)")
    srd(e, 12, 4, 5, WS_WP, 2 * W1P_SZ)
    srd(e, 24, 8, 9, 0, D * F * 2)
    srd(e, 28, 10, 11, 0, D * F * 2)
    PRS = 192
    e("v_lshrrev_b32 v3, 3, v2")
    e("v_and_b32 v4, 7, v2")
    e("v_lshlrev_b32 v5, 4, v4")
    e("s_mov_b32 s21, 3584")
    e("v_mul_lo_u32 v6, v3, s21")
    e("v_add_u32 v6, v6, v5")
    e("v_mul_u32_u24 v7, 896, v3")
    e("v_add_u32 v7, v7, v5")
    e("s_mul_i32 s22, s3, %d" % (64 * PRS))
    e("v_mul_u32_u24 v8, %d, v3" % PRS)
    e("v_add_u32 v8, v8, v5")
    e("v_add_u32 v8, s22, v8")
    e("v_and_b32 v9, 15, v2")
    e("v_lshrrev_b32 v10, 2, v9")
    e("v_lshrrev_b32 v11, 5, v2")
    e("v_lshl_add_u32 v10, v11, 3, v10")
    e("v_mul_u32_u24 v10, %d, v10" % PRS)
    e("v_and_b32 v11, 3, v9")
    e("v_lshl_add_u32 v10, v11, 3, v10")
    e("v_bfe_u32 v11, v2, 4, 1")
    e("v_lshl_add_u32 v10, v11, 5, v10")
    e("v_add_u32 v10, s22, v10")
    e("v_lshrrev_b32 v11, 5, v2")
    e("v_mul_u32_u24 v11, %d, v11" % (4 * PRS))
    e("v_sub_u32 v12, v10, v11")
    e("v_lshlrev_b32 v11, 4, v2")
    e("s_cmp_ge_u32 s20, 196")
    e("s_cbranch_scc1 K2_PKA2")
    e("s_mul_hi_u32 s32, s20, 0x%x" % ((2**32 + 27) // 28))
    e("s_mul_i32 s33, s32, 28")
    e("s_sub_u32 s33, s20, s33")
    e("s_mul_i32 s34, s32, %d" % (64 * 3584))
    e("s_lshl_b32 s35, s33, 7")
    e("s_add_u32 s34, s34, s35")
    for i in range(8):
        e("buffer_load_dwordx4 %s, v6, s[24:27], s34 offen" % vr(16 + 4 * i, 4))
        e("s_add_u32 s34, s34, %d" % (8 * 3584))
    e("s_mul_i32 s36, s33, %d" % (2 * 28 * 1024))
    e("s_lshl_b32 s37, s32, 12")
    e("s_add_u32 s36, s36, s37")
    e("s_mov_b32 s38, %d" % (28 * 1024))
    e("v_mov_b32 v13, v10")
    e("s_mov_b32 s39, %d" % (4 * PRS))
    e("s_branch K2_PKA3")
    e.label("K2_PKA2")
    e("s_sub_u32 s41, s20, 196")
    e("s_mul_hi_u32 s32, s41, 0x%x" % ((2**32 + 6) // 7))
    e("s_mul_i32 s33, s32, 7")
    e("s_sub_u32 s33, s41, s33")
    e("v_mov_b32 v13, v12")
    e("s_mov_b32 s39, %d" % (8 * PRS))
    e("s_mul_i32 s34, s32, %d" % (64 * 896))
    e("s_lshl_b32 s35, s33, 7")
    e("s_add_u32 s34, s34, s35")
    for i in range(8):
        e("buffer_load_dwordx4 %s, v7, s[28:31], s34 offen" % vr(16 + 4 * i, 4))
        e("s_add_u32 s34, s34, %d" % (8 * 896))
    e("s_mul_i32 s36, s33, %d" % (2 * 112 * 1024))
    e("s_lshl_b32 s37, s32, 12")
    e("s_add_u32 s36, s36, s37")
    e("s_add_u32 s36, s36, %d" % W1P_SZ)
    e("s_mov_b32 s38, %d" % (112 * 1024))
    e.label("K2_PKA3")
    e("s_cmp_ge_u32 s20, 136")
    e("s_cbranch_scc1 K2_PKB0")
    e("s_add_u32 s41, s20, 60")
    e("s_mul_hi_u32 s32, s41, 0x%x" % ((2**32 + 6) // 7))
    e("s_mul_i32 s33, s32, 7")
    e("s_sub_u32 s33, s41, s33")
    e("s_mul_i32 s34, s32, %d" % (64 * 896))
    e("s_lshl_b32 s35, s33, 7")
    e("s_add_u32 s34, s34, s35")
    for i in range(8):
        e("buffer_load_dwordx4 %s, v7, s[28:31], s34 offen" % vr(48 + 4 * i, 4))
        e("s_add_u32 s34, s34, %d" % (8 * 896))
    e("s_mul_i32 s40, s33, %d" % (2 * 112 * 1024))
    e("s_lshl_b32 s37, s32, 12")
    e("s_add_u32 s40, s40, s37")
    e("s_add_u32 s40, s40, %d" % W1P_SZ)
    e("s_waitcnt vmcnt(8)")
    e("s_branch K2_PKB1")
    e.label("K2_PKB0")
    e("s_waitcnt vmcnt(0)")
    e.label("K2_PKB1")

    def pack_unit(src, sdst, scs, va, vb):
        for i in range(8):
            e("ds_write_b128 v8, %s offset:%d" % (vr(src + 4 * i, 4), i * 8 * PRS))
        for c in range(2):
            for j in range(4):
                b = 80 + 4 * (4 * c + j)
                o = j * 16 * PRS + 64 * c
                e("ds_read_b64_tr_b16 %s, v%d offset:%d" % (vr(b, 2), va, o))
                e("ds_read_b64_tr_b16 %s, v%d offset:%d" % (vr(b + 2, 2), vb, o))
        for c in range(2):
            for j in range(4):
                b = 80 + 4 * (4 * c + j)
                e("s_waitcnt lgkmcnt(%d)" % (14 - 2 * (4 * c + j)))
                e("buffer_store_dwordx4 %s, v11, s[12:15], s%d offen offset:%d" % (vr(b, 4), sdst, j * 1024))
            if c == 0:
                e("s_add_u32 s%d, s%d, %s" % (sdst, sdst, scs))

    e("v_add_u32 v14, s39, v13")
    e("v_add_u32 v15, %d, v12" % (8 * PRS))
    pack_unit(16, 36, "s38", 13, 14)
    e("s_cmp_ge_u32 s20, 136")
    e("s_cbranch_scc1 K2_END")
    e("s_waitcnt vmcnt(8)")
    e("s_waitcnt vmcnt(0)")
    pack_unit(48, 40, "%d" % (112 * 1024), 12, 15)
    e.label("K2_END")
    endpgm(e, 1)
    e.label("K2_EXIT")
    e("s_endpgm")
    WGT_IDX[0] += 1
    return kernel_desc(name, 184)


K3_GRID = 224
A_RS = 192
AT = 2048
K3_LDS = AT + 448 * A_RS


def gen_k3(e):
    name = "k3_kernel"
    kernel_header(e, name)
    e("s_cmp_ge_u32 s2, %d" % K3_GRID)
    e("s_cbranch_scc1 K3_EXIT")
    e("s_load_dwordx2 s[4:5], s[0:1], 112")
    e("s_load_dwordx2 s[6:7], s[0:1], 72")
    e("v_lshrrev_b32 v1, 6, v0")
    e("v_and_b32 v2, 63, v0")
    e("s_nop 0")
    e("v_readfirstlane_b32 s3, v1")
    e("s_waitcnt lgkmcnt(0)")
    stamp_init(e, 0)
    stamp(e, 0)
    srd(e, 8, 4, 5, WS_HT, TSZ)
    srd(e, 12, 4, 5, WS_WP, W1P_SZ)
    srd(e, 16, 4, 5, WS_H1, 64 * 112 * 1024)
    srd(e, 20, 6, 7, 0, F * 2)
    e("s_and_b32 s24, s2, 31")
    e("s_lshr_b32 s25, s2, 5")
    e("s_lshl_b32 s26, s25, 3")
    e("s_add_u32 s26, s26, s3")
    e("s_mov_b32 s47, 0xffff0000")
    e("v_lshrrev_b32 v3, 3, v2")
    e("v_and_b32 v4, 7, v2")
    e("v_lshlrev_b32 v5, 12, v3")
    e("v_lshl_add_u32 v5, v4, 4, v5")
    e("s_lshl_b32 s27, s3, 15")
    e("s_lshl_b32 s28, s24, 7")
    e("s_add_u32 s27, s27, s28")
    HR = 8
    for i in range(7):
        e("buffer_load_dwordx4 %s, v5, s[8:11], s27 offen" % vr(HR + 4 * i, 4))
        e("s_add_u32 s27, s27, 0x%x" % (64 * 4096))
    WF = 144
    e("v_lshlrev_b32 v6, 4, v2")
    e("s_mul_i32 s29, s26, %d" % (28 * 1024))
    e("v_lshrrev_b32 v7, 5, v2")
    e("v_lshlrev_b32 v7, 3, v7")
    e("s_lshl_b32 s30, s26, 6")
    pl = []
    for s in range(28):
        it = []
        if s % 4 == 0 and s > 0:
            it.append("s_add_u32 s29, s29, 4096")
        it.append("buffer_load_dwordx4 %s, v6, s[12:15], s29 offen offset:%d" % (vr(WF + 4 * s, 4), (s % 4) * 1024))
        pl.append(it)
    for q in range(4):
        pl.append(["buffer_load_dwordx2 %s, v7, s[20:23], s30 offen offset:%d" % (vr(136 + 2 * q, 2), 16 * q)])

    def pend(n):
        for _ in range(n):
            if pl:
                for x in pl.pop(0):
                    e(x)
    e("v_mul_u32_u24 v57, %d, v3" % A_RS)
    e("v_lshl_add_u32 v57, v4, 4, v57")
    e("s_mul_i32 s38, s3, %d" % (8 * A_RS))
    e("s_add_u32 s38, s38, %d" % AT)
    e("v_add_u32 v57, s38, v57")
    e("v_add_u32 v62, %d, v57" % (4 * 64 * A_RS))
    e("v_and_b32 v58, 15, v2")
    e("v_lshrrev_b32 v59, 2, v58")
    e("v_lshrrev_b32 v60, 5, v2")
    e("v_lshl_add_u32 v59, v60, 3, v59")
    e("v_mul_u32_u24 v59, %d, v59" % A_RS)
    e("v_and_b32 v60, 3, v58")
    e("v_lshl_add_u32 v59, v60, 3, v59")
    e("v_bfe_u32 v60, v2, 4, 1")
    e("v_lshl_add_u32 v59, v60, 5, v59")
    e("s_and_b32 s31, s3, 1")
    e("s_lshr_b32 s32, s3, 1")
    e("s_lshl_b32 s33, s31, 6")
    e("s_mul_i32 s34, s32, %d" % (16 * A_RS))
    e("s_add_u32 s33, s33, s34")
    e("s_add_u32 s33, s33, %d" % AT)
    e("v_add_u32 v59, s33, v59")
    e("v_add_u32 v61, %d, v59" % (4 * 4 * 16 * A_RS))
    e("s_mul_i32 s35, s31, %d" % (28 * 1024))
    e("s_lshl_b32 s36, s32, 10")
    e("s_add_u32 s35, s35, s36")
    e("s_add_u32 s35, s35, %d" % AT)
    e("v_add_u32 v63, s35, v6")
    e("v_and_b32 v56, 31, v2")
    e("v_lshlrev_b32 v56, 3, v56")
    e("s_lshl_b32 s36, s31, 10")
    e("v_add_u32 v56, s36, v56")
    e("s_lshl_b32 s37, s32, 8")
    e("v_add_u32 v55, s37, v56")
    e("s_mov_b32 s40, 0x3f803f80")
    e("s_mov_b32 s41, 0x00003f80")
    e("s_mov_b32 s42, 0x3f800000")
    e("s_waitcnt vmcnt(0)")
    stamp(e, 0)
    for i in range(7):
        e("ds_write_b128 v%d, %s offset:%d" % (57 if i < 4 else 62, vr(HR + 4 * i, 4), (i & 3) * 64 * A_RS))
    pend(4)
    for i in range(4):
        e("v_mov_b32 v%d, 0" % (40 + i))
    e("s_waitcnt lgkmcnt(0)")
    e("s_barrier")
    stamp(e, 0)
    RF = 8
    for j in range(7):
        o = (j & 3) * 4 * 16 * A_RS
        va = 59 if j < 4 else 61
        e("ds_read_b64_tr_b16 %s, v%d offset:%d" % (vr(RF + 4 * j, 2), va, o))
        e("ds_read_b64_tr_b16 %s, v%d offset:%d" % (vr(RF + 4 * j + 2, 2), va, o + 4 * A_RS))
    for j in range(7):
        e("s_waitcnt lgkmcnt(%d)" % (12 - 2 * j))
        pend(1)
        for k in range(4):
            R = RF + 4 * j + k
            if "nodots" in OPTS:
                e("v_lshlrev_b32 v44, 16, v%d" % R)
                e("v_and_b32 v45, s47, v%d" % R)
                e("v_add_f32 v40, v40, v44")
                e("v_add_f32 v41, v41, v45")
                e("v_fmac_f32 v42, v44, v44")
                e("v_fmac_f32 v43, v45, v45")
            else:
                e("v_dot2_f32_bf16 v%d, v%d, s40, v%d" % (40 + (k & 1), R, 40 + (k & 1)))
                e("v_dot2_f32_bf16 v%d, v%d, v%d, v%d" % (42 + (k & 1), R, R, 42 + (k & 1)))
    e.nop(4)
    e("v_add_f32 v40, v40, v41")
    e("v_add_f32 v41, v42, v43")
    e("v_mov_b32 v42, v40")
    e("v_mov_b32 v43, v41")
    e.nop(1)
    e("v_permlane32_swap_b32 v40, v42")
    e("v_permlane32_swap_b32 v41, v43")
    e("v_add_f32 v40, v40, v42")
    e("v_add_f32 v41, v41, v43")
    e("ds_write_b64 v55, v[40:41]")
    e("s_waitcnt lgkmcnt(0)")
    e("s_barrier")
    stamp(e, 0)
    for w in range(4):
        e("ds_read_b64 %s, v56 offset:%d" % (vr(44 + 2 * w, 2), 256 * w))
    e("s_mov_b32 s36, 0x%x" % f32bits(1.0 / 448.0))
    e("s_mov_b32 s37, 0x%x" % f32bits(1e-5))
    e("s_waitcnt lgkmcnt(0)")
    e("v_add_f32 v40, v44, v46")
    e("v_add_f32 v41, v45, v47")
    e("v_add_f32 v42, v48, v50")
    e("v_add_f32 v43, v49, v51")
    e("v_add_f32 v40, v40, v42")
    e("v_add_f32 v41, v41, v43")
    e("v_mul_f32 v40, s36, v40")
    e("v_mul_f32 v41, s36, v41")
    e("v_fma_f32 v41, -v40, v40, v41")
    e("v_max_f32 v41, 0, v41")
    rb1(e, 40, 40)
    rb1(e, 41, 41)
    e("v_add_f32 v41, s37, v41")
    rb1(e, 41, 41)
    e("v_sqrt_f32 v41, v41")
    e("v_sub_f32 v40, 0, v40")
    rb1(e, 41, 41)
    e("v_rcp_f32 v41, v41")
    for j in range(7):
        R = RF + 4 * j
        T = 44 + 8 * (j & 1)
        for k in range(4):
            if "nodotn" in OPTS:
                e("v_lshlrev_b32 v%d, 16, v%d" % (T + 2 * k, R + k))
                e("v_and_b32 v%d, s47, v%d" % (T + 2 * k + 1, R + k))
                e("v_add_f32 v%d, v%d, v40" % (T + 2 * k, T + 2 * k))
                e("v_add_f32 v%d, v%d, v40" % (T + 2 * k + 1, T + 2 * k + 1))
            else:
                e("v_dot2_f32_bf16 v%d, v%d, s41, v40" % (T + 2 * k, R + k))
                e("v_dot2_f32_bf16 v%d, v%d, s42, v40" % (T + 2 * k + 1, R + k))
        pend(1)
        for k in range(4):
            e("v_cvt_pk_bf16_f32 v%d, v%d, v%d" % (R + k, T + 2 * k, T + 2 * k + 1))
        pend(1)
        for k in range(4):
            e("v_lshlrev_b32 v%d, 16, v%d" % (T + 2 * k, R + k))
            e("v_mul_f32 v%d, v%d, v41" % (T + 2 * k, T + 2 * k))
            e("v_and_b32 v%d, s47, v%d" % (T + 2 * k + 1, R + k))
            e("v_mul_f32 v%d, v%d, v41" % (T + 2 * k + 1, T + 2 * k + 1))
        for k in range(4):
            e("v_cvt_pk_bf16_f32 v%d, v%d, v%d" % (R + k, T + 2 * k, T + 2 * k + 1))
        e("ds_write_b128 v63, %s offset:%d" % (vr(R, 4), 4096 * j))
        pend(1)
    ACC = 72
    for i in range(32):
        e("v_mov_b32 v%d, 0" % (ACC + i))
    pend(100)
    e("v_add_u32 v59, %d, v6" % AT)
    e("s_waitcnt lgkmcnt(0)")
    e("s_barrier")
    stamp(e, 0)
    BF = [104, 112, 120]

    def issue(s):
        b = BF[s % 3]
        for t in range(2):
            e("ds_read_b128 %s, v59 offset:%d" % (vr(b + 4 * t, 4), (t * 28 + s) * 1024))

    issue(0)
    issue(1)
    for s in range(28):
        if s + 2 < 28:
            issue(s + 2)
        lg = min(2, 27 - s) * 2
        e("s_waitcnt lgkmcnt(%d) vmcnt(%d)" % (lg, 4 + 27 - s))
        for t in range(2):
            a = vr(ACC + 16 * t, 16)
            e("v_mfma_f32_32x32x16_bf16 %s, %s, %s, %s" % (a, vr(WF + 4 * s, 4), vr(BF[s % 3] + 4 * t, 4), a))
    e("s_waitcnt vmcnt(0)")
    stamp(e, 0)
    for q in range(4):
        e("v_lshlrev_b32 v%d, 16, v%d" % (40 + 4 * q, 136 + 2 * q))
        e("v_and_b32 v%d, s47, v%d" % (41 + 4 * q, 136 + 2 * q))
        e("v_lshlrev_b32 v%d, 16, v%d" % (42 + 4 * q, 137 + 2 * q))
        e("v_and_b32 v%d, s47, v%d" % (43 + 4 * q, 137 + 2 * q))
    BI = 40
    cgel = -2.0 * 0.7978845608028654 * 1.4426950408889634
    e("s_mov_b32 s44, 0x%x" % f32bits(0.044715))
    e("s_mov_b32 s45, 0x%x" % f32bits(cgel))
    e.nop(4)
    e("s_mul_i32 s48, s24, %d" % (2 * 112 * 1024))
    e("s_lshl_b32 s43, s26, 11")
    e("s_add_u32 s48, s48, s43")
    for t in range(2):
        A = ACC + 16 * t
        for hh in range(2):
            ps = range(4 * hh, 4 * hh + 4)
            for p in ps:
                e("v_cvt_pk_bf16_f32 v%d, v%d, v%d" % (24 + (p & 3), A + 2 * p, A + 2 * p + 1))
            for p in ps:
                x = 8 + 2 * (p & 3)
                if "nodote" in OPTS:
                    e("v_lshlrev_b32 v%d, 16, v%d" % (x, 24 + (p & 3)))
                    e("v_and_b32 v%d, s47, v%d" % (x + 1, 24 + (p & 3)))
                    e("v_add_f32 v%d, v%d, v%d" % (x, x, BI + 2 * p))
                    e("v_add_f32 v%d, v%d, v%d" % (x + 1, x + 1, BI + 2 * p + 1))
                else:
                    e("v_dot2_f32_bf16 v%d, v%d, s41, v%d" % (x, 24 + (p & 3), BI + 2 * p))
                    e("v_dot2_f32_bf16 v%d, v%d, s42, v%d" % (x + 1, 24 + (p & 3), BI + 2 * p + 1))
            for p in ps:
                x = 8 + 2 * (p & 3)
                e("v_cvt_pk_bf16_f32 v%d, v%d, v%d" % (24 + (p & 3), x, x + 1))
            for p in ps:
                x = 8 + 2 * (p & 3)
                e("v_lshlrev_b32 v%d, 16, v%d" % (x, 24 + (p & 3)))
                e("v_mul_f32 v%d, v%d, v%d" % (x + 8, x, x))
                e("v_and_b32 v%d, s47, v%d" % (x + 1, 24 + (p & 3)))
                e("v_mul_f32 v%d, v%d, v%d" % (x + 9, x + 1, x + 1))
            for i in range(8):
                e("v_fma_f32 v%d, v%d, s44, 1.0" % (16 + i, 16 + i))
            for i in range(8):
                e("v_mul_f32 v%d, v%d, v%d" % (16 + i, 16 + i, 8 + i))
            for i in range(8):
                e("v_mul_f32 v%d, s45, v%d" % (16 + i, 16 + i))
            for i in range(8):
                e("v_exp_f32 v%d, v%d" % (16 + i, 16 + i))
            for i in range(8):
                e("v_add_f32 v%d, 1.0, v%d" % (16 + i, 16 + i))
            for i in range(8):
                e("v_rcp_f32 v%d, v%d" % (16 + i, 16 + i))
            for i in range(8):
                e("v_mul_f32 v%d, v%d, v%d" % (8 + i, 8 + i, 16 + i))
            for p in ps:
                x = 8 + 2 * (p & 3)
                e("v_cvt_pk_bf16_f32 v%d, v%d, v%d" % (56 + 8 * t + p, x, x + 1))
            e("buffer_store_dwordx4 %s, v6, s[16:19], s48 offen offset:%d" % (vr(56 + 8 * t + 4 * hh, 4), 1024 * hh))
        e("s_add_u32 s48, s48, %d" % (112 * 1024))
    if "stamp" in OPTS:
        e("s_waitcnt vmcnt(0)")
        stamp(e, 0)
    e.label("K3_END")
    endpgm(e, 2)
    e.label("K3_EXIT")
    e("s_endpgm")
    WGT_IDX[0] += 1
    return kernel_desc(name, 256)


K4_GRID = 224
P_RS = 272
P_SZ = 64 * P_RS
H_RS = 192
HT_SZ = 64 * H_RS
K4_LDS = 4 * P_SZ + HT_SZ


def gen_k4(e):
    name = NAME + "_kernel"
    kernel_header(e, name)
    e("s_cmp_ge_u32 s2, %d" % K4_GRID)
    e("s_cbranch_scc1 K4_EXIT")
    e("s_load_dwordx2 s[4:5], s[0:1], 112")
    e("s_load_dwordx2 s[6:7], s[0:1], 88")
    e("s_load_dwordx2 s[44:45], s[0:1], 96")
    e("v_lshrrev_b32 v1, 6, v0")
    e("v_and_b32 v2, 63, v0")
    e("s_nop 0")
    e("v_readfirstlane_b32 s3, v1")
    e("s_waitcnt lgkmcnt(0)")
    stamp_init(e, 194)
    stamp(e, 194)
    srd(e, 8, 4, 5, WS_H1, 64 * 112 * 1024)
    srd(e, 12, 4, 5, WS_WP + W1P_SZ, W1P_SZ)
    srd(e, 16, 4, 5, WS_HT, TSZ)
    srd(e, 20, 6, 7, 0, D * 2)
    srd(e, 24, 44, 45, 0, TSZ)
    e("s_and_b32 s28, s2, 31")
    e("s_lshr_b32 s29, s2, 5")
    e("s_mov_b32 s47, 0xffff0000")
    e("v_lshlrev_b32 v6, 4, v2")
    e("s_mul_i32 s30, s3, %d" % (28 * 1024))
    e("s_mul_i32 s31, s28, %d" % (2 * 112 * 1024))
    e("s_add_u32 s31, s31, s30")
    e("s_add_u32 s32, s31, %d" % (112 * 1024))
    e("s_mul_i32 s33, s29, %d" % (2 * 112 * 1024))
    e("s_add_u32 s33, s33, s30")
    e("s_add_u32 s34, s33, %d" % (112 * 1024))
    RING = 7
    RB = 80

    def ld(s):
        b = RB + 16 * (s % RING)
        o = (s % 4) * 1024
        e("buffer_load_dwordx4 %s, v6, s[12:15], s33 offen offset:%d" % (vr(b, 4), o))
        e("buffer_load_dwordx4 %s, v6, s[8:11], s31 offen offset:%d" % (vr(b + 8, 4), o))
        e("buffer_load_dwordx4 %s, v6, s[12:15], s34 offen offset:%d" % (vr(b + 4, 4), o))
        e("buffer_load_dwordx4 %s, v6, s[8:11], s32 offen offset:%d" % (vr(b + 12, 4), o))
        if s % 4 == 3:
            for r in (31, 32, 33, 34):
                e("s_add_u32 s%d, s%d, 4096" % (r, r))

    e("v_lshrrev_b32 v3, 3, v0")
    e("v_and_b32 v4, 7, v0")
    e("v_lshlrev_b32 v5, 12, v3")
    e("v_lshl_add_u32 v5, v4, 4, v5")
    e("s_lshl_b32 s35, s29, 18")
    e("s_lshl_b32 s36, s28, 7")
    e("s_add_u32 s35, s35, s36")
    e("buffer_load_dwordx4 v[8:11], v5, s[16:19], s35 offen")
    e("s_add_u32 s35, s35, 0x%x" % (32 * 4096))
    e("buffer_load_dwordx4 v[12:15], v5, s[16:19], s35 offen")
    for s in range(RING):
        ld(s)
    ACC = 16
    for i in range(64):
        e("v_mov_b32 v%d, 0" % (ACC + i))
    e("v_mul_u32_u24 v7, %d, v3" % H_RS)
    e("v_lshl_add_u32 v7, v4, 4, v7")
    e("s_waitcnt vmcnt(%d)" % (4 * RING))
    e("ds_write_b128 v7, v[8:11] offset:%d" % (0))
    e("ds_write_b128 v7, v[12:15] offset:%d" % (32 * H_RS))
    for s in range(28):
        outstanding_after = min(28 - 1 - s, RING - 1) * 4
        e("s_waitcnt vmcnt(%d)" % outstanding_after)
        if s in (0, 7, 14, 21): stamp(e, 194)
        b = RB + 16 * (s % RING)
        for dl in range(2):
            for t in range(2):
                a = vr(ACC + 16 * (2 * dl + t), 16)
                e("v_mfma_f32_32x32x16_bf16 %s, %s, %s, %s" % (a, vr(b + 4 * dl, 4), vr(b + 8 + 4 * t, 4), a))
        if s + RING < 28:
            ld(s + RING)
    stamp(e, 194)
    e("v_and_b32 v3, 31, v2")
    e("v_mul_u32_u24 v3, %d, v3" % P_RS)
    e("v_lshrrev_b32 v4, 5, v2")
    e("v_lshl_add_u32 v3, v4, 4, v3")
    e("s_mul_i32 s37, s3, %d" % P_SZ)
    e("v_add_u32 v3, s37, v3")
    e.nop(12)
    for dl in range(2):
        for t in range(2):
            for q in range(4):
                e("ds_write_b128 v3, %s offset:%d" % (vr(ACC + 16 * (2 * dl + t) + 4 * q, 4), HT_SZ + t * 32 * P_RS + dl * 128 + q * 32))
    e("s_waitcnt lgkmcnt(0)")
    e("s_barrier")
    e("v_and_b32 v3, 15, v2")
    e("v_lshrrev_b32 v4, 4, v2")
    e("s_lshl_b32 s38, s3, 4")
    e("v_add_u32 v5, s38, v3")
    e("v_mul_u32_u24 v7, %d, v5" % P_RS)
    e("v_lshl_add_u32 v7, v4, 5, v7")
    e("v_lshrrev_b32 v8, 2, v3")
    e("v_lshl_add_u32 v8, v4, 3, v8")
    e("v_mul_u32_u24 v8, %d, v8" % H_RS)
    e("v_and_b32 v9, 3, v3")
    e("v_lshl_add_u32 v8, v9, 3, v8")
    e("s_lshl_b32 s39, s3, 5")
    e("v_add_u32 v8, s39, v8")
    e("v_lshlrev_b32 v9, 4, v4")
    e("s_lshl_b32 s40, s29, 7")
    e("buffer_load_dwordx4 v[100:103], v9, s[20:23], s40 offen")
    e("buffer_load_dwordx4 v[104:107], v9, s[20:23], s40 offen offset:64")
    e("s_mov_b32 s41, 896")
    e("v_mul_lo_u32 v10, v5, s41")
    e("v_add_u32 v10, v10, v9")
    e("s_mul_i32 s42, s28, %d" % (64 * 896))
    e("s_add_u32 s42, s42, s40")
    for hf in range(2):
        for w in range(4):
            e("ds_read_b128 %s, v7 offset:%d" % (vr(16 + 8 * w, 4), HT_SZ + w * P_SZ + hf * 128))
            e("ds_read_b128 %s, v7 offset:%d" % (vr(20 + 8 * w, 4), HT_SZ + w * P_SZ + hf * 128 + 16))
        e("ds_read_b64_tr_b16 v[48:49], v8 offset:%d" % (hf * 32 * H_RS))
        e("ds_read_b64_tr_b16 v[50:51], v8 offset:%d" % (hf * 32 * H_RS + 4 * H_RS))
        e("s_waitcnt lgkmcnt(0) vmcnt(0)")
        for i in range(8):
            e("v_add_f32 v%d, v%d, v%d" % (16 + i, 16 + i, 24 + i))
            e("v_add_f32 v%d, v%d, v%d" % (32 + i, 32 + i, 40 + i))
            e("v_add_f32 v%d, v%d, v%d" % (16 + i, 16 + i, 32 + i))
        BB = 100 + 4 * hf
        for p in range(4):
            e("v_cvt_pk_bf16_f32 v24, v%d, v%d" % (16 + 2 * p, 17 + 2 * p))
            e("v_and_b32 v25, s47, v24")
            e("v_lshlrev_b32 v24, 16, v24")
            e("v_lshlrev_b32 v26, 16, v%d" % (BB + p))
            e("v_and_b32 v27, s47, v%d" % (BB + p))
            e("v_add_f32 v24, v24, v26")
            e("v_add_f32 v25, v25, v27")
            e("v_cvt_pk_bf16_f32 v24, v24, v25")
            e("v_and_b32 v25, s47, v24")
            e("v_lshlrev_b32 v24, 16, v24")
            e("v_lshlrev_b32 v26, 16, v%d" % (48 + p))
            e("v_and_b32 v27, s47, v%d" % (48 + p))
            e("v_add_f32 v24, v24, v26")
            e("v_add_f32 v25, v25, v27")
            e("v_cvt_pk_bf16_f32 v%d, v24, v25" % (52 + 4 * hf + p))
        e("buffer_store_dwordx4 %s, v10, s[24:27], s42 offen offset:%d" % (vr(52 + 4 * hf, 4), 64 * hf))
    e("s_waitcnt vmcnt(0)")
    stamp(e, 194)
    e.label("K4_END")
    endpgm(e, 3)
    e.label("K4_EXIT")
    e("s_endpgm")
    WGT_IDX[0] += 1
    return kernel_desc(name, 200)


def kernels():
    return [
        ("k2_kernel", gen_k2, K2_GRID, 512, K2_LDS),
        ("k3_kernel", gen_k3, K3_GRID, 512, K3_LDS),
        (NAME + "_kernel", gen_k4, K4_GRID, 256, K4_LDS),
    ]
```

```python
import sys, struct, os
OPTS = os.environ.get("GENOPTS", "").split(",")

NAME = "sequential_preLN__ssm_conv_s4d__dense_activation_gelu__prompt"
L = 2048; D = 448; N = 256; F = 1792

WS_UT = 0x0
WS_XT = 0x200000
WS_K = 0x400000
KCH = 15360
KQS = 3072
WS_HT = 0xC00000
WS_H1 = 0x1000000
WS_WP = 0x1800000
W1P_SZ = 56 * 28 * 1024
TSZ = D * L * 2


def f32bits(x):
    return struct.unpack("<I", struct.pack("<f", x))[0]


class E:
    def __init__(self):
        self.lines = []

    def __call__(self, s):
        self.lines.append("    " + s)

    def label(self, s):
        self.lines.append(s + ":")

    def c(self, s):
        self.lines.append("    ; " + s)

    def raw(self, s):
        self.lines.append(s)

    def nop(self, n):
        while n > 0:
            k = min(n, 16)
            self("s_nop %d" % (k - 1))
            n -= k

    def text(self):
        return "\n".join(self.lines) + "\n"


def vr(a, n=1):
    return "v%d" % a if n == 1 else "v[%d:%d]" % (a, a + n - 1)


def sr(a, n=1):
    return "s%d" % a if n == 1 else "s[%d:%d]" % (a, a + n - 1)


def srd(e, dst, base_lo, base_hi, off, size):
    if off:
        e("s_add_u32 s%d, s%d, 0x%x" % (dst, base_lo, off))
        e("s_addc_u32 s%d, s%d, 0" % (dst + 1, base_hi))
    else:
        e("s_mov_b32 s%d, s%d" % (dst, base_lo))
        e("s_mov_b32 s%d, s%d" % (dst + 1, base_hi))
    e("s_and_b32 s%d, s%d, 0xffff" % (dst + 1, dst + 1))
    e("s_mov_b32 s%d, 0x%x" % (dst + 2, size))
    e("s_mov_b32 s%d, 0x00020000" % (dst + 3))


def reduce64(e, v, t):
    e.nop(2)
    e("v_add_f32_dpp v%d, v%d, v%d quad_perm:[1,0,3,2] row_mask:0xf bank_mask:0xf" % (v, v, v))
    e.nop(2)
    e("v_add_f32_dpp v%d, v%d, v%d quad_perm:[2,3,0,1] row_mask:0xf bank_mask:0xf" % (v, v, v))
    e.nop(2)
    e("v_add_f32_dpp v%d, v%d, v%d row_half_mirror row_mask:0xf bank_mask:0xf" % (v, v, v))
    e.nop(2)
    e("v_add_f32_dpp v%d, v%d, v%d row_mirror row_mask:0xf bank_mask:0xf" % (v, v, v))
    e("v_mov_b32 v%d, v%d" % (t, v))
    e.nop(2)
    e("v_permlane16_swap_b32 v%d, v%d" % (v, t))
    e("v_add_f32 v%d, v%d, v%d" % (v, v, t))
    e("v_mov_b32 v%d, v%d" % (t, v))
    e.nop(2)
    e("v_permlane32_swap_b32 v%d, v%d" % (v, t))
    e("v_add_f32 v%d, v%d, v%d" % (v, v, t))


def rb1(e, dst, src):
    e("v_cvt_pk_bf16_f32 v%d, v%d, v%d" % (dst, src, src))
    e("v_lshlrev_b32 v%d, 16, v%d" % (dst, dst))


STAMP_WG = int(os.environ.get("STAMPWG", "0"))
def stamp_init(e, vtmp):
    if "stamp" not in OPTS: return
    e("s_load_dwordx2 s[90:91], s[0:1], 104")
    e("s_waitcnt lgkmcnt(0)")
    e("s_mov_b32 s92, s90")
    e("s_and_b32 s93, s91, 0xffff")
    e("s_mov_b32 s94, 256")
    e("s_mov_b32 s95, 0x00020000")
    e.stampn = 0

def stamp(e, vtmp):
    if "stamp" not in OPTS: return
    n = e.stampn; e.stampn += 1
    lab = "STP_%d" % len(e.lines)
    e("s_cmp_lg_u32 s2, %d" % STAMP_WG)
    e("s_cbranch_scc1 %s" % lab)
    e("s_cmp_lg_u32 s3, %d" % int(os.environ.get("STAMPWAVE", "0")))
    e("s_cbranch_scc1 %s" % lab)
    e("s_memtime s[96:97]")
    e("s_waitcnt lgkmcnt(0)")
    e("v_mov_b32 v%d, s96" % vtmp)
    e("s_mov_b64 s[98:99], exec")
    e("s_mov_b64 exec, 1")
    e("v_mov_b32 v%d, 0" % (vtmp + 1))
    e("buffer_store_dword v%d, v%d, s[92:95], 0 offen offset:%d" % (vtmp, vtmp + 1, 4 * n))
    e("s_mov_b64 exec, s[98:99]")
    e.label(lab)


WGT_IDX = [0]
def kernel_header(e, name):
    e.raw(".text")
    e.raw(".globl %s" % name)
    e.raw(".p2align 8")
    e.raw(".type %s,@function" % name)
    e.label(name)
    if "wgt" in OPTS:
        e("s_memrealtime s[86:87]")
        e("s_load_dwordx2 s[84:85], s[0:1], 112")
        e("s_waitcnt lgkmcnt(0)")


def endpgm(e, idx):
    if "wgt" in OPTS:
        e("s_waitcnt vmcnt(0)")
        e("s_memrealtime s[88:89]")
        e("s_waitcnt lgkmcnt(0)")
        srd(e, 80, 84, 85, 0x4000000 + idx * 0x100000, 0x100000)
        e("s_mov_b64 exec, 1")
        e("v_mov_b32 v0, s86")
        e("v_mov_b32 v1, s88")
        e("s_lshl_b32 s90, s2, 4")
        e("s_add_u32 s90, s90, s3")
        e("s_lshl_b32 s90, s90, 3")
        e("v_mov_b32 v2, s90")
        e("buffer_store_dwordx2 v[0:1], v2, s[80:83], 0 offen")
    e("s_endpgm")


def kernel_desc(name, vgpr, sgpr=102, accum=None):
    if accum is None:
        accum = (vgpr + 3) // 4 * 4
    return """.section .rodata,"a"
.p2align 6
.amdhsa_kernel %s
  .amdhsa_next_free_vgpr %d
  .amdhsa_next_free_sgpr %d
  .amdhsa_accum_offset %d
  .amdhsa_group_segment_fixed_size 0
  .amdhsa_kernarg_size 120
  .amdhsa_user_sgpr_count 2
  .amdhsa_user_sgpr_kernarg_segment_ptr 1
  .amdhsa_system_sgpr_workgroup_id_x 1
.end_amdhsa_kernel
""" % (name, vgpr, sgpr, accum)


K1_LN = 64
K1_KG = 448
K1_GRID = K1_LN + K1_KG
K1_LDS = 4 * 64 * 288 + 64


def reduce64_multi(e, S, T, n):
    for mod in ("quad_perm:[1,0,3,2]", "quad_perm:[2,3,0,1]", "row_half_mirror", "row_mirror"):
        for r in range(n):
            e("v_add_f32_dpp v%d, v%d, v%d %s row_mask:0xf bank_mask:0xf" % (S + r, S + r, S + r, mod))
    for sw in ("v_permlane16_swap_b32", "v_permlane32_swap_b32"):
        for r in range(n):
            e("v_mov_b32 v%d, v%d" % (T + r, S + r))
        for r in range(n):
            e("%s v%d, v%d" % (sw, S + r, T + r))
        for r in range(n):
            e("v_add_f32 v%d, v%d, v%d" % (S + r, S + r, T + r))


def gen_k1(e):
    name = "k1_kernel"
    kernel_header(e, name)
    e("s_cmp_ge_u32 s2, %d" % K1_GRID)
    e("s_cbranch_scc1 K1_EXIT")
    e("s_load_dwordx2 s[4:5], s[0:1], 112")
    e("v_lshrrev_b32 v1, 6, v0")
    e("v_and_b32 v2, 63, v0")
    e("s_nop 0")
    e("v_readfirstlane_b32 s3, v1")
    e("s_cmp_ge_u32 s2, %d" % K1_KG)
    e("s_cbranch_scc0 K1_KGB")

    e.label("K1_LNB")
    if "noln" in OPTS: e("s_branch K1_END")
    e("s_load_dwordx2 s[6:7], s[0:1], 0")
    e("s_waitcnt lgkmcnt(0)")
    srd(e, 8, 6, 7, 0, TSZ)
    srd(e, 12, 4, 5, WS_UT, TSZ)
    srd(e, 16, 4, 5, WS_XT, TSZ)
    e("s_sub_u32 s20, s2, %d" % K1_KG)
    e("s_lshl_b32 s20, s20, 5")
    e("s_lshl_b32 s21, s3, 3")
    e("s_add_u32 s21, s21, s20")
    e("s_mul_i32 s22, s21, 896")
    e("v_lshlrev_b32 v3, 4, v2")
    RX = 32
    for i in range(32):
        e("v_mov_b32 v%d, 0" % (RX + i))
    e("s_mov_b64 s[24:25], exec")
    e("v_cmp_gt_u32 vcc, 56, v2")
    e("s_mov_b64 s[26:27], vcc")
    e("s_mov_b64 exec, s[26:27]")
    for r in range(8):
        if r == 4:
            e("s_add_u32 s22, s22, 3584")
        e("buffer_load_dwordx4 %s, v3, s[8:11], s22 offen offset:%d" % (vr(RX + 4 * r, 4), (r & 3) * 896))
    e("s_mov_b64 exec, s[24:25]")
    e("s_lshl_b32 s23, s3, 3")
    e("s_mul_i32 s23, s23, 912")
    e("v_add_u32 v4, s23, v3")
    e("s_mov_b32 s28, 0x%x" % f32bits(1.0 / 448.0))
    e("s_mov_b32 s29, 0x%x" % f32bits(1e-5))
    e("s_mov_b32 s30, 0xffff0000")
    S, T, V, X = 8, 16, 24, 64
    for r in range(8):
        e("v_mov_b32 v%d, 0" % (V + r))
    for r in range(8):
        e("s_waitcnt vmcnt(%d)" % (7 - r))
        R = RX + 4 * r
        for k in range(4):
            e("v_lshlrev_b32 v%d, 16, v%d" % (X + 8 * r + 2 * k, R + k))
            e("v_and_b32 v%d, s30, v%d" % (X + 8 * r + 2 * k + 1, R + k))
    e("s_mov_b64 exec, s[26:27]")
    for r in range(8):
        e("ds_write_b128 v4, %s offset:%d" % (vr(RX + 4 * r, 4), r * 912))
    e("s_mov_b64 exec, s[24:25]")
    for r in range(8):
        e("v_add_f32 v%d, v%d, v%d" % (S + r, X + 8 * r, X + 8 * r + 1))
    for k in range(2, 8):
        for r in range(8):
            e("v_add_f32 v%d, v%d, v%d" % (S + r, S + r, X + 8 * r + k))
    reduce64_multi(e, S, T, 8)
    for r in range(8):
        e("v_mul_f32 v%d, s28, v%d" % (S + r, S + r))
    e("s_mov_b64 exec, s[26:27]")
    for k in range(8):
        for r in range(8):
            e("v_sub_f32 v%d, v%d, v%d" % (T + r, X + 8 * r + k, S + r))
        for r in range(8):
            e("v_fmac_f32 v%d, v%d, v%d" % (V + r, T + r, T + r))
    e("s_mov_b64 exec, s[24:25]")
    reduce64_multi(e, V, T, 8)
    for r in range(8):
        e("v_mul_f32 v%d, s28, v%d" % (V + r, V + r))
    for r in range(8):
        e("v_cvt_pk_bf16_f32 v%d, v%d, v%d" % (S + r, S + r, S + r))
        e("v_cvt_pk_bf16_f32 v%d, v%d, v%d" % (V + r, V + r, V + r))
    for r in range(8):
        e("v_lshlrev_b32 v%d, 16, v%d" % (S + r, S + r))
        e("v_lshlrev_b32 v%d, 16, v%d" % (V + r, V + r))
    for r in range(8):
        e("v_add_f32 v%d, s29, v%d" % (V + r, V + r))
    for r in range(8):
        e("v_cvt_pk_bf16_f32 v%d, v%d, v%d" % (V + r, V + r, V + r))
    for r in range(8):
        e("v_lshlrev_b32 v%d, 16, v%d" % (V + r, V + r))
    for r in range(8):
        e("v_sqrt_f32 v%d, v%d" % (V + r, V + r))
    for r in range(8):
        e("v_cvt_pk_bf16_f32 v%d, v%d, v%d" % (V + r, V + r, V + r))
    for r in range(8):
        e("v_lshlrev_b32 v%d, 16, v%d" % (V + r, V + r))
    for r in range(8):
        e("v_rcp_f32 v%d, v%d" % (V + r, V + r))
    for r in range(8):
        xb = X + 8 * r
        for k in range(8):
            e("v_sub_f32 v%d, v%d, v%d" % (xb + k, xb + k, S + r))
        for k in range(4):
            e("v_cvt_pk_bf16_f32 v%d, v%d, v%d" % (T + k, xb + 2 * k, xb + 2 * k + 1))
        for k in range(4):
            e("v_lshlrev_b32 v%d, 16, v%d" % (xb + 2 * k, T + k))
            e("v_and_b32 v%d, s30, v%d" % (xb + 2 * k + 1, T + k))
        for k in range(8):
            e("v_mul_f32 v%d, v%d, v%d" % (xb + k, xb + k, V + r))
        for k in range(4):
            e("v_cvt_pk_bf16_f32 v%d, v%d, v%d" % (RX + 4 * r + k, xb + 2 * k, xb + 2 * k + 1))
    e("s_mov_b64 exec, s[26:27]")
    for r in range(8):
        e("ds_write_b128 v4, %s offset:%d" % (vr(RX + 4 * r, 4), 32 * 912 + r * 912))
    e("s_mov_b64 exec, s[24:25]")
    e("s_waitcnt lgkmcnt(0)")
    e("s_barrier")
    e("v_and_b32 v5, 15, v2")
    e("v_lshrrev_b32 v6, 4, v2")
    e("v_lshrrev_b32 v7, 2, v5")
    e("v_and_b32 v8, 3, v5")
    e("v_lshlrev_b32 v9, 3, v6")
    e("v_add_u32 v10, v9, v7")
    e("v_mul_u32_u24 v10, 912, v10")
    e("v_lshl_add_u32 v10, v8, 3, v10")
    e("v_sub_u32 v11, v9, v7")
    e("v_add_u32 v11, 3, v11")
    e("v_mul_u32_u24 v11, 912, v11")
    e("v_lshl_add_u32 v11, v8, 3, v11")
    e("v_lshlrev_b32 v12, 12, v5")
    e("v_lshl_add_u32 v13, v9, 1, v12")
    e("s_lshl_b32 s31, s20, 1")
    e("v_add_u32 v13, s31, v13")
    e("v_lshlrev_b32 v14, 1, v9")
    e("v_sub_u32 v14, v12, v14")
    e("s_sub_u32 s32, 4080, s31")
    e("v_add_u32 v14, s32, v14")
    e("s_lshl_b32 s33, s3, 5")
    e("s_lshl_b32 s34, s3, 16")
    e("v_add_u32 v10, s33, v10")
    e("v_add_u32 v11, s33, v11")
    for k in range(7):
        co = k * 128
        b = 16 + 8 * k
        e("ds_read_b64_tr_b16 %s, v10 offset:%d" % (vr(b, 2), co))
        e("ds_read_b64_tr_b16 %s, v10 offset:%d" % (vr(b + 2, 2), co + 4 * 912))
        e("ds_read_b64_tr_b16 %s, v11 offset:%d" % (vr(b + 4, 2), co + 32 * 912 + 4 * 912))
        e("ds_read_b64_tr_b16 %s, v11 offset:%d" % (vr(b + 6, 2), co + 32 * 912))
    for k in range(7):
        b = 16 + 8 * k
        e("s_waitcnt lgkmcnt(%d)" % min(15, 4 * (6 - k) + 2))
        e("buffer_store_dwordx4 %s, v13, s[16:19], s34 offen" % vr(b, 4))
        e("s_waitcnt lgkmcnt(%d)" % min(15, 4 * (6 - k)))
        e("buffer_store_dwordx4 %s, v14, s[12:15], s34 offen" % vr(b + 4, 4))
        e("s_add_u32 s34, s34, 0x%x" % (64 * 4096))
    e("s_branch K1_END")

    e.label("K1_KGB")
    if "nokg" in OPTS: e("s_branch K1_END")
    e("s_load_dwordx8 s[8:15], s[0:1], 8")
    e("s_load_dwordx2 s[16:17], s[0:1], 40")
    e("s_mov_b32 s20, s2")
    e("s_waitcnt lgkmcnt(0)")
    stamp_init(e, 190)
    stamp(e, 190)
    srd(e, 24, 8, 9, 0, D * N * 2)
    srd(e, 28, 10, 11, 0, D * N * 2)
    srd(e, 32, 12, 13, 0, D * N * 2)
    srd(e, 36, 14, 15, 0, D * N * 2)
    srd(e, 40, 16, 17, 0, D * 2)
    e("s_lshl_b32 s21, s20, 9")
    e("v_lshlrev_b32 v3, 1, v0")
    e("s_lshl_b32 s22, s20, 1")
    e("v_mov_b32 v4, 0")
    e("buffer_load_ushort v8, v3, s[24:27], s21 offen")
    e("buffer_load_ushort v12, v4, s[40:43], s22 offen")
    e("buffer_load_ushort v9, v3, s[28:31], s21 offen")
    e("buffer_load_ushort v10, v3, s[32:35], s21 offen")
    e("buffer_load_ushort v11, v3, s[36:39], s21 offen")
    import numpy as np
    lhi = np.float32(1.4426950408889634)
    llo = np.float32(1.4426950408889634 - float(lhi))
    e("s_mov_b32 s44, 0x%x" % f32bits(float(lhi)))
    e("s_mov_b32 s45, 0x%x" % f32bits(float(llo)))
    e("s_mov_b32 s46, 0x%x" % f32bits(0.6931471805599453))
    e("s_mov_b32 s47, 0xffff0000")
    e("s_mov_b32 s48, 0x%x" % f32bits(0.15915494309189535))
    e("s_mul_i32 s50, s3, %d" % (64 * 288))
    e("s_mov_b32 m0, s50")
    e("v_and_b32 v105, 15, v2")
    e("v_mul_u32_u24 v105, 288, v105")
    e("v_lshrrev_b32 v106, 4, v2")
    e("v_lshl_add_u32 v105, v106, 4, v105")
    e("v_add_u32 v105, s50, v105")
    ACC = 108
    FR = 124
    for i in range(16):
        e("v_mov_b32 v%d, 0" % (ACC + i))
    e("s_waitcnt vmcnt(0)")
    stamp(e, 190)
    for r in (8, 9, 10, 11, 12):
        e("v_lshlrev_b32 v%d, 16, v%d" % (r, r))

    def exp_acc(dst, x, t1, t2):
        e("v_mul_f32 v%d, s44, v%d" % (t1, x))
        e("v_fma_f32 v%d, v%d, s44, -v%d" % (t2, x, t1))
        e("v_fmac_f32 v%d, s45, v%d" % (t2, x))
        e("v_exp_f32 v%d, v%d" % (t1, t1))
        e("v_mul_f32 v%d, s46, v%d" % (t2, t2))
        e("v_fma_f32 v%d, v%d, v%d, v%d" % (dst, t1, t2, t1))
        rb1(e, dst, dst)

    exp_acc(12, 12, 13, 14)
    exp_acc(8, 8, 13, 14)
    e("v_mul_f32 v8, v8, v12")
    e("v_mul_f32 v9, v9, v12")
    e("v_mul_f32 v10, v10, v12")
    e("v_mul_f32 v11, v11, v12")
    e("v_mul_f32 v8, s44, v8")
    e("v_mul_f32 v9, s48, v9")
    Z = 16
    for k0 in range(0, 12, 4):
        ks = range(k0, k0 + 4)
        for k in ks:
            e("v_mul_f32 v%d, 0x%x, v8" % (FR + 3 * (k - k0), f32bits(float(2 ** k))))
            e("v_mul_f32 v%d, 0x%x, v9" % (FR + 3 * (k - k0) + 1, f32bits(float(2 ** k))))
        for k in ks:
            t = FR + 3 * (k - k0)
            e("v_exp_f32 v%d, -v%d" % (t, t))
            e("v_fract_f32 v%d, v%d" % (t + 1, t + 1))
        for k in ks:
            t = FR + 3 * (k - k0)
            e("v_cos_f32 v%d, v%d" % (t + 2, t + 1))
            e("v_sin_f32 v%d, v%d" % (t + 1, t + 1))
        e.nop(1)
        for k in ks:
            t = FR + 3 * (k - k0)
            e("v_mul_f32 v%d, v%d, v%d" % (Z + 2 * k, t, t + 2))
            e("v_mul_f32 v%d, v%d, v%d" % (Z + 2 * k + 1, t, t + 1))

    stamp(e, 190)
    def zr(k):
        return Z + 2 * k

    Ereg = {}
    Greg = {}
    Erow = {}
    EB = 40
    GB = 72
    cnt = [0]
    e("s_mov_b32 s57, 0x0000bf80")
    e("s_mov_b32 s58, 0xbf800000")

    def cmul(dst, a, b, conj=False):
        T = (4, 6)[cnt[0] & 1]; cnt[0] += 1
        e("v_pk_mul_f32 %s, %s, %s op_sel:[1,1] op_sel_hi:[1,0]" % (vr(T, 2), vr(a, 2), vr(b, 2)))
        e("v_pk_fma_f32 %s, %s, %s, %s op_sel:[0,0,0] op_sel_hi:[0,1,1] %s" % (vr(dst, 2), vr(a, 2), vr(b, 2), vr(T, 2), "neg_hi:[0,0,1]" if conj else "neg_lo:[0,0,1]"))

    def split_write_list(items):
        TS = [(13, 14, 15), (104, 106, 107)]
        for k in range(0, len(items), 2):
            grp = items[k:k + 2]
            for (src_, row), (h, l0, l1) in zip(grp, TS):
                e("v_cvt_pk_bf16_f32 v%d, v%d, v%d" % (h, src_, src_ + 1))
            for (src_, row), (h, l0, l1) in zip(grp, TS):
                e("v_dot2_f32_bf16 v%d, v%d, s57, v%d" % (l0, h, src_))
                e("v_dot2_f32_bf16 v%d, v%d, s58, v%d" % (l1, h, src_ + 1))
            for (src_, row), (h, l0, l1) in zip(grp, TS):
                e("ds_write_addtid_b32 v%d offset:%d" % (h, row * 288))
            if len(grp) == 1:
                e.nop(3)
            for (src_, row), (h, l0, l1) in zip(grp, TS):
                e("v_cvt_pk_bf16_f32 v%d, v%d, v%d" % (l0, l0, l1))
            for (src_, row), (h, l0, l1) in zip(grp, TS):
                e("ds_write_addtid_b32 v%d offset:%d" % (l0, (row + 16) * 288))

    def mfma_seg(t):
        for s in range(4):
            e("ds_read_b128 %s, v105 offset:%d" % (vr(FR + 16 * s + 0, 4), 64 * s))
            e("ds_read_b128 %s, v105 offset:%d" % (vr(FR + 16 * s + 8, 4), 64 * s + 32 * 288))
            e("ds_read_b128 %s, v105 offset:%d" % (vr(FR + 16 * s + 12, 4), 64 * s + 48 * 288))
            e("ds_read_b128 %s, v105 offset:%d" % (vr(FR + 16 * s + 4, 4), 64 * s + 16 * 288))
        for s in range(4):
            e("s_waitcnt lgkmcnt(%d)" % (12 - 4 * s))
            a = vr(ACC + 4 * t, 4)
            ah, al, bh, bl = (vr(FR + 16 * s + 4 * q, 4) for q in range(4))
            e("v_mfma_f32_16x16x32_bf16 %s, %s, %s, %s" % (a, ah, bh, a))
            e("v_mfma_f32_16x16x32_bf16 %s, %s, %s, %s" % (a, ah, bl, a))
            e("v_mfma_f32_16x16x32_bf16 %s, %s, %s, %s" % (a, al, bh, a))

    colb = []
    e("v_mov_b32 v%d, 1.0" % EB)
    e("v_mov_b32 v%d, 0" % (EB + 1))
    Ereg[0] = EB
    for b in range(1, 16):
        Ereg[b] = EB + 2 * b
        k = b.bit_length() - 1
        hb = 1 << k
        if b == hb:
            e("v_mov_b32 v%d, v%d" % (Ereg[b], zr(k)))
            e("v_mov_b32 v%d, v%d" % (Ereg[b] + 1, zr(k) + 1))
        else:
            cmul(Ereg[b], zr(k), Ereg[b - hb])
    e("v_mov_b32 v%d, v10" % GB)
    e("v_sub_f32 v%d, 0, v11" % (GB + 1))
    Greg[0] = GB
    for a in range(1, 16):
        p = 16 * a
        Greg[p] = GB + 2 * a
        k = p.bit_length() - 1
        cmul(Greg[p], zr(k), Greg[p - (1 << k)], True)
    for b in range(16):
        Erow[b] = b
    split_write_list([(Greg[16 * a], a) for a in range(16)] + [(Ereg[b], 32 + b) for b in range(16)])
    colb.append(list(range(16)))
    mfma_seg(0)
    stamp(e, 190)

    for sg in (1, 2, 3):
        st = 1 << sg
        base = 128 << sg
        hs = 16 << sg
        freeE = sorted(r for p, r in Ereg.items() if p % st != 0)
        freeR = sorted(r for p, r in Erow.items() if p % st != 0)
        Ereg = {p: r for p, r in Ereg.items() if p % st == 0}
        Erow = {p: r for p, r in Erow.items() if p % st == 0}
        kz = 3 + sg
        for b in range(8, 16):
            p = st * b
            Ereg[p] = freeE.pop(0)
            Erow[p] = freeR.pop(0)
            if b == 8:
                e("v_mov_b32 v%d, v%d" % (Ereg[p], zr(kz)))
                e("v_mov_b32 v%d, v%d" % (Ereg[p] + 1, zr(kz) + 1))
            else:
                cmul(Ereg[p], zr(kz), Ereg[p - 8 * st])
        freeG = sorted(r for p, r in Greg.items() if p % hs != 0)
        Greg = {p: r for p, r in Greg.items() if p % hs == 0}
        kz = 7 + sg
        for a in range(8):
            p = base + hs * a
            Greg[p] = freeG.pop(0)
            cmul(Greg[p], zr(kz), Greg[hs * a], True)
        rows = 8
        if sg == 3:
            Greg[2048] = zr(0)
            cmul(Greg[2048], zr(11), Greg[0], True)
            rows = 9
        split_write_list([(Greg[base + hs * a], a) for a in range(rows)] + [(Ereg[st * b], 32 + Erow[st * b]) for b in range(8, 16)])
        cb = [0] * 16
        for b in range(16):
            cb[Erow[st * b]] = b
        colb.append(cb)
        mfma_seg(sg)
        stamp(e, 190)

    e("v_and_b32 v13, 15, v2")
    e("v_lshrrev_b32 v14, 4, v2")
    e("v_lshlrev_b32 v14, 8, v14")
    e("v_add_u32 v14, s50, v14")
    e("v_lshl_add_u32 v16, v13, 2, v14")
    e("v_and_b32 v15, 7, v2")
    e("v_lshlrev_b32 v15, 2, v15")
    e("v_cmp_gt_u32 vcc, 8, v13")
    for sg in (1, 2, 3):
        lo = sum(colb[sg][c] << (4 * c) for c in range(8))
        hi = sum(colb[sg][8 + c] << (4 * c) for c in range(8))
        e("s_mov_b32 s54, 0x%x" % lo)
        e("s_mov_b32 s55, 0x%x" % hi)
        e("v_bfe_u32 v20, s54, v15, 4")
        e("v_bfe_u32 v21, s55, v15, 4")
        e("v_cndmask_b32 v20, v21, v20, vcc")
        e("v_lshl_add_u32 v%d, v20, 2, v14" % (16 + sg))
    e.nop(4)
    e("s_waitcnt lgkmcnt(0)")
    for i in range(4):
        e("ds_write_b32 v16, v%d offset:%d" % (ACC + i, 64 * i))
    e("s_mov_b64 s[52:53], exec")
    e("s_mov_b32 exec_lo, -1")
    e("s_mov_b32 exec_hi, 0")
    for sg in (1, 2, 3):
        qb = 128 + 128 * sg
        for i in range(4):
            e("ds_write_b32 v%d, v%d offset:%d" % (16 + sg, ACC + 4 * sg + i, qb * 4 + 64 * i))
    e("s_mov_b32 s54, 0")
    e("s_mov_b32 s55, 0xffff")
    e("s_mov_b64 exec, s[54:55]")
    e("ds_write_b32 v19, v%d offset:%d" % (ACC + 12, 512 * 4))
    e("s_mov_b64 exec, s[52:53]")
    srd(e, 24, 4, 5, WS_K, D * KQS)
    e("s_mul_i32 s21, s20, %d" % KQS)
    e("v_lshlrev_b32 v9, 2, v0")
    e("s_waitcnt lgkmcnt(0)")
    e("s_barrier")
    stamp(e, 190)
    for m in range(3):
        for w in range(4):
            e("ds_read_b32 v%d, v9 offset:%d" % (24 + 4 * m + w, w * 64 * 288 + 1024 * m))
    for m in range(3):
        e("s_waitcnt lgkmcnt(%d)" % (8 - 4 * m))
        b = 24 + 4 * m
        e("v_add_f32 v%d, v%d, v%d" % (b, b, b + 1))
        e("v_add_f32 v%d, v%d, v%d" % (b + 2, b + 2, b + 3))
        e("v_add_f32 v%d, v%d, v%d" % (b, b, b + 2))
        e("v_add_f32 v%d, v%d, v%d" % (b, b, b))
        e("buffer_store_dword v%d, v9, s[24:27], s21 offen offset:%d" % (b, 1024 * m))
    if "stamp" in OPTS:
        e("s_waitcnt vmcnt(0)")
        stamp(e, 190)
    e.label("K1_END")
    endpgm(e, 0)
    e.label("K1_EXIT")
    e("s_endpgm")
    WGT_IDX[0] += 1
    return kernel_desc(name, 192)


def main():
    out = []
    hdr = open("cdna_kernels/%s.s.ref" % NAME).read().split("\n")
    for ln in hdr:
        if ln.startswith("; @launch") or not ln.startswith(";"):
            break
        out.append(ln)
    launches = []
    e = E()
    descs = []
    import gen_rest
    descs.append(gen_k1(e))
    launches.append(("k1_kernel", K1_GRID, 256, K1_LDS))
    for (nm, fn, grid, blk, lds) in gen_rest.kernels():
        descs.append(fn(e))
        launches.append((nm, grid, blk, lds))
    nl = int(sys.argv[1]) if len(sys.argv) > 1 else len(launches)
    for (nm, g, b, l) in launches[:nl]:
        out.append("; @launch kernel=%s grid=(%d,1,1) block=(%d,1,1) lds=%d" % (nm, g, b, l))
    out.append('.amdgcn_target "amdgcn-amd-amdhsa--gfx950"')
    txt = "\n".join(out) + "\n" + e.text() + "".join(descs)
    open(os.environ.get("GENOUT", "cdna_kernels/%s.s" % NAME), "w").write(txt)
    print("written", len(txt), "bytes")


if __name__ == "__main__":
    main()
```

```python
from gen import *

K2_CONV = 224
K2_GRID = 256
UC_STRIDE = 4160
UC_SZ = 8 * UC_STRIDE
CH_SZ = UC_SZ + KCH
K2_LDS = max(2 * CH_SZ + 20480, 8 * 64 * 192)


def gen_k2(e):
    name = "k2_kernel"
    kernel_header(e, name)
    e("s_cmp_ge_u32 s2, %d" % K2_GRID)
    e("s_cbranch_scc1 K2_EXIT")
    e("s_load_dwordx2 s[4:5], s[0:1], 112")
    e("s_load_dwordx2 s[6:7], s[0:1], 48")
    e("v_lshrrev_b32 v1, 6, v0")
    e("v_and_b32 v2, 63, v0")
    e("s_nop 0")
    e("v_readfirstlane_b32 s3, v1")
    e("s_cmp_ge_u32 s2, %d" % K2_CONV)
    e("s_cbranch_scc1 K2_PACK")
    e("s_waitcnt lgkmcnt(0)")
    stamp_init(e, 62)
    stamp(e, 62)
    srd(e, 8, 4, 5, WS_UT, TSZ)
    srd(e, 12, 4, 5, WS_K, D * KQS)
    srd(e, 16, 4, 5, WS_XT, TSZ)
    srd(e, 20, 4, 5, WS_HT, TSZ)
    srd(e, 24, 6, 7, 0, D * 2)
    e("s_lshl_b32 s28, s2, 1")
    e("s_mov_b32 s47, 0xffff0000")
    e("v_lshrrev_b32 v3, 8, v0")
    e("v_and_b32 v4, 255, v0")
    e("v_lshlrev_b32 v5, 12, v3")
    e("v_lshl_add_u32 v5, v4, 4, v5")
    e("s_lshl_b32 s29, s28, 12")
    e("buffer_load_dwordx4 v[8:11], v5, s[8:11], s29 offen")
    e("buffer_load_dwordx4 v[12:15], v5, s[8:11], s29 offen offset:16")
    KQ = 2 * CH_SZ
    e("s_mul_i32 s30, s28, %d" % KQS)
    e("v_lshlrev_b32 v6, 4, v0")
    e("v_cmp_gt_u32 vcc, 384, v0")
    e("s_and_saveexec_b64 s[34:35], vcc")
    e("s_cbranch_execz K2_P2A")
    e("buffer_load_dwordx4 v[32:35], v6, s[12:15], s30 offen")
    e.label("K2_P2A")
    e("s_mov_b64 exec, s[34:35]")
    e("s_mov_b32 s56, 0x7fff")
    e("v_lshlrev_b32 v36, 3, v4")
    for jj in range(8):
        e("v_add_u32 v%d, %d, v36" % (40 + jj, jj))
    for jj in range(8):
        e("v_cvt_f32_u32 v%d, v%d" % (48 + jj, 40 + jj))
    for jj in range(8):
        e("v_bfe_u32 v%d, v%d, 16, 1" % (64 + jj, 48 + jj))
    for jj in range(8):
        e("v_add3_u32 v%d, v%d, v%d, s56" % (48 + jj, 48 + jj, 64 + jj))
    for jj in range(8):
        e("v_lshrrev_b32 v%d, 16, v%d" % (48 + jj, 48 + jj))
    for jj in range(8):
        e("v_subrev_u32 v%d, 0x%x, v%d" % (48 + jj, 0x4380 - 256, 48 + jj))
    e("v_cmp_gt_u32 vcc, 32, v4")
    e("s_and_saveexec_b64 s[34:35], vcc")
    for jj in range(8):
        e("v_mov_b32 v%d, v%d" % (48 + jj, 40 + jj))
    e("s_mov_b64 exec, s[34:35]")
    e("v_mul_u32_u24 v36, %d, v3" % KQS)
    e("v_add_u32 v36, %d, v36" % KQ)
    for jj in range(8):
        e("v_lshl_add_u32 v%d, v%d, 2, v36" % (48 + jj, 48 + jj))
    e("s_mov_b32 s36, %d" % CH_SZ)
    e("v_mul_lo_u32 v7, v3, s36")
    e("v_lshl_add_u32 v7, v4, 4, v7")
    e("v_add_u32 v37, %d, v6" % KQ)
    e("s_waitcnt vmcnt(0)")
    e("v_cmp_gt_u32 vcc, 384, v0")
    e("s_and_saveexec_b64 s[34:35], vcc")
    e("ds_write_b128 v37, v[32:35]")
    e("s_mov_b64 exec, s[34:35]")
    e("v_cmp_eq_u32 vcc, 255, v4")
    e.nop(1)
    for i in range(4):
        e("v_cndmask_b32 v%d, v%d, 0, vcc" % (12 + i, 12 + i))
    W = 8
    e("ds_write_b128 v7, v[8:11] offset:0")
    for phi in range(1, 8):
        q = phi >> 1
        if phi & 1:
            for i in range(4):
                e("v_alignbit_b32 v%d, v%d, v%d, 16" % (16 + 4 * (phi & 3) + i, W + q + i + 1, W + q + i))
            e("ds_write_b128 v7, %s offset:%d" % (vr(16 + 4 * (phi & 3), 4), phi * UC_STRIDE))
        elif q % 2 == 0:
            e("ds_write_b128 v7, %s offset:%d" % (vr(W + q, 4), phi * UC_STRIDE))
        else:
            for i in range(4):
                e("v_mov_b32 v%d, v%d" % (16 + 4 * (phi & 3) + i, W + q + i))
            e("ds_write_b128 v7, %s offset:%d" % (vr(16 + 4 * (phi & 3), 4), phi * UC_STRIDE))
    for i in range(4):
        e("v_mov_b32 v%d, 0" % (56 + i))
    e("v_lshrrev_b32 v60, 2, v4")
    e("v_mul_u32_u24 v60, %d, v60" % UC_STRIDE)
    e("v_and_b32 v61, 3, v4")
    e("v_lshl_add_u32 v60, v61, 4, v60")
    e("v_mul_lo_u32 v61, v3, s36")
    e("v_add_u32 v60, v60, v61")
    e("v_cmp_gt_u32 vcc, 32, v4")
    e("s_and_saveexec_b64 s[34:35], vcc")
    e("ds_write_b128 v60, v[56:59] offset:4096")
    e("s_mov_b64 exec, s[34:35]")
    e("v_lshlrev_b32 v60, 4, v4")
    e("v_add_u32 v60, v60, v61")
    e("v_cmp_gt_u32 vcc, 96, v4")
    e("s_and_saveexec_b64 s[34:35], vcc")
    e("ds_write_b128 v60, v[56:59] offset:%d" % UC_SZ)
    e("ds_write_b128 v60, v[56:59] offset:%d" % (UC_SZ + KCH // 2))
    e("s_mov_b64 exec, s[34:35]")
    stamp(e, 62)
    e("s_waitcnt lgkmcnt(0)")
    e("s_barrier")
    for jj in range(8):
        e("ds_read_b32 v%d, v%d" % (40 + jj, 48 + jj))
    e("v_lshrrev_b32 v60, 2, v4")
    e("v_mul_u32_u24 v60, 96, v60")
    e("v_and_b32 v36, 3, v4")
    e("v_lshl_add_u32 v60, v36, 4, v60")
    e("v_add_u32 v60, v60, v61")
    e("s_mov_b32 s57, 0x0000bf80")
    e("s_mov_b32 s58, 0xbf800000")
    e("s_waitcnt lgkmcnt(0)")
    for p in range(4):
        e("v_cvt_pk_bf16_f32 v%d, v%d, v%d" % (32 + p, 40 + 2 * p, 41 + 2 * p))
    for p in range(4):
        e("v_dot2_f32_bf16 v%d, v%d, s57, v%d" % (48 + 2 * p, 32 + p, 40 + 2 * p))
        e("v_dot2_f32_bf16 v%d, v%d, s58, v%d" % (49 + 2 * p, 32 + p, 41 + 2 * p))
    e("ds_write_b128 v60, v[32:35] offset:%d" % (UC_SZ + 16 * 96))
    e.nop(2)
    for p in range(4):
        e("v_cvt_pk_bf16_f32 v%d, v%d, v%d" % (36 + p, 48 + 2 * p, 49 + 2 * p))
    e("ds_write_b128 v60, v[36:39] offset:%d" % (UC_SZ + 16 * 96 + KCH // 2))
    e("s_lshr_b32 s37, s3, 2")
    e("s_and_b32 s48, s3, 3")
    e("s_sub_u32 s38, 3, s48")
    e("s_mul_i32 s52, s48, 20")
    e("s_mov_b32 s43, 5")
    e("s_mov_b32 s51, 3")
    e("s_cmp_eq_u32 s48, 2")
    e("s_cselect_b32 s43, 2, s43")
    e("s_cmp_eq_u32 s48, 3")
    e("s_cselect_b32 s43, 4, s43")
    e("s_cselect_b32 s51, 1, s51")
    e("s_cselect_b32 s52, 0, s52")
    e("s_mul_i32 s40, s37, %d" % CH_SZ)
    e("v_and_b32 v3, 15, v2")
    e("v_lshrrev_b32 v4, 4, v2")
    e("v_and_b32 v5, 7, v3")
    e("v_sub_u32 v5, 7, v5")
    e("v_mul_u32_u24 v5, %d, v5" % UC_STRIDE)
    e("v_lshrrev_b32 v6, 3, v3")
    e("v_sub_u32 v6, v4, v6")
    e("v_lshl_add_u32 v5, v6, 4, v5")
    e("s_add_u32 s41, s40, %d" % (255 * 16 - 32 - 7 * 64))
    e("v_add_u32 v60, s41, v5")
    e("v_mul_u32_u24 v6, 96, v3")
    e("v_lshl_add_u32 v6, v4, 4, v6")
    e("s_add_u32 s42, s40, %d" % (UC_SZ + 16 * 96 - 7 * 96 - 16 * 96))
    e("v_add_u32 v61, s42, v6")
    e("s_lshl_b32 s55, s52, 6")
    e("v_subrev_u32 v5, s55, v60")
    e("s_mul_i32 s55, s51, %d" % (16 * 96))
    e("s_mul_i32 s56, s52, 96")
    e("s_sub_u32 s55, s55, s56")
    e("v_add_u32 v6, s55, v61")
    e("s_mul_i32 s55, s37, 10240")
    e("s_add_u32 s55, s55, %d" % (2 * CH_SZ))
    e("v_lshlrev_b32 v178, 4, v2")
    e("v_add_u32 v178, s55, v178")
    e("s_add_u32 s44, s28, s37")
    e("s_lshl_b32 s45, s44, 1")
    e("v_mov_b32 v176, 0")
    e("buffer_load_ushort v176, v176, s[24:27], s45 offen")
    e("v_lshlrev_b32 v8, 5, v3")
    e("v_lshl_add_u32 v8, v4, 2, v8")
    e("s_lshl_b32 s46, s38, 9")
    e("v_add_u32 v8, s46, v8")
    e("v_lshlrev_b32 v177, 1, v8")
    e("s_lshl_b32 s45, s44, 12")
    e("buffer_load_dwordx2 v[10:11], v177, s[16:19], s45 offen")
    e("buffer_load_dwordx2 v[12:13], v177, s[16:19], s45 offen offset:32")
    ACC = 16
    ACQ = 160
    for i in range(8):
        e("v_mov_b32 v%d, 0" % (ACC + i))
        e("v_mov_b32 v%d, 0" % (ACQ + i))
    e("s_waitcnt lgkmcnt(0)")
    e("s_barrier")
    stamp(e, 62)

    FR = [64, 88, 112, 136]

    def issue(i, joint):
        if "k2nord" in OPTS: return
        b = FR[i & 3]
        e("ds_read_b128 %s, v5 offset:%d" % (vr(b, 4), 448 - 64 * i + 32))
        e("ds_read_b128 %s, v6 offset:%d" % (vr(b + 8, 4), 1536 + 672 - 96 * i))
        e("ds_read_b128 %s, v5 offset:%d" % (vr(b + 4, 4), 448 - 64 * i))
        e("ds_read_b128 %s, v6 offset:%d" % (vr(b + 12, 4), 1536 + 672 - 96 * i + KCH // 2))
        if joint:
            e("ds_read_b128 %s, v6 offset:%d" % (vr(b + 16, 4), 672 - 96 * i))
            e("ds_read_b128 %s, v6 offset:%d" % (vr(b + 20, 4), 672 - 96 * i + KCH // 2))

    def mm(i, joint):
        if "k2nomm" in OPTS: return
        b = FR[i & 3]
        a0, a1 = vr(ACC, 4), vr(ACC + 4, 4)
        q0, q1 = vr(ACQ, 4), vr(ACQ + 4, 4)
        e("v_mfma_f32_16x16x32_bf16 %s, %s, %s, %s" % (a0, vr(b, 4), vr(b + 8, 4), a0))
        e("v_mfma_f32_16x16x32_bf16 %s, %s, %s, %s" % (a1, vr(b + 4, 4), vr(b + 8, 4), a1))
        if joint:
            e("v_mfma_f32_16x16x32_bf16 %s, %s, %s, %s" % (q0, vr(b, 4), vr(b + 16, 4), q0))
            e("v_mfma_f32_16x16x32_bf16 %s, %s, %s, %s" % (q1, vr(b + 4, 4), vr(b + 16, 4), q1))
        e("v_mfma_f32_16x16x32_bf16 %s, %s, %s, %s" % (a0, vr(b, 4), vr(b + 12, 4), a0))
        e("v_mfma_f32_16x16x32_bf16 %s, %s, %s, %s" % (a1, vr(b + 4, 4), vr(b + 12, 4), a1))
        if joint:
            e("v_mfma_f32_16x16x32_bf16 %s, %s, %s, %s" % (q0, vr(b, 4), vr(b + 20, 4), q0))
            e("v_mfma_f32_16x16x32_bf16 %s, %s, %s, %s" % (q1, vr(b + 4, 4), vr(b + 20, 4), q1))

    def seg_loop(tag, joint):
        n = 6 if joint else 4
        issue(0, joint); issue(1, joint)
        e("s_sub_u32 s43, s43, 1")
        e.label("K2_LOOP%s" % tag)
        for i in range(4):
            issue(i + 2, joint)
            e("s_waitcnt lgkmcnt(%d)" % (2 * n))
            mm(i, joint)
        e("v_subrev_u32 v5, 256, v5")
        e("v_subrev_u32 v6, 384, v6")
        e("s_sub_u32 s43, s43, 1")
        e("s_cmp_lg_u32 s43, 0")
        e("s_cbranch_scc1 K2_LOOP%s" % tag)
        for i in range(4):
            if i < 2:
                issue(i + 2, joint)
            e("s_waitcnt lgkmcnt(%d)" % (n * min(2, 3 - i)))
            mm(i, joint)
        e("v_subrev_u32 v5, 256, v5")
        e("v_subrev_u32 v6, 384, v6")

    def wr(acc, slot):
        e("ds_write_b128 v178, %s offset:%d" % (vr(acc, 4), slot * 2048))
        e("ds_write_b128 v178, %s offset:%d" % (vr(acc + 4, 4), slot * 2048 + 1024))

    def rd_add(slots):
        for k, sl in enumerate(slots):
            e("ds_read_b128 %s, v178 offset:%d" % (vr(64 + 8 * k, 4), sl * 2048))
            e("ds_read_b128 %s, v178 offset:%d" % (vr(68 + 8 * k, 4), sl * 2048 + 1024))
        e("s_waitcnt lgkmcnt(0)")
        for k in range(len(slots)):
            for i in range(8):
                e("v_add_f32 v%d, v%d, v%d" % (ACC + i, ACC + i, 64 + 8 * k + i))

    seg_loop("J", True)
    e("s_cmp_ge_u32 s48, 2")
    e("s_cbranch_scc1 K2_CD")
    e.nop(8)
    e("s_cmp_eq_u32 s48, 1")
    e("s_cbranch_scc1 K2_B")
    wr(ACQ, 0)
    e("s_waitcnt lgkmcnt(0)")
    e("s_barrier")
    rd_add([1, 2])
    e("s_branch K2_EPI")
    e.label("K2_B")
    wr(ACC, 1)
    for i in range(8):
        e("v_mov_b32 v%d, v%d" % (ACC + i, ACQ + i))
    e("s_waitcnt lgkmcnt(0)")
    e("s_barrier")
    rd_add([0, 3])
    e("s_branch K2_EPI")
    e.label("K2_CD")
    e("s_mov_b32 s43, 4")
    e("s_cmp_eq_u32 s48, 2")
    e("s_cbranch_scc1 K2_C1")
    e("s_mov_b32 s43, 2")
    e("v_subrev_u32 v5, 512, v5")
    e("v_subrev_u32 v6, 768, v6")
    e.label("K2_C1")
    seg_loop("S1", False)
    e.nop(8)
    e("s_cmp_eq_u32 s48, 2")
    e("s_cbranch_scc1 K2_C2")
    wr(ACC, 4)
    for i in range(8):
        e("v_mov_b32 v%d, v%d" % (ACC + i, ACQ + i))
    e("s_waitcnt lgkmcnt(0)")
    e("s_barrier")
    e("s_branch K2_EPI")
    e.label("K2_C2")
    wr(ACC, 2)
    wr(ACQ, 3)
    for i in range(8):
        e("v_mov_b32 v%d, 0" % (ACC + i))
    e("v_subrev_u32 v5, %d, v60" % (16 * 64))
    e("v_add_u32 v6, %d, v61" % (16 * 96 - 16 * 96))
    e("s_mov_b32 s43, 2")
    seg_loop("S2", False)
    e("s_barrier")
    rd_add([4])
    e.label("K2_EPI")
    stamp(e, 62)
    e("v_mov_b32 v9, v177")
    e("v_sub_u32 v14, %d, v9" % (2 * 2028))
    e("v_add_u32 v14, s40, v14")
    e("ds_read_b64 v[24:25], v14 offset:32")
    e("ds_read_b64 v[26:27], v14")
    e("s_waitcnt vmcnt(0) lgkmcnt(0)")
    e("v_lshlrev_b32 v7, 16, v176")
    for T in range(2):
        A = ACC + 4 * T
        U = 24 + 2 * T
        Xr = 10 + 2 * T
        e("v_and_b32 v32, s47, v%d" % (U + 1))
        e("v_lshlrev_b32 v33, 16, v%d" % (U + 1))
        e("v_and_b32 v34, s47, v%d" % U)
        e("v_lshlrev_b32 v35, 16, v%d" % U)
        for i in range(4):
            e("v_mul_f32 v%d, v%d, v7" % (32 + i, 32 + i))
        e("v_cvt_pk_bf16_f32 v36, v32, v33")
        e("v_cvt_pk_bf16_f32 v37, v34, v35")
        e("v_cvt_pk_bf16_f32 v38, v%d, v%d" % (A, A + 1))
        e("v_cvt_pk_bf16_f32 v39, v%d, v%d" % (A + 2, A + 3))
        e("v_lshlrev_b32 v32, 16, v36")
        e("v_and_b32 v33, s47, v36")
        e("v_lshlrev_b32 v34, 16, v37")
        e("v_and_b32 v35, s47, v37")
        e("v_lshlrev_b32 v40, 16, v38")
        e("v_and_b32 v41, s47, v38")
        e("v_lshlrev_b32 v42, 16, v39")
        e("v_and_b32 v43, s47, v39")
        for i in range(4):
            e("v_add_f32 v%d, v%d, v%d" % (32 + i, 32 + i, 40 + i))
        e("v_cvt_pk_bf16_f32 v36, v32, v33")
        e("v_cvt_pk_bf16_f32 v37, v34, v35")
        e("v_lshlrev_b32 v32, 16, v36")
        e("v_and_b32 v33, s47, v36")
        e("v_lshlrev_b32 v34, 16, v37")
        e("v_and_b32 v35, s47, v37")
        e("v_lshlrev_b32 v40, 16, v%d" % Xr)
        e("v_and_b32 v41, s47, v%d" % Xr)
        e("v_lshlrev_b32 v42, 16, v%d" % (Xr + 1))
        e("v_and_b32 v43, s47, v%d" % (Xr + 1))
        for i in range(4):
            e("v_add_f32 v%d, v%d, v%d" % (32 + i, 32 + i, 40 + i))
        e("v_cvt_pk_bf16_f32 v%d, v32, v33" % (44 + 2 * T))
        e("v_cvt_pk_bf16_f32 v%d, v34, v35" % (45 + 2 * T))
        e("buffer_store_dwordx2 %s, v9, s[20:23], s45 offen offset:%d" % (vr(44 + 2 * T, 2), 32 * T))
    if "stamp" in OPTS:
        e("s_waitcnt vmcnt(0)")
        stamp(e, 62)
    endpgm(e, 1)
    e.label("K2_PACK")
    if "nopk" in OPTS: e("s_branch K2_END")
    e("s_load_dwordx2 s[8:9], s[0:1], 64")
    e("s_load_dwordx2 s[10:11], s[0:1], 80")
    e("s_sub_u32 s20, s2, %d" % K2_CONV)
    e("s_lshl_b32 s20, s20, 3")
    e("s_add_u32 s20, s20, s3")
    e("s_waitcnt lgkmcnt(0)")
    srd(e, 12, 4, 5, WS_WP, 2 * W1P_SZ)
    srd(e, 24, 8, 9, 0, D * F * 2)
    srd(e, 28, 10, 11, 0, D * F * 2)
    PRS = 192
    e("v_lshrrev_b32 v3, 3, v2")
    e("v_and_b32 v4, 7, v2")
    e("v_lshlrev_b32 v5, 4, v4")
    e("s_mov_b32 s21, 3584")
    e("v_mul_lo_u32 v6, v3, s21")
    e("v_add_u32 v6, v6, v5")
    e("v_mul_u32_u24 v7, 896, v3")
    e("v_add_u32 v7, v7, v5")
    e("s_mul_i32 s22, s3, %d" % (64 * PRS))
    e("v_mul_u32_u24 v8, %d, v3" % PRS)
    e("v_add_u32 v8, v8, v5")
    e("v_add_u32 v8, s22, v8")
    e("v_and_b32 v9, 15, v2")
    e("v_lshrrev_b32 v10, 2, v9")
    e("v_lshrrev_b32 v11, 5, v2")
    e("v_lshl_add_u32 v10, v11, 3, v10")
    e("v_mul_u32_u24 v10, %d, v10" % PRS)
    e("v_and_b32 v11, 3, v9")
    e("v_lshl_add_u32 v10, v11, 3, v10")
    e("v_bfe_u32 v11, v2, 4, 1")
    e("v_lshl_add_u32 v10, v11, 5, v10")
    e("v_add_u32 v10, s22, v10")
    e("v_lshrrev_b32 v11, 5, v2")
    e("v_mul_u32_u24 v11, %d, v11" % (4 * PRS))
    e("v_sub_u32 v12, v10, v11")
    e("v_lshlrev_b32 v11, 4, v2")
    e("s_cmp_ge_u32 s20, 196")
    e("s_cbranch_scc1 K2_PKA2")
    e("s_mul_hi_u32 s32, s20, 0x%x" % ((2**32 + 27) // 28))
    e("s_mul_i32 s33, s32, 28")
    e("s_sub_u32 s33, s20, s33")
    e("s_mul_i32 s34, s32, %d" % (64 * 3584))
    e("s_lshl_b32 s35, s33, 7")
    e("s_add_u32 s34, s34, s35")
    for i in range(8):
        e("buffer_load_dwordx4 %s, v6, s[24:27], s34 offen" % vr(16 + 4 * i, 4))
        e("s_add_u32 s34, s34, %d" % (8 * 3584))
    e("s_mul_i32 s36, s33, %d" % (2 * 28 * 1024))
    e("s_lshl_b32 s37, s32, 12")
    e("s_add_u32 s36, s36, s37")
    e("s_mov_b32 s38, %d" % (28 * 1024))
    e("v_mov_b32 v13, v10")
    e("s_mov_b32 s39, %d" % (4 * PRS))
    e("s_branch K2_PKA3")
    e.label("K2_PKA2")
    e("s_sub_u32 s41, s20, 196")
    e("s_mul_hi_u32 s32, s41, 0x%x" % ((2**32 + 6) // 7))
    e("s_mul_i32 s33, s32, 7")
    e("s_sub_u32 s33, s41, s33")
    e("v_mov_b32 v13, v12")
    e("s_mov_b32 s39, %d" % (8 * PRS))
    e("s_mul_i32 s34, s32, %d" % (64 * 896))
    e("s_lshl_b32 s35, s33, 7")
    e("s_add_u32 s34, s34, s35")
    for i in range(8):
        e("buffer_load_dwordx4 %s, v7, s[28:31], s34 offen" % vr(16 + 4 * i, 4))
        e("s_add_u32 s34, s34, %d" % (8 * 896))
    e("s_mul_i32 s36, s33, %d" % (2 * 112 * 1024))
    e("s_lshl_b32 s37, s32, 12")
    e("s_add_u32 s36, s36, s37")
    e("s_add_u32 s36, s36, %d" % W1P_SZ)
    e("s_mov_b32 s38, %d" % (112 * 1024))
    e.label("K2_PKA3")
    e("s_cmp_ge_u32 s20, 136")
    e("s_cbranch_scc1 K2_PKB0")
    e("s_add_u32 s41, s20, 60")
    e("s_mul_hi_u32 s32, s41, 0x%x" % ((2**32 + 6) // 7))
    e("s_mul_i32 s33, s32, 7")
    e("s_sub_u32 s33, s41, s33")
    e("s_mul_i32 s34, s32, %d" % (64 * 896))
    e("s_lshl_b32 s35, s33, 7")
    e("s_add_u32 s34, s34, s35")
    for i in range(8):
        e("buffer_load_dwordx4 %s, v7, s[28:31], s34 offen" % vr(48 + 4 * i, 4))
        e("s_add_u32 s34, s34, %d" % (8 * 896))
    e("s_mul_i32 s40, s33, %d" % (2 * 112 * 1024))
    e("s_lshl_b32 s37, s32, 12")
    e("s_add_u32 s40, s40, s37")
    e("s_add_u32 s40, s40, %d" % W1P_SZ)
    e("s_waitcnt vmcnt(8)")
    e("s_branch K2_PKB1")
    e.label("K2_PKB0")
    e("s_waitcnt vmcnt(0)")
    e.label("K2_PKB1")

    def pack_unit(src, sdst, scs, va, vb):
        for i in range(8):
            e("ds_write_b128 v8, %s offset:%d" % (vr(src + 4 * i, 4), i * 8 * PRS))
        for c in range(2):
            for j in range(4):
                b = 80 + 4 * (4 * c + j)
                o = j * 16 * PRS + 64 * c
                e("ds_read_b64_tr_b16 %s, v%d offset:%d" % (vr(b, 2), va, o))
                e("ds_read_b64_tr_b16 %s, v%d offset:%d" % (vr(b + 2, 2), vb, o))
        for c in range(2):
            for j in range(4):
                b = 80 + 4 * (4 * c + j)
                e("s_waitcnt lgkmcnt(%d)" % (14 - 2 * (4 * c + j)))
                e("buffer_store_dwordx4 %s, v11, s[12:15], s%d offen offset:%d" % (vr(b, 4), sdst, j * 1024))
            if c == 0:
                e("s_add_u32 s%d, s%d, %s" % (sdst, sdst, scs))

    e("v_add_u32 v14, s39, v13")
    e("v_add_u32 v15, %d, v12" % (8 * PRS))
    pack_unit(16, 36, "s38", 13, 14)
    e("s_cmp_ge_u32 s20, 136")
    e("s_cbranch_scc1 K2_END")
    e("s_waitcnt vmcnt(8)")
    e("s_waitcnt vmcnt(0)")
    pack_unit(48, 40, "%d" % (112 * 1024), 12, 15)
    e.label("K2_END")
    endpgm(e, 1)
    e.label("K2_EXIT")
    e("s_endpgm")
    WGT_IDX[0] += 1
    return kernel_desc(name, 184)


K3_GRID = 224
A_RS = 192
AT = 2048
K3_LDS = AT + 448 * A_RS


def gen_k3(e):
    name = "k3_kernel"
    kernel_header(e, name)
    e("s_cmp_ge_u32 s2, %d" % K3_GRID)
    e("s_cbranch_scc1 K3_EXIT")
    e("s_load_dwordx2 s[4:5], s[0:1], 112")
    e("s_load_dwordx2 s[6:7], s[0:1], 72")
    e("v_lshrrev_b32 v1, 6, v0")
    e("v_and_b32 v2, 63, v0")
    e("s_nop 0")
    e("v_readfirstlane_b32 s3, v1")
    e("s_waitcnt lgkmcnt(0)")
    stamp_init(e, 0)
    stamp(e, 0)
    srd(e, 8, 4, 5, WS_HT, TSZ)
    srd(e, 12, 4, 5, WS_WP, W1P_SZ)
    srd(e, 16, 4, 5, WS_H1, 64 * 112 * 1024)
    srd(e, 20, 6, 7, 0, F * 2)
    e("s_and_b32 s24, s2, 31")
    e("s_lshr_b32 s25, s2, 5")
    e("s_lshl_b32 s26, s25, 3")
    e("s_add_u32 s26, s26, s3")
    e("s_mov_b32 s47, 0xffff0000")
    e("v_lshrrev_b32 v3, 3, v2")
    e("v_and_b32 v4, 7, v2")
    e("v_lshlrev_b32 v5, 12, v3")
    e("v_lshl_add_u32 v5, v4, 4, v5")
    e("s_lshl_b32 s27, s3, 15")
    e("s_lshl_b32 s28, s24, 7")
    e("s_add_u32 s27, s27, s28")
    HR = 8
    for i in range(7):
        e("buffer_load_dwordx4 %s, v5, s[8:11], s27 offen" % vr(HR + 4 * i, 4))
        e("s_add_u32 s27, s27, 0x%x" % (64 * 4096))
    WF = 144
    e("v_lshlrev_b32 v6, 4, v2")
    e("s_mul_i32 s29, s26, %d" % (28 * 1024))
    e("v_lshrrev_b32 v7, 5, v2")
    e("v_lshlrev_b32 v7, 3, v7")
    e("s_lshl_b32 s30, s26, 6")
    pl = []
    for s in range(28):
        it = []
        if s % 4 == 0 and s > 0:
            it.append("s_add_u32 s29, s29, 4096")
        it.append("buffer_load_dwordx4 %s, v6, s[12:15], s29 offen offset:%d" % (vr(WF + 4 * s, 4), (s % 4) * 1024))
        pl.append(it)
    for q in range(4):
        pl.append(["buffer_load_dwordx2 %s, v7, s[20:23], s30 offen offset:%d" % (vr(136 + 2 * q, 2), 16 * q)])

    def pend(n):
        for _ in range(n):
            if pl:
                for x in pl.pop(0):
                    e(x)

    def issued():
        return 32 - len(pl)
    pend(8)
    e("v_mul_u32_u24 v57, %d, v3" % A_RS)
    e("v_lshl_add_u32 v57, v4, 4, v57")
    e("s_mul_i32 s38, s3, %d" % (8 * A_RS))
    e("s_add_u32 s38, s38, %d" % AT)
    e("v_add_u32 v57, s38, v57")
    e("v_add_u32 v62, %d, v57" % (4 * 64 * A_RS))
    e("v_and_b32 v58, 15, v2")
    e("v_lshrrev_b32 v59, 2, v58")
    e("v_lshrrev_b32 v60, 5, v2")
    e("v_lshl_add_u32 v59, v60, 3, v59")
    e("v_mul_u32_u24 v59, %d, v59" % A_RS)
    e("v_and_b32 v60, 3, v58")
    e("v_lshl_add_u32 v59, v60, 3, v59")
    e("v_bfe_u32 v60, v2, 4, 1")
    e("v_lshl_add_u32 v59, v60, 5, v59")
    e("s_and_b32 s31, s3, 1")
    e("s_lshr_b32 s32, s3, 1")
    e("s_lshl_b32 s33, s31, 6")
    e("s_mul_i32 s34, s32, %d" % (16 * A_RS))
    e("s_add_u32 s33, s33, s34")
    e("s_add_u32 s33, s33, %d" % AT)
    e("v_add_u32 v59, s33, v59")
    e("v_add_u32 v61, %d, v59" % (4 * 4 * 16 * A_RS))
    e("s_mul_i32 s35, s31, %d" % (28 * 1024))
    e("s_lshl_b32 s36, s32, 10")
    e("s_add_u32 s35, s35, s36")
    e("s_add_u32 s35, s35, %d" % AT)
    e("v_add_u32 v63, s35, v6")
    e("v_and_b32 v56, 31, v2")
    e("v_lshlrev_b32 v56, 3, v56")
    e("s_lshl_b32 s36, s31, 10")
    e("v_add_u32 v56, s36, v56")
    e("s_lshl_b32 s37, s32, 8")
    e("v_add_u32 v55, s37, v56")
    e("s_mov_b32 s40, 0x3f803f80")
    e("s_mov_b32 s41, 0x00003f80")
    e("s_mov_b32 s42, 0x3f800000")
    e("s_waitcnt vmcnt(8)")
    stamp(e, 0)
    for i in range(7):
        e("ds_write_b128 v%d, %s offset:%d" % (57 if i < 4 else 62, vr(HR + 4 * i, 4), (i & 3) * 64 * A_RS))
    pend(4)
    for i in range(4):
        e("v_mov_b32 v%d, 0" % (40 + i))
    e("s_waitcnt lgkmcnt(0)")
    e("s_barrier")
    stamp(e, 0)
    RF = 8
    for j in range(7):
        o = (j & 3) * 4 * 16 * A_RS
        va = 59 if j < 4 else 61
        e("ds_read_b64_tr_b16 %s, v%d offset:%d" % (vr(RF + 4 * j, 2), va, o))
        e("ds_read_b64_tr_b16 %s, v%d offset:%d" % (vr(RF + 4 * j + 2, 2), va, o + 4 * A_RS))
    for j in range(7):
        e("s_waitcnt lgkmcnt(%d)" % (12 - 2 * j))
        pend(1)
        for k in range(4):
            R = RF + 4 * j + k
            if "nodots" in OPTS:
                e("v_lshlrev_b32 v44, 16, v%d" % R)
                e("v_and_b32 v45, s47, v%d" % R)
                e("v_add_f32 v40, v40, v44")
                e("v_add_f32 v41, v41, v45")
                e("v_fmac_f32 v42, v44, v44")
                e("v_fmac_f32 v43, v45, v45")
            else:
                e("v_dot2_f32_bf16 v%d, v%d, s40, v%d" % (40 + (k & 1), R, 40 + (k & 1)))
                e("v_dot2_f32_bf16 v%d, v%d, v%d, v%d" % (42 + (k & 1), R, R, 42 + (k & 1)))
    e.nop(4)
    e("v_add_f32 v40, v40, v41")
    e("v_add_f32 v41, v42, v43")
    e("v_mov_b32 v42, v40")
    e("v_mov_b32 v43, v41")
    e.nop(1)
    e("v_permlane32_swap_b32 v40, v42")
    e("v_permlane32_swap_b32 v41, v43")
    e("v_add_f32 v40, v40, v42")
    e("v_add_f32 v41, v41, v43")
    e("ds_write_b64 v55, v[40:41]")
    e("s_waitcnt lgkmcnt(0)")
    e("s_barrier")
    stamp(e, 0)
    for w in range(4):
        e("ds_read_b64 %s, v56 offset:%d" % (vr(44 + 2 * w, 2), 256 * w))
    e("s_mov_b32 s36, 0x%x" % f32bits(1.0 / 448.0))
    e("s_mov_b32 s37, 0x%x" % f32bits(1e-5))
    e("s_waitcnt lgkmcnt(0)")
    e("v_add_f32 v40, v44, v46")
    e("v_add_f32 v41, v45, v47")
    e("v_add_f32 v42, v48, v50")
    e("v_add_f32 v43, v49, v51")
    e("v_add_f32 v40, v40, v42")
    e("v_add_f32 v41, v41, v43")
    e("v_mul_f32 v40, s36, v40")
    e("v_mul_f32 v41, s36, v41")
    e("v_fma_f32 v41, -v40, v40, v41")
    e("v_max_f32 v41, 0, v41")
    rb1(e, 40, 40)
    rb1(e, 41, 41)
    e("v_add_f32 v41, s37, v41")
    rb1(e, 41, 41)
    e("v_sqrt_f32 v41, v41")
    e("v_sub_f32 v40, 0, v40")
    rb1(e, 41, 41)
    e("v_rcp_f32 v41, v41")
    for j in range(7):
        R = RF + 4 * j
        T = 44 + 8 * (j & 1)
        for k in range(4):
            if "nodotn" in OPTS:
                e("v_lshlrev_b32 v%d, 16, v%d" % (T + 2 * k, R + k))
                e("v_and_b32 v%d, s47, v%d" % (T + 2 * k + 1, R + k))
                e("v_add_f32 v%d, v%d, v40" % (T + 2 * k, T + 2 * k))
                e("v_add_f32 v%d, v%d, v40" % (T + 2 * k + 1, T + 2 * k + 1))
            else:
                e("v_dot2_f32_bf16 v%d, v%d, s41, v40" % (T + 2 * k, R + k))
                e("v_dot2_f32_bf16 v%d, v%d, s42, v40" % (T + 2 * k + 1, R + k))
        for k in range(4):
            e("v_cvt_pk_bf16_f32 v%d, v%d, v%d" % (R + k, T + 2 * k, T + 2 * k + 1))
        for k in range(4):
            e("v_lshlrev_b32 v%d, 16, v%d" % (T + 2 * k, R + k))
            e("v_mul_f32 v%d, v%d, v41" % (T + 2 * k, T + 2 * k))
            e("v_and_b32 v%d, s47, v%d" % (T + 2 * k + 1, R + k))
            e("v_mul_f32 v%d, v%d, v41" % (T + 2 * k + 1, T + 2 * k + 1))
        for k in range(4):
            e("v_cvt_pk_bf16_f32 v%d, v%d, v%d" % (R + k, T + 2 * k, T + 2 * k + 1))
        e("ds_write_b128 v63, %s offset:%d" % (vr(R, 4), 4096 * j))
        if j % 2 == 1: pend(1)
    ACC = 72
    for i in range(32):
        e("v_mov_b32 v%d, 0" % (ACC + i))
    e("v_add_u32 v59, %d, v6" % AT)
    e("s_waitcnt lgkmcnt(0)")
    e("s_barrier")
    stamp(e, 0)
    BF = [104, 108, 112, 116]

    def issue(t, s):
        e("ds_read_b128 %s, v59 offset:%d" % (vr(BF[s & 3], 4), (t * 28 + s) * 1024))

    BI = 40
    cgel = -2.0 * 0.7978845608028654 * 1.4426950408889634

    def epi(t):
        o = []
        A = ACC + 16 * t
        for hh in range(2):
            ps = range(4 * hh, 4 * hh + 4)
            for p in ps:
                o.append("v_cvt_pk_bf16_f32 v%d, v%d, v%d" % (24 + (p & 3), A + 2 * p, A + 2 * p + 1))
            for p in ps:
                x = 8 + 2 * (p & 3)
                o.append("v_dot2_f32_bf16 v%d, v%d, s41, v%d" % (x, 24 + (p & 3), BI + 2 * p))
                o.append("v_dot2_f32_bf16 v%d, v%d, s42, v%d" % (x + 1, 24 + (p & 3), BI + 2 * p + 1))
            o.append("s_nop 1")
            for p in ps:
                x = 8 + 2 * (p & 3)
                o.append("v_cvt_pk_bf16_f32 v%d, v%d, v%d" % (24 + (p & 3), x, x + 1))
            for p in ps:
                x = 8 + 2 * (p & 3)
                o.append("v_lshlrev_b32 v%d, 16, v%d" % (x, 24 + (p & 3)))
                o.append("v_mul_f32 v%d, v%d, v%d" % (x + 8, x, x))
                o.append("v_and_b32 v%d, s47, v%d" % (x + 1, 24 + (p & 3)))
                o.append("v_mul_f32 v%d, v%d, v%d" % (x + 9, x + 1, x + 1))
            for i in range(8):
                o.append("v_fma_f32 v%d, v%d, s44, v28" % (16 + i, 16 + i))
            for i in range(8):
                o.append("v_mul_f32 v%d, v%d, v%d" % (16 + i, 16 + i, 8 + i))
            for i in range(8):
                o.append("v_exp_f32 v%d, v%d" % (16 + i, 16 + i))
            for i in range(8):
                o.append("v_add_f32 v%d, 1.0, v%d" % (16 + i, 16 + i))
            for i in range(8):
                o.append("v_rcp_f32 v%d, v%d" % (16 + i, 16 + i))
            for i in range(8):
                o.append("v_mul_f32 v%d, v%d, v%d" % (8 + i, 8 + i, 16 + i))
            for p in ps:
                x = 8 + 2 * (p & 3)
                o.append("v_cvt_pk_bf16_f32 v%d, v%d, v%d" % (120 + 8 * t + p, x, x + 1))
            o.append("buffer_store_dwordx4 %s, v6, s[16:19], s48 offen offset:%d" % (vr(120 + 8 * t + 4 * hh, 4), 1024 * hh))
        o.append("s_add_u32 s48, s48, %d" % (112 * 1024))
        return o

    for s in range(3):
        issue(0, s)
    for s in range(28):
        if s + 3 < 28:
            issue(0, s + 3)
        else:
            issue(1, s + 3 - 28)
        pend(1)
        e("s_waitcnt lgkmcnt(3) vmcnt(%d)" % (issued() - (s + 1)))
        a = vr(ACC, 16)
        e("v_mfma_f32_32x32x16_bf16 %s, %s, %s, %s" % (a, vr(WF + 4 * s, 4), vr(BF[s & 3], 4), a))
    e("s_waitcnt vmcnt(0)")
    stamp(e, 0)
    pre = []
    for q in range(4):
        pre.append("v_lshlrev_b32 v%d, 16, v%d" % (40 + 4 * q, 136 + 2 * q))
        pre.append("v_and_b32 v%d, s47, v%d" % (41 + 4 * q, 136 + 2 * q))
        pre.append("v_lshlrev_b32 v%d, 16, v%d" % (42 + 4 * q, 137 + 2 * q))
        pre.append("v_and_b32 v%d, s47, v%d" % (43 + 4 * q, 137 + 2 * q))
    e("s_mov_b32 s44, 0x%x" % f32bits(0.044715 * cgel))
    e("v_mov_b32 v28, 0x%x" % f32bits(cgel))
    e("s_mul_i32 s48, s24, %d" % (2 * 112 * 1024))
    e("s_lshl_b32 s43, s26, 11")
    e("s_add_u32 s48, s48, s43")
    lst = pre + epi(0)
    per = (len(lst) + 26) // 27
    for s in range(28):
        if s + 3 < 28:
            issue(1, s + 3)
        e("s_waitcnt lgkmcnt(%d)" % min(3, 27 - s))
        a = vr(ACC + 16, 16)
        e("v_mfma_f32_32x32x16_bf16 %s, %s, %s, %s" % (a, vr(WF + 4 * s, 4), vr(BF[s & 3], 4), a))
        if s >= 1:
            for _ in range(per):
                if lst: e(lst.pop(0))
    for x in lst:
        e(x)
    e.nop(16)
    stamp(e, 0)
    for x in epi(1):
        e(x)
    if "stamp" in OPTS:
        e("s_waitcnt vmcnt(0)")
        stamp(e, 0)
    e.label("K3_END")
    endpgm(e, 2)
    e.label("K3_EXIT")
    e("s_endpgm")
    WGT_IDX[0] += 1
    return kernel_desc(name, 256)


K4_GRID = 224
P_RS = 272
P_SZ = 64 * P_RS
H_RS = 192
HT_SZ = 64 * H_RS
K4_LDS = 4 * P_SZ + HT_SZ


def gen_k4(e):
    name = NAME + "_kernel"
    kernel_header(e, name)
    e("s_cmp_ge_u32 s2, %d" % K4_GRID)
    e("s_cbranch_scc1 K4_EXIT")
    e("s_load_dwordx2 s[4:5], s[0:1], 112")
    e("s_load_dwordx2 s[6:7], s[0:1], 88")
    e("s_load_dwordx2 s[44:45], s[0:1], 96")
    e("v_lshrrev_b32 v1, 6, v0")
    e("v_and_b32 v2, 63, v0")
    e("s_nop 0")
    e("v_readfirstlane_b32 s3, v1")
    e("s_waitcnt lgkmcnt(0)")
    stamp_init(e, 200)
    stamp(e, 200)
    srd(e, 8, 4, 5, WS_H1, 64 * 112 * 1024)
    srd(e, 12, 4, 5, WS_WP + W1P_SZ, W1P_SZ)
    srd(e, 16, 4, 5, WS_HT, TSZ)
    srd(e, 20, 6, 7, 0, D * 2)
    srd(e, 24, 44, 45, 0, TSZ)
    e("s_and_b32 s28, s2, 31")
    e("s_lshr_b32 s29, s2, 5")
    e("s_mov_b32 s47, 0xffff0000")
    e("v_lshlrev_b32 v6, 4, v2")
    e("s_mul_i32 s30, s3, %d" % (28 * 1024))
    e("s_mul_i32 s31, s28, %d" % (2 * 112 * 1024))
    e("s_add_u32 s31, s31, s30")
    e("s_add_u32 s32, s31, %d" % (112 * 1024))
    e("s_mul_i32 s33, s29, %d" % (2 * 112 * 1024))
    e("s_add_u32 s33, s33, s30")
    e("s_add_u32 s34, s33, %d" % (112 * 1024))
    RING = 7
    RB = 80

    def ld(s):
        b = RB + 16 * (s % RING)
        o = (s % 4) * 1024
        e("buffer_load_dwordx4 %s, v6, s[12:15], s33 offen offset:%d" % (vr(b, 4), o))
        e("buffer_load_dwordx4 %s, v6, s[8:11], s31 offen offset:%d" % (vr(b + 8, 4), o))
        e("buffer_load_dwordx4 %s, v6, s[12:15], s34 offen offset:%d" % (vr(b + 4, 4), o))
        e("buffer_load_dwordx4 %s, v6, s[8:11], s32 offen offset:%d" % (vr(b + 12, 4), o))
        if s % 4 == 3:
            for r in (31, 32, 33, 34):
                e("s_add_u32 s%d, s%d, 4096" % (r, r))

    e("v_lshrrev_b32 v3, 3, v0")
    e("v_and_b32 v4, 7, v0")
    e("v_lshlrev_b32 v5, 12, v3")
    e("v_lshl_add_u32 v5, v4, 4, v5")
    e("s_lshl_b32 s35, s29, 18")
    e("s_lshl_b32 s36, s28, 7")
    e("s_add_u32 s35, s35, s36")
    e("buffer_load_dwordx4 v[8:11], v5, s[16:19], s35 offen")
    e("s_add_u32 s35, s35, 0x%x" % (32 * 4096))
    e("buffer_load_dwordx4 v[12:15], v5, s[16:19], s35 offen")
    e("v_lshrrev_b32 v204, 4, v2")
    e("v_lshlrev_b32 v204, 4, v204")
    e("s_lshl_b32 s40, s29, 7")
    e("buffer_load_dwordx4 v[192:195], v204, s[20:23], s40 offen")
    e("buffer_load_dwordx4 v[196:199], v204, s[20:23], s40 offen offset:64")
    for s in range(RING):
        ld(s)
    ACC = 16
    for i in range(64):
        e("v_mov_b32 v%d, 0" % (ACC + i))
    e("v_mul_u32_u24 v7, %d, v3" % H_RS)
    e("v_lshl_add_u32 v7, v4, 4, v7")
    e("s_waitcnt vmcnt(%d)" % (4 * RING))
    e("ds_write_b128 v7, v[8:11] offset:%d" % (0))
    e("ds_write_b128 v7, v[12:15] offset:%d" % (32 * H_RS))
    for s in range(28):
        outstanding_after = min(28 - 1 - s, RING - 1) * 4
        e("s_waitcnt vmcnt(%d)" % outstanding_after)
        if s in (0, 7, 14, 21): stamp(e, 200)
        b = RB + 16 * (s % RING)
        for dl in range(2):
            for t in range(2):
                a = vr(ACC + 16 * (2 * dl + t), 16)
                e("v_mfma_f32_32x32x16_bf16 %s, %s, %s, %s" % (a, vr(b + 4 * dl, 4), vr(b + 8 + 4 * t, 4), a))
        if s + RING < 28:
            ld(s + RING)
    stamp(e, 200)
    e("v_and_b32 v3, 31, v2")
    e("v_mul_u32_u24 v3, %d, v3" % P_RS)
    e("v_lshrrev_b32 v4, 5, v2")
    e("v_lshl_add_u32 v3, v4, 4, v3")
    e("s_mul_i32 s37, s3, %d" % P_SZ)
    e("v_add_u32 v3, s37, v3")
    e.nop(12)
    for dl in range(2):
        for t in range(2):
            for q in range(4):
                e("ds_write_b128 v3, %s offset:%d" % (vr(ACC + 16 * (2 * dl + t) + 4 * q, 4), HT_SZ + t * 32 * P_RS + dl * 128 + q * 32))
    e("s_waitcnt lgkmcnt(0)")
    e("s_barrier")
    e("v_and_b32 v3, 15, v2")
    e("v_lshrrev_b32 v4, 4, v2")
    e("s_lshl_b32 s38, s3, 4")
    e("v_add_u32 v5, s38, v3")
    e("v_mul_u32_u24 v7, %d, v5" % P_RS)
    e("v_lshl_add_u32 v7, v4, 5, v7")
    e("v_lshrrev_b32 v8, 2, v3")
    e("v_lshl_add_u32 v8, v4, 3, v8")
    e("v_mul_u32_u24 v8, %d, v8" % H_RS)
    e("v_and_b32 v9, 3, v3")
    e("v_lshl_add_u32 v8, v9, 3, v8")
    e("s_lshl_b32 s39, s3, 5")
    e("v_add_u32 v8, s39, v8")
    e("v_lshlrev_b32 v9, 4, v4")
    e("s_mov_b32 s41, 896")
    e("v_mul_lo_u32 v10, v5, s41")
    e("v_add_u32 v10, v10, v9")
    e("s_mul_i32 s42, s28, %d" % (64 * 896))
    e("s_add_u32 s42, s42, s40")
    for hf in range(2):
        for w in range(4):
            e("ds_read_b128 %s, v7 offset:%d" % (vr(16 + 8 * w, 4), HT_SZ + w * P_SZ + hf * 128))
            e("ds_read_b128 %s, v7 offset:%d" % (vr(20 + 8 * w, 4), HT_SZ + w * P_SZ + hf * 128 + 16))
        e("ds_read_b64_tr_b16 v[48:49], v8 offset:%d" % (hf * 32 * H_RS))
        e("ds_read_b64_tr_b16 v[50:51], v8 offset:%d" % (hf * 32 * H_RS + 4 * H_RS))
        e("s_waitcnt lgkmcnt(0) vmcnt(0)")
        for i in range(8):
            e("v_add_f32 v%d, v%d, v%d" % (16 + i, 16 + i, 24 + i))
            e("v_add_f32 v%d, v%d, v%d" % (32 + i, 32 + i, 40 + i))
            e("v_add_f32 v%d, v%d, v%d" % (16 + i, 16 + i, 32 + i))
        BB = 192 + 4 * hf
        for p in range(4):
            e("v_cvt_pk_bf16_f32 v24, v%d, v%d" % (16 + 2 * p, 17 + 2 * p))
            e("v_and_b32 v25, s47, v24")
            e("v_lshlrev_b32 v24, 16, v24")
            e("v_lshlrev_b32 v26, 16, v%d" % (BB + p))
            e("v_and_b32 v27, s47, v%d" % (BB + p))
            e("v_add_f32 v24, v24, v26")
            e("v_add_f32 v25, v25, v27")
            e("v_cvt_pk_bf16_f32 v24, v24, v25")
            e("v_and_b32 v25, s47, v24")
            e("v_lshlrev_b32 v24, 16, v24")
            e("v_lshlrev_b32 v26, 16, v%d" % (48 + p))
            e("v_and_b32 v27, s47, v%d" % (48 + p))
            e("v_add_f32 v24, v24, v26")
            e("v_add_f32 v25, v25, v27")
            e("v_cvt_pk_bf16_f32 v%d, v24, v25" % (52 + 4 * hf + p))
        e("buffer_store_dwordx4 %s, v10, s[24:27], s42 offen offset:%d" % (vr(52 + 4 * hf, 4), 64 * hf))
    e("s_waitcnt vmcnt(0)")
    stamp(e, 200)
    e.label("K4_END")
    endpgm(e, 3)
    e.label("K4_EXIT")
    e("s_endpgm")
    WGT_IDX[0] += 1
    return kernel_desc(name, 208)


def kernels():
    return [
        ("k2_kernel", gen_k2, K2_GRID, 512, K2_LDS),
        ("k3_kernel", gen_k3, K3_GRID, 512, K3_LDS),
        (NAME + "_kernel", gen_k4, K4_GRID, 256, K4_LDS),
    ]
```

```python
import sys, struct, os
OPTS = os.environ.get("GENOPTS", "").split(",")

NAME = "sequential_preLN__ssm_conv_s4d__dense_activation_gelu__prompt"
L = 2048; D = 448; N = 256; F = 1792

WS_UT = 0x0
WS_XT = 0x200000
WS_K = 0x400000
KCH = 15360
KQS = 3072
WS_HT = 0xC00000
WS_H1 = 0x1000000
WS_WP = 0x1800000
W1P_SZ = 56 * 28 * 1024
TSZ = D * L * 2


def f32bits(x):
    return struct.unpack("<I", struct.pack("<f", x))[0]


class E:
    def __init__(self):
        self.lines = []

    def __call__(self, s):
        self.lines.append("    " + s)

    def label(self, s):
        self.lines.append(s + ":")

    def c(self, s):
        self.lines.append("    ; " + s)

    def raw(self, s):
        self.lines.append(s)

    def nop(self, n):
        while n > 0:
            k = min(n, 16)
            self("s_nop %d" % (k - 1))
            n -= k

    def text(self):
        return "\n".join(self.lines) + "\n"


def vr(a, n=1):
    return "v%d" % a if n == 1 else "v[%d:%d]" % (a, a + n - 1)


def sr(a, n=1):
    return "s%d" % a if n == 1 else "s[%d:%d]" % (a, a + n - 1)


def srd(e, dst, base_lo, base_hi, off, size):
    if off:
        e("s_add_u32 s%d, s%d, 0x%x" % (dst, base_lo, off))
        e("s_addc_u32 s%d, s%d, 0" % (dst + 1, base_hi))
    else:
        e("s_mov_b32 s%d, s%d" % (dst, base_lo))
        e("s_mov_b32 s%d, s%d" % (dst + 1, base_hi))
    e("s_and_b32 s%d, s%d, 0xffff" % (dst + 1, dst + 1))
    e("s_mov_b32 s%d, 0x%x" % (dst + 2, size))
    e("s_mov_b32 s%d, 0x00020000" % (dst + 3))


def reduce64(e, v, t):
    e.nop(2)
    e("v_add_f32_dpp v%d, v%d, v%d quad_perm:[1,0,3,2] row_mask:0xf bank_mask:0xf" % (v, v, v))
    e.nop(2)
    e("v_add_f32_dpp v%d, v%d, v%d quad_perm:[2,3,0,1] row_mask:0xf bank_mask:0xf" % (v, v, v))
    e.nop(2)
    e("v_add_f32_dpp v%d, v%d, v%d row_half_mirror row_mask:0xf bank_mask:0xf" % (v, v, v))
    e.nop(2)
    e("v_add_f32_dpp v%d, v%d, v%d row_mirror row_mask:0xf bank_mask:0xf" % (v, v, v))
    e("v_mov_b32 v%d, v%d" % (t, v))
    e.nop(2)
    e("v_permlane16_swap_b32 v%d, v%d" % (v, t))
    e("v_add_f32 v%d, v%d, v%d" % (v, v, t))
    e("v_mov_b32 v%d, v%d" % (t, v))
    e.nop(2)
    e("v_permlane32_swap_b32 v%d, v%d" % (v, t))
    e("v_add_f32 v%d, v%d, v%d" % (v, v, t))


def rb1(e, dst, src):
    e("v_cvt_pk_bf16_f32 v%d, v%d, v%d" % (dst, src, src))
    e("v_lshlrev_b32 v%d, 16, v%d" % (dst, dst))


STAMP_WG = int(os.environ.get("STAMPWG", "0"))
def stamp_init(e, vtmp):
    if "stamp" not in OPTS: return
    e("s_load_dwordx2 s[90:91], s[0:1], 104")
    e("s_waitcnt lgkmcnt(0)")
    e("s_mov_b32 s92, s90")
    e("s_and_b32 s93, s91, 0xffff")
    e("s_mov_b32 s94, 256")
    e("s_mov_b32 s95, 0x00020000")
    e.stampn = 0

def stamp(e, vtmp):
    if "stamp" not in OPTS: return
    n = e.stampn; e.stampn += 1
    lab = "STP_%d" % len(e.lines)
    e("s_cmp_lg_u32 s2, %d" % STAMP_WG)
    e("s_cbranch_scc1 %s" % lab)
    e("s_cmp_lg_u32 s3, %d" % int(os.environ.get("STAMPWAVE", "0")))
    e("s_cbranch_scc1 %s" % lab)
    e("s_memtime s[96:97]")
    e("s_waitcnt lgkmcnt(0)")
    e("v_mov_b32 v%d, s96" % vtmp)
    e("s_mov_b64 s[98:99], exec")
    e("s_mov_b64 exec, 1")
    e("v_mov_b32 v%d, 0" % (vtmp + 1))
    e("buffer_store_dword v%d, v%d, s[92:95], 0 offen offset:%d" % (vtmp, vtmp + 1, 4 * n))
    e("s_mov_b64 exec, s[98:99]")
    e.label(lab)


WGT_IDX = [0]
def kernel_header(e, name):
    e.raw(".text")
    e.raw(".globl %s" % name)
    e.raw(".p2align 8")
    e.raw(".type %s,@function" % name)
    e.label(name)
    if "wgt" in OPTS:
        e("s_memrealtime s[86:87]")
        e("s_load_dwordx2 s[84:85], s[0:1], 112")
        e("s_waitcnt lgkmcnt(0)")


def endpgm(e, idx):
    if "wgt" in OPTS:
        e("s_waitcnt vmcnt(0)")
        e("s_memrealtime s[88:89]")
        e("s_waitcnt lgkmcnt(0)")
        srd(e, 80, 84, 85, 0x4000000 + idx * 0x100000, 0x100000)
        e("s_mov_b64 exec, 1")
        e("v_mov_b32 v0, s86")
        e("v_mov_b32 v1, s88")
        e("s_lshl_b32 s90, s2, 4")
        e("s_add_u32 s90, s90, s3")
        e("s_lshl_b32 s90, s90, 3")
        e("v_mov_b32 v2, s90")
        e("buffer_store_dwordx2 v[0:1], v2, s[80:83], 0 offen")
    e("s_endpgm")


def kernel_desc(name, vgpr, sgpr=102, accum=None):
    if accum is None:
        accum = (vgpr + 3) // 4 * 4
    return """.section .rodata,"a"
.p2align 6
.amdhsa_kernel %s
  .amdhsa_next_free_vgpr %d
  .amdhsa_next_free_sgpr %d
  .amdhsa_accum_offset %d
  .amdhsa_group_segment_fixed_size 0
  .amdhsa_kernarg_size 120
  .amdhsa_user_sgpr_count 2
  .amdhsa_user_sgpr_kernarg_segment_ptr 1
  .amdhsa_system_sgpr_workgroup_id_x 1
.end_amdhsa_kernel
""" % (name, vgpr, sgpr, accum)


K1_LN = 64
K1_KG = 448
K1_GRID = K1_LN + K1_KG
K1_LDS = 4 * 64 * 288 + 64


def reduce64_multi(e, S, T, n):
    for mod in ("quad_perm:[1,0,3,2]", "quad_perm:[2,3,0,1]", "row_half_mirror", "row_mirror"):
        for r in range(n):
            e("v_add_f32_dpp v%d, v%d, v%d %s row_mask:0xf bank_mask:0xf" % (S + r, S + r, S + r, mod))
    for sw in ("v_permlane16_swap_b32", "v_permlane32_swap_b32"):
        for r in range(n):
            e("v_mov_b32 v%d, v%d" % (T + r, S + r))
        for r in range(n):
            e("%s v%d, v%d" % (sw, S + r, T + r))
        for r in range(n):
            e("v_add_f32 v%d, v%d, v%d" % (S + r, S + r, T + r))


def gen_k1(e):
    name = "k1_kernel"
    kernel_header(e, name)
    e("s_cmp_ge_u32 s2, %d" % K1_GRID)
    e("s_cbranch_scc1 K1_EXIT")
    e("s_load_dwordx2 s[4:5], s[0:1], 112")
    e("v_lshrrev_b32 v1, 6, v0")
    e("v_and_b32 v2, 63, v0")
    e("s_nop 0")
    e("v_readfirstlane_b32 s3, v1")
    e("s_cmp_ge_u32 s2, %d" % K1_KG)
    e("s_cbranch_scc0 K1_KGB")

    e.label("K1_LNB")
    if "noln" in OPTS: e("s_branch K1_END")
    e("s_load_dwordx2 s[6:7], s[0:1], 0")
    e("s_waitcnt lgkmcnt(0)")
    stamp_init(e, 190)
    stamp(e, 190)
    srd(e, 8, 6, 7, 0, TSZ)
    srd(e, 12, 4, 5, WS_UT, TSZ)
    srd(e, 16, 4, 5, WS_XT, TSZ)
    e("s_sub_u32 s20, s2, %d" % K1_KG)
    e("s_lshl_b32 s20, s20, 5")
    e("s_lshl_b32 s21, s3, 3")
    e("s_add_u32 s21, s21, s20")
    e("s_mul_i32 s22, s21, 896")
    e("v_lshlrev_b32 v3, 4, v2")
    RX = 32
    for i in range(32):
        e("v_mov_b32 v%d, 0" % (RX + i))
    e("s_mov_b64 s[24:25], exec")
    e("v_cmp_gt_u32 vcc, 56, v2")
    e("s_mov_b64 s[26:27], vcc")
    e("s_mov_b64 exec, s[26:27]")
    for r in range(8):
        if r == 4:
            e("s_add_u32 s22, s22, 3584")
        e("buffer_load_dwordx4 %s, v3, s[8:11], s22 offen offset:%d" % (vr(RX + 4 * r, 4), (r & 3) * 896))
    e("s_mov_b64 exec, s[24:25]")
    e("s_lshl_b32 s23, s3, 3")
    e("s_mul_i32 s23, s23, 912")
    e("v_add_u32 v4, s23, v3")
    e("s_mov_b32 s28, 0x%x" % f32bits(1.0 / 448.0))
    e("s_mov_b32 s29, 0x%x" % f32bits(1e-5))
    e("s_mov_b32 s30, 0xffff0000")
    e("s_setprio 3")
    e("s_mov_b32 s40, 0x3f803f80")
    e("s_mov_b32 s41, 0x00003f80")
    e("s_mov_b32 s42, 0x3f800000")
    S, T, X = 8, 64, 96
    for r in range(16):
        e("v_mov_b32 v%d, 0" % (S + r))
    for r in range(8):
        e("s_waitcnt vmcnt(%d)" % (7 - r))
        R = RX + 4 * r
        for k in range(4):
            e("v_dot2_f32_bf16 v%d, v%d, s40, v%d" % (S + r, R + k, S + r))
            e("v_dot2_f32_bf16 v%d, v%d, v%d, v%d" % (S + 8 + r, R + k, R + k, S + 8 + r))
    stamp(e, 190)
    e("s_mov_b64 exec, s[26:27]")
    for r in range(8):
        e("ds_write_b128 v4, %s offset:%d" % (vr(RX + 4 * r, 4), 32 * 912 + r * 912))
    e("s_mov_b64 exec, s[24:25]")
    reduce64_multi(e, S, T, 16)
    V = S + 8
    for r in range(16):
        e("v_mul_f32 v%d, s28, v%d" % (S + r, S + r))
    for r in range(8):
        e("v_fma_f32 v%d, -v%d, v%d, v%d" % (V + r, S + r, S + r, V + r))
    for r in range(8):
        e("v_max_f32 v%d, 0, v%d" % (V + r, V + r))
    for r in range(8):
        e("v_cvt_pk_bf16_f32 v%d, v%d, v%d" % (S + r, S + r, S + r))
        e("v_cvt_pk_bf16_f32 v%d, v%d, v%d" % (V + r, V + r, V + r))
    for r in range(8):
        e("v_lshlrev_b32 v%d, 16, v%d" % (S + r, S + r))
        e("v_lshlrev_b32 v%d, 16, v%d" % (V + r, V + r))
    for r in range(8):
        e("v_add_f32 v%d, s29, v%d" % (V + r, V + r))
        e("v_sub_f32 v%d, 0, v%d" % (S + r, S + r))
    for r in range(8):
        e("v_cvt_pk_bf16_f32 v%d, v%d, v%d" % (V + r, V + r, V + r))
    for r in range(8):
        e("v_lshlrev_b32 v%d, 16, v%d" % (V + r, V + r))
    for r in range(8):
        e("v_sqrt_f32 v%d, v%d" % (V + r, V + r))
    for r in range(8):
        e("v_cvt_pk_bf16_f32 v%d, v%d, v%d" % (V + r, V + r, V + r))
    for r in range(8):
        e("v_lshlrev_b32 v%d, 16, v%d" % (V + r, V + r))
    for r in range(8):
        e("v_rcp_f32 v%d, v%d" % (V + r, V + r))
    for r in range(8):
        R = RX + 4 * r
        xb = X + 8 * (r & 1)
        for k in range(4):
            e("v_dot2_f32_bf16 v%d, v%d, s41, v%d" % (xb + 2 * k, R + k, S + r))
            e("v_dot2_f32_bf16 v%d, v%d, s42, v%d" % (xb + 2 * k + 1, R + k, S + r))
        e.nop(2)
        for k in range(4):
            e("v_cvt_pk_bf16_f32 v%d, v%d, v%d" % (R + k, xb + 2 * k, xb + 2 * k + 1))
        for k in range(4):
            e("v_lshlrev_b32 v%d, 16, v%d" % (xb + 2 * k, R + k))
            e("v_mul_f32 v%d, v%d, v%d" % (xb + 2 * k, xb + 2 * k, V + r))
            e("v_and_b32 v%d, s30, v%d" % (xb + 2 * k + 1, R + k))
            e("v_mul_f32 v%d, v%d, v%d" % (xb + 2 * k + 1, xb + 2 * k + 1, V + r))
        for k in range(4):
            e("v_cvt_pk_bf16_f32 v%d, v%d, v%d" % (R + k, xb + 2 * k, xb + 2 * k + 1))
    e("s_mov_b64 exec, s[26:27]")
    for r in range(8):
        e("ds_write_b128 v4, %s offset:%d" % (vr(RX + 4 * r, 4), r * 912))
    e("s_mov_b64 exec, s[24:25]")
    stamp(e, 190)
    e("s_waitcnt lgkmcnt(0)")
    e("s_barrier")
    stamp(e, 190)
    e("v_and_b32 v5, 15, v2")
    e("v_lshrrev_b32 v6, 4, v2")
    e("v_lshrrev_b32 v7, 2, v5")
    e("v_and_b32 v8, 3, v5")
    e("v_lshlrev_b32 v9, 3, v6")
    e("v_add_u32 v10, v9, v7")
    e("v_mul_u32_u24 v10, 912, v10")
    e("v_lshl_add_u32 v10, v8, 3, v10")
    e("v_sub_u32 v11, v9, v7")
    e("v_add_u32 v11, 3, v11")
    e("v_mul_u32_u24 v11, 912, v11")
    e("v_lshl_add_u32 v11, v8, 3, v11")
    e("v_lshlrev_b32 v12, 12, v5")
    e("s_lshl_b32 s31, s20, 1")
    e("v_lshl_add_u32 v13, v9, 1, v12")
    e("v_add_u32 v13, s31, v13")
    e("v_lshlrev_b32 v14, 1, v9")
    e("v_sub_u32 v14, v12, v14")
    e("s_sub_u32 s32, 4080, s31")
    e("v_add_u32 v14, s32, v14")
    e("s_lshl_b32 s33, s3, 5")
    e("s_lshl_b32 s34, s3, 16")
    e("v_add_u32 v11, s33, v11")
    e("v_add_u32 v10, s33, v10")
    for k in range(7):
        co = k * 128
        b = 16 + 8 * k
        e("ds_read_b64_tr_b16 %s, v11 offset:%d" % (vr(b, 2), co + 4 * 912))
        e("ds_read_b64_tr_b16 %s, v11 offset:%d" % (vr(b + 2, 2), co))
        e("ds_read_b64_tr_b16 %s, v10 offset:%d" % (vr(b + 4, 2), co + 32 * 912))
        e("ds_read_b64_tr_b16 %s, v10 offset:%d" % (vr(b + 6, 2), co + 32 * 912 + 4 * 912))
    for k in range(7):
        b = 16 + 8 * k
        e("s_waitcnt lgkmcnt(%d)" % min(15, 4 * (6 - k) + 2))
        e("buffer_store_dwordx4 %s, v14, s[12:15], s34 offen" % vr(b, 4))
        e("s_waitcnt lgkmcnt(%d)" % min(15, 4 * (6 - k)))
        e("buffer_store_dwordx4 %s, v13, s[16:19], s34 offen" % vr(b + 4, 4))
        e("s_add_u32 s34, s34, 0x%x" % (64 * 4096))
    stamp(e, 190)
    if "stamp" in OPTS:
        e("s_waitcnt vmcnt(0)")
        stamp(e, 190)
    e("s_branch K1_END")

    e.label("K1_KGB")
    if "nokg" in OPTS: e("s_branch K1_END")
    e("s_load_dwordx8 s[8:15], s[0:1], 8")
    e("s_load_dwordx2 s[16:17], s[0:1], 40")
    e("s_mov_b32 s20, s2")
    e("s_waitcnt lgkmcnt(0)")
    stamp_init(e, 190)
    stamp(e, 190)
    srd(e, 24, 8, 9, 0, D * N * 2)
    srd(e, 28, 10, 11, 0, D * N * 2)
    srd(e, 32, 12, 13, 0, D * N * 2)
    srd(e, 36, 14, 15, 0, D * N * 2)
    srd(e, 40, 16, 17, 0, D * 2)
    e("s_lshl_b32 s21, s20, 9")
    e("v_lshlrev_b32 v3, 1, v0")
    e("s_lshl_b32 s22, s20, 1")
    e("v_mov_b32 v4, 0")
    e("buffer_load_ushort v8, v3, s[24:27], s21 offen")
    e("buffer_load_ushort v12, v4, s[40:43], s22 offen")
    e("buffer_load_ushort v9, v3, s[28:31], s21 offen")
    e("buffer_load_ushort v10, v3, s[32:35], s21 offen")
    e("buffer_load_ushort v11, v3, s[36:39], s21 offen")
    import numpy as np
    lhi = np.float32(1.4426950408889634)
    llo = np.float32(1.4426950408889634 - float(lhi))
    e("s_mov_b32 s44, 0x%x" % f32bits(float(lhi)))
    e("s_mov_b32 s45, 0x%x" % f32bits(float(llo)))
    e("s_mov_b32 s46, 0x%x" % f32bits(0.6931471805599453))
    e("s_mov_b32 s47, 0xffff0000")
    e("s_mov_b32 s48, 0x%x" % f32bits(0.15915494309189535))
    e("s_mul_i32 s50, s3, %d" % (64 * 288))
    e("s_mov_b32 m0, s50")
    e("v_and_b32 v105, 15, v2")
    e("v_mul_u32_u24 v105, 288, v105")
    e("v_lshrrev_b32 v106, 4, v2")
    e("v_lshl_add_u32 v105, v106, 4, v105")
    e("v_add_u32 v105, s50, v105")
    ACC = 108
    FR = 124
    for i in range(16):
        e("v_mov_b32 v%d, 0" % (ACC + i))
    e("s_waitcnt vmcnt(0)")
    stamp(e, 190)
    for r in (8, 9, 10, 11, 12):
        e("v_lshlrev_b32 v%d, 16, v%d" % (r, r))

    def exp_acc(dst, x, t1, t2):
        e("v_mul_f32 v%d, s44, v%d" % (t1, x))
        e("v_fma_f32 v%d, v%d, s44, -v%d" % (t2, x, t1))
        e("v_fmac_f32 v%d, s45, v%d" % (t2, x))
        e("v_exp_f32 v%d, v%d" % (t1, t1))
        e("v_mul_f32 v%d, s46, v%d" % (t2, t2))
        e("v_fma_f32 v%d, v%d, v%d, v%d" % (dst, t1, t2, t1))
        rb1(e, dst, dst)

    exp_acc(12, 12, 13, 14)
    exp_acc(8, 8, 13, 14)
    e("v_mul_f32 v8, v8, v12")
    e("v_mul_f32 v9, v9, v12")
    e("v_mul_f32 v10, v10, v12")
    e("v_mul_f32 v11, v11, v12")
    e("v_mul_f32 v8, s44, v8")
    e("v_mul_f32 v9, s48, v9")
    Z = 16
    for k0 in range(0, 12, 4):
        ks = range(k0, k0 + 4)
        for k in ks:
            e("v_mul_f32 v%d, 0x%x, v8" % (FR + 3 * (k - k0), f32bits(float(2 ** k))))
            e("v_mul_f32 v%d, 0x%x, v9" % (FR + 3 * (k - k0) + 1, f32bits(float(2 ** k))))
        for k in ks:
            t = FR + 3 * (k - k0)
            e("v_exp_f32 v%d, -v%d" % (t, t))
            e("v_fract_f32 v%d, v%d" % (t + 1, t + 1))
        for k in ks:
            t = FR + 3 * (k - k0)
            e("v_cos_f32 v%d, v%d" % (t + 2, t + 1))
            e("v_sin_f32 v%d, v%d" % (t + 1, t + 1))
        e.nop(1)
        for k in ks:
            t = FR + 3 * (k - k0)
            e("v_mul_f32 v%d, v%d, v%d" % (Z + 2 * k, t, t + 2))
            e("v_mul_f32 v%d, v%d, v%d" % (Z + 2 * k + 1, t, t + 1))

    stamp(e, 190)
    def zr(k):
        return Z + 2 * k

    Ereg = {}
    Greg = {}
    Erow = {}
    EB = 40
    GB = 72
    cnt = [0]
    e("s_mov_b32 s57, 0x0000bf80")
    e("s_mov_b32 s58, 0xbf800000")

    def cmul(dst, a, b, conj=False):
        T = (4, 6)[cnt[0] & 1]; cnt[0] += 1
        e("v_pk_mul_f32 %s, %s, %s op_sel:[1,1] op_sel_hi:[1,0]" % (vr(T, 2), vr(a, 2), vr(b, 2)))
        e("v_pk_fma_f32 %s, %s, %s, %s op_sel:[0,0,0] op_sel_hi:[0,1,1] %s" % (vr(dst, 2), vr(a, 2), vr(b, 2), vr(T, 2), "neg_hi:[0,0,1]" if conj else "neg_lo:[0,0,1]"))

    def split_write_list(items):
        TS = [(13, 14, 15), (104, 106, 107)]
        for k in range(0, len(items), 2):
            grp = items[k:k + 2]
            for (src_, row), (h, l0, l1) in zip(grp, TS):
                e("v_cvt_pk_bf16_f32 v%d, v%d, v%d" % (h, src_, src_ + 1))
            for (src_, row), (h, l0, l1) in zip(grp, TS):
                e("v_dot2_f32_bf16 v%d, v%d, s57, v%d" % (l0, h, src_))
                e("v_dot2_f32_bf16 v%d, v%d, s58, v%d" % (l1, h, src_ + 1))
            for (src_, row), (h, l0, l1) in zip(grp, TS):
                e("ds_write_addtid_b32 v%d offset:%d" % (h, row * 288))
            if len(grp) == 1:
                e.nop(3)
            for (src_, row), (h, l0, l1) in zip(grp, TS):
                e("v_cvt_pk_bf16_f32 v%d, v%d, v%d" % (l0, l0, l1))
            for (src_, row), (h, l0, l1) in zip(grp, TS):
                e("ds_write_addtid_b32 v%d offset:%d" % (l0, (row + 16) * 288))

    def mfma_seg(t):
        for s in range(4):
            e("ds_read_b128 %s, v105 offset:%d" % (vr(FR + 16 * s + 0, 4), 64 * s))
            e("ds_read_b128 %s, v105 offset:%d" % (vr(FR + 16 * s + 8, 4), 64 * s + 32 * 288))
            e("ds_read_b128 %s, v105 offset:%d" % (vr(FR + 16 * s + 12, 4), 64 * s + 48 * 288))
            e("ds_read_b128 %s, v105 offset:%d" % (vr(FR + 16 * s + 4, 4), 64 * s + 16 * 288))
        for s in range(4):
            e("s_waitcnt lgkmcnt(%d)" % (12 - 4 * s))
            a = vr(ACC + 4 * t, 4)
            ah, al, bh, bl = (vr(FR + 16 * s + 4 * q, 4) for q in range(4))
            e("v_mfma_f32_16x16x32_bf16 %s, %s, %s, %s" % (a, ah, bh, a))
            e("v_mfma_f32_16x16x32_bf16 %s, %s, %s, %s" % (a, ah, bl, a))
            e("v_mfma_f32_16x16x32_bf16 %s, %s, %s, %s" % (a, al, bh, a))

    colb = []
    e("v_mov_b32 v%d, 1.0" % EB)
    e("v_mov_b32 v%d, 0" % (EB + 1))
    Ereg[0] = EB
    for b in range(1, 16):
        Ereg[b] = EB + 2 * b
        k = b.bit_length() - 1
        hb = 1 << k
        if b == hb:
            e("v_mov_b32 v%d, v%d" % (Ereg[b], zr(k)))
            e("v_mov_b32 v%d, v%d" % (Ereg[b] + 1, zr(k) + 1))
        else:
            cmul(Ereg[b], zr(k), Ereg[b - hb])
    e("v_mov_b32 v%d, v10" % GB)
    e("v_sub_f32 v%d, 0, v11" % (GB + 1))
    Greg[0] = GB
    for a in range(1, 16):
        p = 16 * a
        Greg[p] = GB + 2 * a
        k = p.bit_length() - 1
        cmul(Greg[p], zr(k), Greg[p - (1 << k)], True)
    for b in range(16):
        Erow[b] = b
    split_write_list([(Greg[16 * a], a) for a in range(16)] + [(Ereg[b], 32 + b) for b in range(16)])
    colb.append(list(range(16)))
    mfma_seg(0)
    stamp(e, 190)

    for sg in (1, 2, 3):
        st = 1 << sg
        base = 128 << sg
        hs = 16 << sg
        freeE = sorted(r for p, r in Ereg.items() if p % st != 0)
        freeR = sorted(r for p, r in Erow.items() if p % st != 0)
        Ereg = {p: r for p, r in Ereg.items() if p % st == 0}
        Erow = {p: r for p, r in Erow.items() if p % st == 0}
        kz = 3 + sg
        for b in range(8, 16):
            p = st * b
            Ereg[p] = freeE.pop(0)
            Erow[p] = freeR.pop(0)
            if b == 8:
                e("v_mov_b32 v%d, v%d" % (Ereg[p], zr(kz)))
                e("v_mov_b32 v%d, v%d" % (Ereg[p] + 1, zr(kz) + 1))
            else:
                cmul(Ereg[p], zr(kz), Ereg[p - 8 * st])
        freeG = sorted(r for p, r in Greg.items() if p % hs != 0)
        Greg = {p: r for p, r in Greg.items() if p % hs == 0}
        kz = 7 + sg
        for a in range(8):
            p = base + hs * a
            Greg[p] = freeG.pop(0)
            cmul(Greg[p], zr(kz), Greg[hs * a], True)
        rows = 8
        if sg == 3:
            Greg[2048] = zr(0)
            cmul(Greg[2048], zr(11), Greg[0], True)
            rows = 9
        split_write_list([(Greg[base + hs * a], a) for a in range(rows)] + [(Ereg[st * b], 32 + Erow[st * b]) for b in range(8, 16)])
        cb = [0] * 16
        for b in range(16):
            cb[Erow[st * b]] = b
        colb.append(cb)
        mfma_seg(sg)
        stamp(e, 190)

    e("v_and_b32 v13, 15, v2")
    e("v_lshrrev_b32 v14, 4, v2")
    e("v_lshlrev_b32 v14, 8, v14")
    e("v_add_u32 v14, s50, v14")
    e("v_lshl_add_u32 v16, v13, 2, v14")
    e("v_and_b32 v15, 7, v2")
    e("v_lshlrev_b32 v15, 2, v15")
    e("v_cmp_gt_u32 vcc, 8, v13")
    for sg in (1, 2, 3):
        lo = sum(colb[sg][c] << (4 * c) for c in range(8))
        hi = sum(colb[sg][8 + c] << (4 * c) for c in range(8))
        e("s_mov_b32 s54, 0x%x" % lo)
        e("s_mov_b32 s55, 0x%x" % hi)
        e("v_bfe_u32 v20, s54, v15, 4")
        e("v_bfe_u32 v21, s55, v15, 4")
        e("v_cndmask_b32 v20, v21, v20, vcc")
        e("v_lshl_add_u32 v%d, v20, 2, v14" % (16 + sg))
    e.nop(4)
    e("s_waitcnt lgkmcnt(0)")
    for i in range(4):
        e("ds_write_b32 v16, v%d offset:%d" % (ACC + i, 64 * i))
    e("s_mov_b64 s[52:53], exec")
    e("s_mov_b32 exec_lo, -1")
    e("s_mov_b32 exec_hi, 0")
    for sg in (1, 2, 3):
        qb = 128 + 128 * sg
        for i in range(4):
            e("ds_write_b32 v%d, v%d offset:%d" % (16 + sg, ACC + 4 * sg + i, qb * 4 + 64 * i))
    e("s_mov_b32 s54, 0")
    e("s_mov_b32 s55, 0xffff")
    e("s_mov_b64 exec, s[54:55]")
    e("ds_write_b32 v19, v%d offset:%d" % (ACC + 12, 512 * 4))
    e("s_mov_b64 exec, s[52:53]")
    srd(e, 24, 4, 5, WS_K, D * KQS)
    e("s_mul_i32 s21, s20, %d" % KQS)
    e("v_lshlrev_b32 v9, 2, v0")
    e("s_waitcnt lgkmcnt(0)")
    e("s_barrier")
    stamp(e, 190)
    for m in range(3):
        for w in range(4):
            e("ds_read_b32 v%d, v9 offset:%d" % (24 + 4 * m + w, w * 64 * 288 + 1024 * m))
    for m in range(3):
        e("s_waitcnt lgkmcnt(%d)" % (8 - 4 * m))
        b = 24 + 4 * m
        e("v_add_f32 v%d, v%d, v%d" % (b, b, b + 1))
        e("v_add_f32 v%d, v%d, v%d" % (b + 2, b + 2, b + 3))
        e("v_add_f32 v%d, v%d, v%d" % (b, b, b + 2))
        e("v_add_f32 v%d, v%d, v%d" % (b, b, b))
        e("buffer_store_dword v%d, v9, s[24:27], s21 offen offset:%d" % (b, 1024 * m))
    if "stamp" in OPTS:
        e("s_waitcnt vmcnt(0)")
        stamp(e, 190)
    e.label("K1_END")
    endpgm(e, 0)
    e.label("K1_EXIT")
    e("s_endpgm")
    WGT_IDX[0] += 1
    return kernel_desc(name, 192)


def main():
    out = []
    hdr = open("cdna_kernels/%s.s.ref" % NAME).read().split("\n")
    for ln in hdr:
        if ln.startswith("; @launch") or not ln.startswith(";"):
            break
        out.append(ln)
    launches = []
    e = E()
    descs = []
    import gen_rest
    descs.append(gen_k1(e))
    launches.append(("k1_kernel", K1_GRID, 256, K1_LDS))
    for (nm, fn, grid, blk, lds) in gen_rest.kernels():
        descs.append(fn(e))
        launches.append((nm, grid, blk, lds))
    nl = int(sys.argv[1]) if len(sys.argv) > 1 else len(launches)
    for (nm, g, b, l) in launches[:nl]:
        out.append("; @launch kernel=%s grid=(%d,1,1) block=(%d,1,1) lds=%d" % (nm, g, b, l))
    out.append('.amdgcn_target "amdgcn-amd-amdhsa--gfx950"')
    txt = "\n".join(out) + "\n" + e.text() + "".join(descs)
    open(os.environ.get("GENOUT", "cdna_kernels/%s.s" % NAME), "w").write(txt)
    print("written", len(txt), "bytes")


if __name__ == "__main__":
    main()
```

```python
import sys, struct, os
OPTS = os.environ.get("GENOPTS", "").split(",")

NAME = "sequential_preLN__ssm_conv_s4d__dense_activation_gelu__prompt"
L = 2048; D = 448; N = 256; F = 1792

WS_UT = 0x0
WS_XT = 0x200000
WS_K = 0x400000
KCH = 15360
KQS = 3072
WS_HT = 0xC00000
WS_H1 = 0x1000000
WS_WP = 0x1800000
W1P_SZ = 56 * 28 * 1024
TSZ = D * L * 2


def f32bits(x):
    return struct.unpack("<I", struct.pack("<f", x))[0]


class E:
    def __init__(self):
        self.lines = []

    def __call__(self, s):
        self.lines.append("    " + s)

    def label(self, s):
        self.lines.append(s + ":")

    def c(self, s):
        self.lines.append("    ; " + s)

    def raw(self, s):
        self.lines.append(s)

    def nop(self, n):
        while n > 0:
            k = min(n, 16)
            self("s_nop %d" % (k - 1))
            n -= k

    def text(self):
        return "\n".join(self.lines) + "\n"


def vr(a, n=1):
    return "v%d" % a if n == 1 else "v[%d:%d]" % (a, a + n - 1)


def sr(a, n=1):
    return "s%d" % a if n == 1 else "s[%d:%d]" % (a, a + n - 1)


def srd(e, dst, base_lo, base_hi, off, size):
    if off:
        e("s_add_u32 s%d, s%d, 0x%x" % (dst, base_lo, off))
        e("s_addc_u32 s%d, s%d, 0" % (dst + 1, base_hi))
    else:
        e("s_mov_b32 s%d, s%d" % (dst, base_lo))
        e("s_mov_b32 s%d, s%d" % (dst + 1, base_hi))
    e("s_and_b32 s%d, s%d, 0xffff" % (dst + 1, dst + 1))
    e("s_mov_b32 s%d, 0x%x" % (dst + 2, size))
    e("s_mov_b32 s%d, 0x00020000" % (dst + 3))


def reduce64(e, v, t):
    e.nop(2)
    e("v_add_f32_dpp v%d, v%d, v%d quad_perm:[1,0,3,2] row_mask:0xf bank_mask:0xf" % (v, v, v))
    e.nop(2)
    e("v_add_f32_dpp v%d, v%d, v%d quad_perm:[2,3,0,1] row_mask:0xf bank_mask:0xf" % (v, v, v))
    e.nop(2)
    e("v_add_f32_dpp v%d, v%d, v%d row_half_mirror row_mask:0xf bank_mask:0xf" % (v, v, v))
    e.nop(2)
    e("v_add_f32_dpp v%d, v%d, v%d row_mirror row_mask:0xf bank_mask:0xf" % (v, v, v))
    e("v_mov_b32 v%d, v%d" % (t, v))
    e.nop(2)
    e("v_permlane16_swap_b32 v%d, v%d" % (v, t))
    e("v_add_f32 v%d, v%d, v%d" % (v, v, t))
    e("v_mov_b32 v%d, v%d" % (t, v))
    e.nop(2)
    e("v_permlane32_swap_b32 v%d, v%d" % (v, t))
    e("v_add_f32 v%d, v%d, v%d" % (v, v, t))


def rb1(e, dst, src):
    e("v_cvt_pk_bf16_f32 v%d, v%d, v%d" % (dst, src, src))
    e("v_lshlrev_b32 v%d, 16, v%d" % (dst, dst))


STAMP_WG = int(os.environ.get("STAMPWG", "0"))
def stamp_init(e, vtmp):
    if "stamp" not in OPTS: return
    e("s_load_dwordx2 s[90:91], s[0:1], 104")
    e("s_waitcnt lgkmcnt(0)")
    e("s_mov_b32 s92, s90")
    e("s_and_b32 s93, s91, 0xffff")
    e("s_mov_b32 s94, 256")
    e("s_mov_b32 s95, 0x00020000")
    e.stampn = 0

def stamp(e, vtmp):
    if "stamp" not in OPTS: return
    n = e.stampn; e.stampn += 1
    lab = "STP_%d" % len(e.lines)
    e("s_cmp_lg_u32 s2, %d" % STAMP_WG)
    e("s_cbranch_scc1 %s" % lab)
    e("s_cmp_lg_u32 s3, %d" % int(os.environ.get("STAMPWAVE", "0")))
    e("s_cbranch_scc1 %s" % lab)
    e("s_memtime s[96:97]")
    e("s_waitcnt lgkmcnt(0)")
    e("v_mov_b32 v%d, s96" % vtmp)
    e("s_mov_b64 s[98:99], exec")
    e("s_mov_b64 exec, 1")
    e("v_mov_b32 v%d, 0" % (vtmp + 1))
    e("buffer_store_dword v%d, v%d, s[92:95], 0 offen offset:%d" % (vtmp, vtmp + 1, 4 * n))
    e("s_mov_b64 exec, s[98:99]")
    e.label(lab)


WGT_IDX = [0]
def kernel_header(e, name):
    e.raw(".text")
    e.raw(".globl %s" % name)
    e.raw(".p2align 8")
    e.raw(".type %s,@function" % name)
    e.label(name)
    if "wgt" in OPTS:
        e("s_memrealtime s[86:87]")
        e("s_load_dwordx2 s[84:85], s[0:1], 112")
        e("s_waitcnt lgkmcnt(0)")
    if "hdbg" in OPTS:
        e("s_memrealtime s[86:87]")
        e("s_load_dwordx2 s[84:85], s[0:1], 104")
        e("s_waitcnt lgkmcnt(0)")


def endpgm(e, idx):
    if "wgt" in OPTS:
        e("s_waitcnt vmcnt(0)")
        e("s_memrealtime s[88:89]")
        e("s_waitcnt lgkmcnt(0)")
        srd(e, 80, 84, 85, 0x4000000 + idx * 0x100000, 0x100000)
        e("s_mov_b64 exec, 1")
        e("v_mov_b32 v0, s86")
        e("v_mov_b32 v1, s88")
        e("s_lshl_b32 s90, s2, 4")
        e("s_add_u32 s90, s90, s3")
        e("s_lshl_b32 s90, s90, 3")
        e("v_mov_b32 v2, s90")
        e("buffer_store_dwordx2 v[0:1], v2, s[80:83], 0 offen")
    if "hdbg" in OPTS:
        e("s_waitcnt vmcnt(0)")
        e("s_memrealtime s[88:89]")
        e("s_waitcnt lgkmcnt(0)")
        e("s_sub_u32 s80, s84, %d" % (512 * idx))
        e("s_subb_u32 s81, s85, 0")
        e("s_and_b32 s81, s81, 0xffff")
        e("s_mov_b32 s82, 256")
        e("s_mov_b32 s83, 0x00020000")
        e("s_mov_b64 exec, 1")
        e("s_not_b32 s86, s86")
        e("v_mov_b32 v0, s86")
        e("v_mov_b32 v1, s88")
        e("v_mov_b32 v2, 0")
        e("buffer_atomic_umax v0, v2, s[80:83], 0 offen offset:%d" % (8 * idx))
        e("buffer_atomic_umax v1, v2, s[80:83], 0 offen offset:%d" % (8 * idx + 4))
    e("s_endpgm")


def kernel_desc(name, vgpr, sgpr=102, accum=None):
    if accum is None:
        accum = (vgpr + 3) // 4 * 4
    return """.section .rodata,"a"
.p2align 6
.amdhsa_kernel %s
  .amdhsa_next_free_vgpr %d
  .amdhsa_next_free_sgpr %d
  .amdhsa_accum_offset %d
  .amdhsa_group_segment_fixed_size 0
  .amdhsa_kernarg_size 120
  .amdhsa_user_sgpr_count 2
  .amdhsa_user_sgpr_kernarg_segment_ptr 1
  .amdhsa_system_sgpr_workgroup_id_x 1
.end_amdhsa_kernel
""" % (name, vgpr, sgpr, accum)


K1_LN = 64
K1_KG = 448
K1_GRID = K1_LN + K1_KG
K1_LDS = 4 * 64 * 288 + 64


def reduce64_multi(e, S, T, n):
    for mod in ("quad_perm:[1,0,3,2]", "quad_perm:[2,3,0,1]", "row_half_mirror", "row_mirror"):
        for r in range(n):
            e("v_add_f32_dpp v%d, v%d, v%d %s row_mask:0xf bank_mask:0xf" % (S + r, S + r, S + r, mod))
    for sw in ("v_permlane16_swap_b32", "v_permlane32_swap_b32"):
        for r in range(n):
            e("v_mov_b32 v%d, v%d" % (T + r, S + r))
        for r in range(n):
            e("%s v%d, v%d" % (sw, S + r, T + r))
        for r in range(n):
            e("v_add_f32 v%d, v%d, v%d" % (S + r, S + r, T + r))


def gen_k1(e):
    name = "k1_kernel"
    kernel_header(e, name)
    e("s_cmp_ge_u32 s2, %d" % K1_GRID)
    e("s_cbranch_scc1 K1_EXIT")
    e("s_load_dwordx2 s[4:5], s[0:1], 112")
    e("v_lshrrev_b32 v1, 6, v0")
    e("v_and_b32 v2, 63, v0")
    e("s_nop 0")
    e("v_readfirstlane_b32 s3, v1")
    e("s_cmp_ge_u32 s2, %d" % K1_KG)
    e("s_cbranch_scc0 K1_KGB")

    e.label("K1_LNB")
    if "noln" in OPTS: e("s_branch K1_END")
    e("s_load_dwordx2 s[6:7], s[0:1], 0")
    e("s_waitcnt lgkmcnt(0)")
    stamp_init(e, 190)
    stamp(e, 190)
    srd(e, 8, 6, 7, 0, TSZ)
    srd(e, 12, 4, 5, WS_UT, TSZ)
    srd(e, 16, 4, 5, WS_XT, TSZ)
    e("s_sub_u32 s20, s2, %d" % K1_KG)
    e("s_lshl_b32 s20, s20, 5")
    e("s_lshl_b32 s21, s3, 3")
    e("s_add_u32 s21, s21, s20")
    e("s_mul_i32 s22, s21, 896")
    e("v_lshlrev_b32 v3, 4, v2")
    RX = 32
    for i in range(32):
        e("v_mov_b32 v%d, 0" % (RX + i))
    e("s_mov_b64 s[24:25], exec")
    e("v_cmp_gt_u32 vcc, 56, v2")
    e("s_mov_b64 s[26:27], vcc")
    e("s_mov_b64 exec, s[26:27]")
    for r in range(8):
        if r == 4:
            e("s_add_u32 s22, s22, 3584")
        e("buffer_load_dwordx4 %s, v3, s[8:11], s22 offen offset:%d" % (vr(RX + 4 * r, 4), (r & 3) * 896))
    e("s_mov_b64 exec, s[24:25]")
    e("s_lshl_b32 s23, s3, 3")
    e("s_mul_i32 s23, s23, 912")
    e("v_add_u32 v4, s23, v3")
    e("s_mov_b32 s28, 0x%x" % f32bits(1.0 / 448.0))
    e("s_mov_b32 s29, 0x%x" % f32bits(1e-5))
    e("s_mov_b32 s30, 0xffff0000")
    e("s_setprio 3")
    e("s_mov_b32 s40, 0x3f803f80")
    e("s_mov_b32 s41, 0x00003f80")
    e("s_mov_b32 s42, 0x3f800000")
    S, T, X = 8, 64, 96
    for r in range(16):
        e("v_mov_b32 v%d, 0" % (S + r))
    for r in range(8):
        e("s_waitcnt vmcnt(%d)" % (7 - r))
        R = RX + 4 * r
        for k in range(4):
            e("v_dot2_f32_bf16 v%d, v%d, s40, v%d" % (S + r, R + k, S + r))
            e("v_dot2_f32_bf16 v%d, v%d, v%d, v%d" % (S + 8 + r, R + k, R + k, S + 8 + r))
    stamp(e, 190)
    e("s_mov_b64 exec, s[26:27]")
    for r in range(8):
        e("ds_write_b128 v4, %s offset:%d" % (vr(RX + 4 * r, 4), 32 * 912 + r * 912))
    e("s_mov_b64 exec, s[24:25]")
    reduce64_multi(e, S, T, 16)
    V = S + 8
    for r in range(16):
        e("v_mul_f32 v%d, s28, v%d" % (S + r, S + r))
    for r in range(8):
        e("v_fma_f32 v%d, -v%d, v%d, v%d" % (V + r, S + r, S + r, V + r))
    for r in range(8):
        e("v_max_f32 v%d, 0, v%d" % (V + r, V + r))
    for r in range(8):
        e("v_cvt_pk_bf16_f32 v%d, v%d, v%d" % (S + r, S + r, S + r))
        e("v_cvt_pk_bf16_f32 v%d, v%d, v%d" % (V + r, V + r, V + r))
    for r in range(8):
        e("v_lshlrev_b32 v%d, 16, v%d" % (S + r, S + r))
        e("v_lshlrev_b32 v%d, 16, v%d" % (V + r, V + r))
    for r in range(8):
        e("v_add_f32 v%d, s29, v%d" % (V + r, V + r))
        e("v_sub_f32 v%d, 0, v%d" % (S + r, S + r))
    for r in range(8):
        e("v_cvt_pk_bf16_f32 v%d, v%d, v%d" % (V + r, V + r, V + r))
    for r in range(8):
        e("v_lshlrev_b32 v%d, 16, v%d" % (V + r, V + r))
    for r in range(8):
        e("v_sqrt_f32 v%d, v%d" % (V + r, V + r))
    for r in range(8):
        e("v_cvt_pk_bf16_f32 v%d, v%d, v%d" % (V + r, V + r, V + r))
    for r in range(8):
        e("v_lshlrev_b32 v%d, 16, v%d" % (V + r, V + r))
    for r in range(8):
        e("v_rcp_f32 v%d, v%d" % (V + r, V + r))
    for r in range(8):
        R = RX + 4 * r
        xb = X + 8 * (r & 1)
        for k in range(4):
            e("v_dot2_f32_bf16 v%d, v%d, s41, v%d" % (xb + 2 * k, R + k, S + r))
            e("v_dot2_f32_bf16 v%d, v%d, s42, v%d" % (xb + 2 * k + 1, R + k, S + r))
        e.nop(2)
        for k in range(4):
            e("v_cvt_pk_bf16_f32 v%d, v%d, v%d" % (R + k, xb + 2 * k, xb + 2 * k + 1))
        for k in range(4):
            e("v_lshlrev_b32 v%d, 16, v%d" % (xb + 2 * k, R + k))
            e("v_mul_f32 v%d, v%d, v%d" % (xb + 2 * k, xb + 2 * k, V + r))
            e("v_and_b32 v%d, s30, v%d" % (xb + 2 * k + 1, R + k))
            e("v_mul_f32 v%d, v%d, v%d" % (xb + 2 * k + 1, xb + 2 * k + 1, V + r))
        for k in range(4):
            e("v_cvt_pk_bf16_f32 v%d, v%d, v%d" % (R + k, xb + 2 * k, xb + 2 * k + 1))
    e("s_mov_b64 exec, s[26:27]")
    for r in range(8):
        e("ds_write_b128 v4, %s offset:%d" % (vr(RX + 4 * r, 4), r * 912))
    e("s_mov_b64 exec, s[24:25]")
    stamp(e, 190)
    e("s_waitcnt lgkmcnt(0)")
    e("s_barrier")
    stamp(e, 190)
    e("v_and_b32 v5, 15, v2")
    e("v_lshrrev_b32 v6, 4, v2")
    e("v_lshrrev_b32 v7, 2, v5")
    e("v_and_b32 v8, 3, v5")
    e("v_lshlrev_b32 v9, 3, v6")
    e("v_add_u32 v10, v9, v7")
    e("v_mul_u32_u24 v10, 912, v10")
    e("v_lshl_add_u32 v10, v8, 3, v10")
    e("v_sub_u32 v11, v9, v7")
    e("v_add_u32 v11, 3, v11")
    e("v_mul_u32_u24 v11, 912, v11")
    e("v_lshl_add_u32 v11, v8, 3, v11")
    e("v_lshlrev_b32 v12, 12, v5")
    e("s_lshl_b32 s31, s20, 1")
    e("v_lshl_add_u32 v13, v9, 1, v12")
    e("v_add_u32 v13, s31, v13")
    e("v_lshlrev_b32 v14, 1, v9")
    e("v_sub_u32 v14, v12, v14")
    e("s_sub_u32 s32, 4080, s31")
    e("v_add_u32 v14, s32, v14")
    e("s_lshl_b32 s33, s3, 5")
    e("s_lshl_b32 s34, s3, 16")
    e("v_add_u32 v11, s33, v11")
    e("v_add_u32 v10, s33, v10")
    for k in range(7):
        co = k * 128
        b = 16 + 8 * k
        e("ds_read_b64_tr_b16 %s, v11 offset:%d" % (vr(b, 2), co + 4 * 912))
        e("ds_read_b64_tr_b16 %s, v11 offset:%d" % (vr(b + 2, 2), co))
        e("ds_read_b64_tr_b16 %s, v10 offset:%d" % (vr(b + 4, 2), co + 32 * 912))
        e("ds_read_b64_tr_b16 %s, v10 offset:%d" % (vr(b + 6, 2), co + 32 * 912 + 4 * 912))
    for k in range(7):
        b = 16 + 8 * k
        e("s_waitcnt lgkmcnt(%d)" % min(15, 4 * (6 - k) + 2))
        e("buffer_store_dwordx4 %s, v14, s[12:15], s34 offen" % vr(b, 4))
        e("s_waitcnt lgkmcnt(%d)" % min(15, 4 * (6 - k)))
        e("buffer_store_dwordx4 %s, v13, s[16:19], s34 offen" % vr(b + 4, 4))
        e("s_add_u32 s34, s34, 0x%x" % (64 * 4096))
    stamp(e, 190)
    if "stamp" in OPTS:
        e("s_waitcnt vmcnt(0)")
        stamp(e, 190)
    e("s_branch K1_END")

    e.label("K1_KGB")
    if "nokg" in OPTS: e("s_branch K1_END")
    e("s_load_dwordx8 s[8:15], s[0:1], 8")
    e("s_load_dwordx2 s[16:17], s[0:1], 40")
    e("s_mov_b32 s20, s2")
    e("s_waitcnt lgkmcnt(0)")
    stamp_init(e, 190)
    stamp(e, 190)
    srd(e, 24, 8, 9, 0, D * N * 2)
    srd(e, 28, 10, 11, 0, D * N * 2)
    srd(e, 32, 12, 13, 0, D * N * 2)
    srd(e, 36, 14, 15, 0, D * N * 2)
    srd(e, 40, 16, 17, 0, D * 2)
    e("s_lshl_b32 s21, s20, 9")
    e("v_lshlrev_b32 v3, 1, v0")
    e("s_lshl_b32 s22, s20, 1")
    e("v_mov_b32 v4, 0")
    e("buffer_load_ushort v8, v3, s[24:27], s21 offen")
    e("buffer_load_ushort v12, v4, s[40:43], s22 offen")
    e("buffer_load_ushort v9, v3, s[28:31], s21 offen")
    e("buffer_load_ushort v10, v3, s[32:35], s21 offen")
    e("buffer_load_ushort v11, v3, s[36:39], s21 offen")
    import numpy as np
    lhi = np.float32(1.4426950408889634)
    llo = np.float32(1.4426950408889634 - float(lhi))
    e("s_mov_b32 s44, 0x%x" % f32bits(float(lhi)))
    e("s_mov_b32 s45, 0x%x" % f32bits(float(llo)))
    e("s_mov_b32 s46, 0x%x" % f32bits(0.6931471805599453))
    e("s_mov_b32 s47, 0xffff0000")
    e("s_mov_b32 s48, 0x%x" % f32bits(0.15915494309189535))
    e("s_mul_i32 s50, s3, %d" % (64 * 288))
    e("s_mov_b32 m0, s50")
    e("v_and_b32 v105, 15, v2")
    e("v_mul_u32_u24 v105, 288, v105")
    e("v_lshrrev_b32 v106, 4, v2")
    e("v_lshl_add_u32 v105, v106, 4, v105")
    e("v_add_u32 v105, s50, v105")
    ACC = 108
    FR = 124
    for i in range(16):
        e("v_mov_b32 v%d, 0" % (ACC + i))
    e("s_waitcnt vmcnt(0)")
    stamp(e, 190)
    for r in (8, 9, 10, 11, 12):
        e("v_lshlrev_b32 v%d, 16, v%d" % (r, r))

    def exp_acc(dst, x, t1, t2):
        e("v_mul_f32 v%d, s44, v%d" % (t1, x))
        e("v_fma_f32 v%d, v%d, s44, -v%d" % (t2, x, t1))
        e("v_fmac_f32 v%d, s45, v%d" % (t2, x))
        e("v_exp_f32 v%d, v%d" % (t1, t1))
        e("v_mul_f32 v%d, s46, v%d" % (t2, t2))
        e("v_fma_f32 v%d, v%d, v%d, v%d" % (dst, t1, t2, t1))
        rb1(e, dst, dst)

    exp_acc(12, 12, 13, 14)
    exp_acc(8, 8, 13, 14)
    e("v_mul_f32 v8, v8, v12")
    e("v_mul_f32 v9, v9, v12")
    e("v_mul_f32 v10, v10, v12")
    e("v_mul_f32 v11, v11, v12")
    e("v_mul_f32 v8, s44, v8")
    e("v_mul_f32 v9, s48, v9")
    Z = 16
    for k0 in range(0, 12, 4):
        ks = range(k0, k0 + 4)
        for k in ks:
            e("v_mul_f32 v%d, 0x%x, v8" % (FR + 3 * (k - k0), f32bits(float(2 ** k))))
            e("v_mul_f32 v%d, 0x%x, v9" % (FR + 3 * (k - k0) + 1, f32bits(float(2 ** k))))
        for k in ks:
            t = FR + 3 * (k - k0)
            e("v_exp_f32 v%d, -v%d" % (t, t))
            e("v_fract_f32 v%d, v%d" % (t + 1, t + 1))
        for k in ks:
            t = FR + 3 * (k - k0)
            e("v_cos_f32 v%d, v%d" % (t + 2, t + 1))
            e("v_sin_f32 v%d, v%d" % (t + 1, t + 1))
        e.nop(1)
        for k in ks:
            t = FR + 3 * (k - k0)
            e("v_mul_f32 v%d, v%d, v%d" % (Z + 2 * k, t, t + 2))
            e("v_mul_f32 v%d, v%d, v%d" % (Z + 2 * k + 1, t, t + 1))

    stamp(e, 190)
    def zr(k):
        return Z + 2 * k

    Ereg = {}
    Greg = {}
    Erow = {}
    EB = 40
    GB = 72
    cnt = [0]
    e("s_mov_b32 s57, 0x0000bf80")
    e("s_mov_b32 s58, 0xbf800000")

    def cmul(dst, a, b, conj=False):
        T = (4, 6)[cnt[0] & 1]; cnt[0] += 1
        e("v_pk_mul_f32 %s, %s, %s op_sel:[1,1] op_sel_hi:[1,0]" % (vr(T, 2), vr(a, 2), vr(b, 2)))
        e("v_pk_fma_f32 %s, %s, %s, %s op_sel:[0,0,0] op_sel_hi:[0,1,1] %s" % (vr(dst, 2), vr(a, 2), vr(b, 2), vr(T, 2), "neg_hi:[0,0,1]" if conj else "neg_lo:[0,0,1]"))

    def split_write_list(items):
        TS = [(13, 14, 15), (104, 106, 107)]
        for k in range(0, len(items), 2):
            grp = items[k:k + 2]
            for (src_, row), (h, l0, l1) in zip(grp, TS):
                e("v_cvt_pk_bf16_f32 v%d, v%d, v%d" % (h, src_, src_ + 1))
            for (src_, row), (h, l0, l1) in zip(grp, TS):
                e("v_dot2_f32_bf16 v%d, v%d, s57, v%d" % (l0, h, src_))
                e("v_dot2_f32_bf16 v%d, v%d, s58, v%d" % (l1, h, src_ + 1))
            for (src_, row), (h, l0, l1) in zip(grp, TS):
                e("ds_write_addtid_b32 v%d offset:%d" % (h, row * 288))
            if len(grp) == 1:
                e.nop(3)
            for (src_, row), (h, l0, l1) in zip(grp, TS):
                e("v_cvt_pk_bf16_f32 v%d, v%d, v%d" % (l0, l0, l1))
            for (src_, row), (h, l0, l1) in zip(grp, TS):
                e("ds_write_addtid_b32 v%d offset:%d" % (l0, (row + 16) * 288))

    def mfma_seg(t):
        for s in range(4):
            e("ds_read_b128 %s, v105 offset:%d" % (vr(FR + 16 * s + 0, 4), 64 * s))
            e("ds_read_b128 %s, v105 offset:%d" % (vr(FR + 16 * s + 8, 4), 64 * s + 32 * 288))
            e("ds_read_b128 %s, v105 offset:%d" % (vr(FR + 16 * s + 12, 4), 64 * s + 48 * 288))
            e("ds_read_b128 %s, v105 offset:%d" % (vr(FR + 16 * s + 4, 4), 64 * s + 16 * 288))
        for s in range(4):
            e("s_waitcnt lgkmcnt(%d)" % (12 - 4 * s))
            a = vr(ACC + 4 * t, 4)
            ah, al, bh, bl = (vr(FR + 16 * s + 4 * q, 4) for q in range(4))
            e("v_mfma_f32_16x16x32_bf16 %s, %s, %s, %s" % (a, ah, bh, a))
            e("v_mfma_f32_16x16x32_bf16 %s, %s, %s, %s" % (a, ah, bl, a))
            e("v_mfma_f32_16x16x32_bf16 %s, %s, %s, %s" % (a, al, bh, a))

    colb = []
    e("v_mov_b32 v%d, 1.0" % EB)
    e("v_mov_b32 v%d, 0" % (EB + 1))
    Ereg[0] = EB
    for b in range(1, 16):
        Ereg[b] = EB + 2 * b
        k = b.bit_length() - 1
        hb = 1 << k
        if b == hb:
            e("v_mov_b32 v%d, v%d" % (Ereg[b], zr(k)))
            e("v_mov_b32 v%d, v%d" % (Ereg[b] + 1, zr(k) + 1))
        else:
            cmul(Ereg[b], zr(k), Ereg[b - hb])
    e("v_mov_b32 v%d, v10" % GB)
    e("v_sub_f32 v%d, 0, v11" % (GB + 1))
    Greg[0] = GB
    for a in range(1, 16):
        p = 16 * a
        Greg[p] = GB + 2 * a
        k = p.bit_length() - 1
        cmul(Greg[p], zr(k), Greg[p - (1 << k)], True)
    for b in range(16):
        Erow[b] = b
    split_write_list([(Greg[16 * a], a) for a in range(16)] + [(Ereg[b], 32 + b) for b in range(16)])
    colb.append(list(range(16)))
    mfma_seg(0)
    stamp(e, 190)

    for sg in (1, 2, 3):
        st = 1 << sg
        base = 128 << sg
        hs = 16 << sg
        freeE = sorted(r for p, r in Ereg.items() if p % st != 0)
        freeR = sorted(r for p, r in Erow.items() if p % st != 0)
        Ereg = {p: r for p, r in Ereg.items() if p % st == 0}
        Erow = {p: r for p, r in Erow.items() if p % st == 0}
        kz = 3 + sg
        for b in range(8, 16):
            p = st * b
            Ereg[p] = freeE.pop(0)
            Erow[p] = freeR.pop(0)
            if b == 8:
                e("v_mov_b32 v%d, v%d" % (Ereg[p], zr(kz)))
                e("v_mov_b32 v%d, v%d" % (Ereg[p] + 1, zr(kz) + 1))
            else:
                cmul(Ereg[p], zr(kz), Ereg[p - 8 * st])
        freeG = sorted(r for p, r in Greg.items() if p % hs != 0)
        Greg = {p: r for p, r in Greg.items() if p % hs == 0}
        kz = 7 + sg
        for a in range(8):
            p = base + hs * a
            Greg[p] = freeG.pop(0)
            cmul(Greg[p], zr(kz), Greg[hs * a], True)
        rows = 8
        if sg == 3:
            Greg[2048] = zr(0)
            cmul(Greg[2048], zr(11), Greg[0], True)
            rows = 9
        split_write_list([(Greg[base + hs * a], a) for a in range(rows)] + [(Ereg[st * b], 32 + Erow[st * b]) for b in range(8, 16)])
        cb = [0] * 16
        for b in range(16):
            cb[Erow[st * b]] = b
        colb.append(cb)
        mfma_seg(sg)
        stamp(e, 190)

    e("v_and_b32 v13, 15, v2")
    e("v_lshrrev_b32 v14, 4, v2")
    e("v_lshlrev_b32 v14, 8, v14")
    e("v_add_u32 v14, s50, v14")
    e("v_lshl_add_u32 v16, v13, 2, v14")
    e("v_and_b32 v15, 7, v2")
    e("v_lshlrev_b32 v15, 2, v15")
    e("v_cmp_gt_u32 vcc, 8, v13")
    for sg in (1, 2, 3):
        lo = sum(colb[sg][c] << (4 * c) for c in range(8))
        hi = sum(colb[sg][8 + c] << (4 * c) for c in range(8))
        e("s_mov_b32 s54, 0x%x" % lo)
        e("s_mov_b32 s55, 0x%x" % hi)
        e("v_bfe_u32 v20, s54, v15, 4")
        e("v_bfe_u32 v21, s55, v15, 4")
        e("v_cndmask_b32 v20, v21, v20, vcc")
        e("v_lshl_add_u32 v%d, v20, 2, v14" % (16 + sg))
    e.nop(4)
    e("s_waitcnt lgkmcnt(0)")
    for i in range(4):
        e("ds_write_b32 v16, v%d offset:%d" % (ACC + i, 64 * i))
    e("s_mov_b64 s[52:53], exec")
    e("s_mov_b32 exec_lo, -1")
    e("s_mov_b32 exec_hi, 0")
    for sg in (1, 2, 3):
        qb = 128 + 128 * sg
        for i in range(4):
            e("ds_write_b32 v%d, v%d offset:%d" % (16 + sg, ACC + 4 * sg + i, qb * 4 + 64 * i))
    e("s_mov_b32 s54, 0")
    e("s_mov_b32 s55, 0xffff")
    e("s_mov_b64 exec, s[54:55]")
    e("ds_write_b32 v19, v%d offset:%d" % (ACC + 12, 512 * 4))
    e("s_mov_b64 exec, s[52:53]")
    srd(e, 24, 4, 5, WS_K, D * KQS)
    e("s_mul_i32 s21, s20, %d" % KQS)
    e("v_lshlrev_b32 v9, 2, v0")
    e("s_waitcnt lgkmcnt(0)")
    e("s_barrier")
    stamp(e, 190)
    for m in range(3):
        for w in range(4):
            e("ds_read_b32 v%d, v9 offset:%d" % (24 + 4 * m + w, w * 64 * 288 + 1024 * m))
    for m in range(3):
        e("s_waitcnt lgkmcnt(%d)" % (8 - 4 * m))
        b = 24 + 4 * m
        e("v_add_f32 v%d, v%d, v%d" % (b, b, b + 1))
        e("v_add_f32 v%d, v%d, v%d" % (b + 2, b + 2, b + 3))
        e("v_add_f32 v%d, v%d, v%d" % (b, b, b + 2))
        e("v_add_f32 v%d, v%d, v%d" % (b, b, b))
        e("buffer_store_dword v%d, v9, s[24:27], s21 offen offset:%d" % (b, 1024 * m))
    if "stamp" in OPTS:
        e("s_waitcnt vmcnt(0)")
        stamp(e, 190)
    e.label("K1_END")
    endpgm(e, 0)
    e.label("K1_EXIT")
    e("s_endpgm")
    WGT_IDX[0] += 1
    return kernel_desc(name, 192)


def main():
    out = []
    hdr = open("cdna_kernels/%s.s.ref" % NAME).read().split("\n")
    for ln in hdr:
        if ln.startswith("; @launch") or not ln.startswith(";"):
            break
        out.append(ln)
    launches = []
    e = E()
    descs = []
    import gen_rest
    descs.append(gen_k1(e))
    launches.append(("k1_kernel", K1_GRID, 256, K1_LDS))
    for (nm, fn, grid, blk, lds) in gen_rest.kernels():
        descs.append(fn(e))
        launches.append((nm, grid, blk, lds))
    nl = int(sys.argv[1]) if len(sys.argv) > 1 else len(launches)
    for (nm, g, b, l) in launches[:nl]:
        out.append("; @launch kernel=%s grid=(%d,1,1) block=(%d,1,1) lds=%d" % (nm, g, b, l))
    out.append('.amdgcn_target "amdgcn-amd-amdhsa--gfx950"')
    txt = "\n".join(out) + "\n" + e.text() + "".join(descs)
    open(os.environ.get("GENOUT", "cdna_kernels/%s.s" % NAME), "w").write(txt)
    print("written", len(txt), "bytes")


if __name__ == "__main__":
    main()
```

```python
import sys, struct, os
OPTS = os.environ.get("GENOPTS", "").split(",")

NAME = "sequential_preLN__ssm_conv_s4d__dense_activation_gelu__prompt"
L = 2048; D = 448; N = 256; F = 1792

WS_UT = 0x0
WS_XT = 0x200000
WS_K = 0x400000
KCH = 15360
KQS = 3072
WS_HT = 0xC00000
WS_H1 = 0x1000000
WS_WP = 0x1800000
W1P_SZ = 56 * 28 * 1024
TSZ = D * L * 2


def f32bits(x):
    return struct.unpack("<I", struct.pack("<f", x))[0]


class E:
    def __init__(self):
        self.lines = []

    def __call__(self, s):
        self.lines.append("    " + s)

    def label(self, s):
        self.lines.append(s + ":")

    def c(self, s):
        self.lines.append("    ; " + s)

    def raw(self, s):
        self.lines.append(s)

    def nop(self, n):
        while n > 0:
            k = min(n, 16)
            self("s_nop %d" % (k - 1))
            n -= k

    def text(self):
        return "\n".join(self.lines) + "\n"


def vr(a, n=1):
    return "v%d" % a if n == 1 else "v[%d:%d]" % (a, a + n - 1)


def sr(a, n=1):
    return "s%d" % a if n == 1 else "s[%d:%d]" % (a, a + n - 1)


def srd(e, dst, base_lo, base_hi, off, size):
    if off:
        e("s_add_u32 s%d, s%d, 0x%x" % (dst, base_lo, off))
        e("s_addc_u32 s%d, s%d, 0" % (dst + 1, base_hi))
    else:
        e("s_mov_b32 s%d, s%d" % (dst, base_lo))
        e("s_mov_b32 s%d, s%d" % (dst + 1, base_hi))
    e("s_and_b32 s%d, s%d, 0xffff" % (dst + 1, dst + 1))
    e("s_mov_b32 s%d, 0x%x" % (dst + 2, size))
    e("s_mov_b32 s%d, 0x00020000" % (dst + 3))


def reduce64(e, v, t):
    e.nop(2)
    e("v_add_f32_dpp v%d, v%d, v%d quad_perm:[1,0,3,2] row_mask:0xf bank_mask:0xf" % (v, v, v))
    e.nop(2)
    e("v_add_f32_dpp v%d, v%d, v%d quad_perm:[2,3,0,1] row_mask:0xf bank_mask:0xf" % (v, v, v))
    e.nop(2)
    e("v_add_f32_dpp v%d, v%d, v%d row_half_mirror row_mask:0xf bank_mask:0xf" % (v, v, v))
    e.nop(2)
    e("v_add_f32_dpp v%d, v%d, v%d row_mirror row_mask:0xf bank_mask:0xf" % (v, v, v))
    e("v_mov_b32 v%d, v%d" % (t, v))
    e.nop(2)
    e("v_permlane16_swap_b32 v%d, v%d" % (v, t))
    e("v_add_f32 v%d, v%d, v%d" % (v, v, t))
    e("v_mov_b32 v%d, v%d" % (t, v))
    e.nop(2)
    e("v_permlane32_swap_b32 v%d, v%d" % (v, t))
    e("v_add_f32 v%d, v%d, v%d" % (v, v, t))


def rb1(e, dst, src):
    e("v_cvt_pk_bf16_f32 v%d, v%d, v%d" % (dst, src, src))
    e("v_lshlrev_b32 v%d, 16, v%d" % (dst, dst))


STAMP_WG = int(os.environ.get("STAMPWG", "0"))
def stamp_init(e, vtmp):
    if "stamp" not in OPTS: return
    e("s_load_dwordx2 s[90:91], s[0:1], 104")
    e("s_waitcnt lgkmcnt(0)")
    e("s_mov_b32 s92, s90")
    e("s_and_b32 s93, s91, 0xffff")
    e("s_mov_b32 s94, 256")
    e("s_mov_b32 s95, 0x00020000")
    e.stampn = 0

def stamp(e, vtmp):
    if "stamp" not in OPTS: return
    n = e.stampn; e.stampn += 1
    lab = "STP_%d" % len(e.lines)
    e("s_cmp_lg_u32 s2, %d" % STAMP_WG)
    e("s_cbranch_scc1 %s" % lab)
    e("s_cmp_lg_u32 s3, %d" % int(os.environ.get("STAMPWAVE", "0")))
    e("s_cbranch_scc1 %s" % lab)
    e("s_memtime s[96:97]")
    e("s_waitcnt lgkmcnt(0)")
    e("v_mov_b32 v%d, s96" % vtmp)
    e("s_mov_b64 s[98:99], exec")
    e("s_mov_b64 exec, 1")
    e("v_mov_b32 v%d, 0" % (vtmp + 1))
    e("buffer_store_dword v%d, v%d, s[92:95], 0 offen offset:%d" % (vtmp, vtmp + 1, 4 * n))
    e("s_mov_b64 exec, s[98:99]")
    e.label(lab)


WGT_IDX = [0]
def kernel_header(e, name):
    e.raw(".text")
    e.raw(".globl %s" % name)
    e.raw(".p2align 8")
    e.raw(".type %s,@function" % name)
    e.label(name)
    if "wgt" in OPTS:
        e("s_memrealtime s[86:87]")
        e("s_load_dwordx2 s[84:85], s[0:1], 112")
        e("s_waitcnt lgkmcnt(0)")
    if "hdbg" in OPTS:
        e("s_memrealtime s[86:87]")
        e("s_load_dwordx2 s[84:85], s[0:1], 104")
        e("s_waitcnt lgkmcnt(0)")


def endpgm(e, idx):
    if "wgt" in OPTS:
        e("s_waitcnt vmcnt(0)")
        e("s_memrealtime s[88:89]")
        e("s_waitcnt lgkmcnt(0)")
        srd(e, 80, 84, 85, 0x4000000 + idx * 0x100000, 0x100000)
        e("s_mov_b64 exec, 1")
        e("v_mov_b32 v0, s86")
        e("v_mov_b32 v1, s88")
        e("s_lshl_b32 s90, s2, 4")
        e("s_add_u32 s90, s90, s3")
        e("s_lshl_b32 s90, s90, 3")
        e("v_mov_b32 v2, s90")
        e("buffer_store_dwordx2 v[0:1], v2, s[80:83], 0 offen")
    if "hdbg" in OPTS:
        e("s_waitcnt vmcnt(0)")
        e("s_memrealtime s[88:89]")
        e("s_waitcnt lgkmcnt(0)")
        e("s_sub_u32 s80, s84, %d" % (512 * idx))
        e("s_subb_u32 s81, s85, 0")
        e("s_and_b32 s81, s81, 0xffff")
        e("s_mov_b32 s82, 256")
        e("s_mov_b32 s83, 0x00020000")
        e("s_mov_b64 exec, 1")
        e("s_not_b32 s86, s86")
        e("v_mov_b32 v0, s86")
        e("v_mov_b32 v1, s88")
        e("v_mov_b32 v2, 0")
        e("buffer_atomic_umax v0, v2, s[80:83], 0 offen offset:%d" % (8 * idx))
        e("buffer_atomic_umax v1, v2, s[80:83], 0 offen offset:%d" % (8 * idx + 4))
    e("s_endpgm")


def kernel_desc(name, vgpr, sgpr=102, accum=None):
    if accum is None:
        accum = (vgpr + 3) // 4 * 4
    return """.section .rodata,"a"
.p2align 6
.amdhsa_kernel %s
  .amdhsa_next_free_vgpr %d
  .amdhsa_next_free_sgpr %d
  .amdhsa_accum_offset %d
  .amdhsa_group_segment_fixed_size 0
  .amdhsa_kernarg_size 120
  .amdhsa_user_sgpr_count 2
  .amdhsa_user_sgpr_kernarg_segment_ptr 1
  .amdhsa_system_sgpr_workgroup_id_x 1
.end_amdhsa_kernel
""" % (name, vgpr, sgpr, accum)


K1_LN = 64
K1_KG = 448
K1_GRID = K1_LN + K1_KG
K1_LDS = 4 * 64 * 288 + 64


def reduce64_multi(e, S, T, n):
    for mod in ("quad_perm:[1,0,3,2]", "quad_perm:[2,3,0,1]", "row_half_mirror", "row_mirror"):
        for r in range(n):
            e("v_add_f32_dpp v%d, v%d, v%d %s row_mask:0xf bank_mask:0xf" % (S + r, S + r, S + r, mod))
    for sw in ("v_permlane16_swap_b32", "v_permlane32_swap_b32"):
        for r in range(n):
            e("v_mov_b32 v%d, v%d" % (T + r, S + r))
        for r in range(n):
            e("%s v%d, v%d" % (sw, S + r, T + r))
        for r in range(n):
            e("v_add_f32 v%d, v%d, v%d" % (S + r, S + r, T + r))


def gen_k1(e):
    name = "k1_kernel"
    kernel_header(e, name)
    e("s_cmp_ge_u32 s2, %d" % K1_GRID)
    e("s_cbranch_scc1 K1_EXIT")
    e("s_load_dwordx2 s[4:5], s[0:1], 112")
    e("v_lshrrev_b32 v1, 6, v0")
    e("v_and_b32 v2, 63, v0")
    e("s_nop 0")
    e("v_readfirstlane_b32 s3, v1")
    e("s_cmp_ge_u32 s2, %d" % K1_KG)
    e("s_cbranch_scc0 K1_KGB")

    e.label("K1_LNB")
    if "noln" in OPTS: e("s_branch K1_END")
    e("s_load_dwordx2 s[6:7], s[0:1], 0")
    e("s_waitcnt lgkmcnt(0)")
    stamp_init(e, 190)
    stamp(e, 190)
    srd(e, 8, 6, 7, 0, TSZ)
    srd(e, 12, 4, 5, WS_UT, TSZ)
    srd(e, 16, 4, 5, WS_XT, TSZ)
    e("s_sub_u32 s20, s2, %d" % K1_KG)
    e("s_lshl_b32 s20, s20, 5")
    e("s_lshl_b32 s21, s3, 3")
    e("s_add_u32 s21, s21, s20")
    e("s_mul_i32 s22, s21, 896")
    e("v_lshlrev_b32 v3, 4, v2")
    RX = 32
    for i in range(32):
        e("v_mov_b32 v%d, 0" % (RX + i))
    e("s_mov_b64 s[24:25], exec")
    e("v_cmp_gt_u32 vcc, 56, v2")
    e("s_mov_b64 s[26:27], vcc")
    e("s_mov_b64 exec, s[26:27]")
    for r in range(8):
        if r == 4:
            e("s_add_u32 s22, s22, 3584")
        e("buffer_load_dwordx4 %s, v3, s[8:11], s22 offen offset:%d" % (vr(RX + 4 * r, 4), (r & 3) * 896))
    e("s_mov_b64 exec, s[24:25]")
    e("s_lshl_b32 s23, s3, 3")
    e("s_mul_i32 s23, s23, 912")
    e("v_add_u32 v4, s23, v3")
    e("s_mov_b32 s28, 0x%x" % f32bits(1.0 / 448.0))
    e("s_mov_b32 s29, 0x%x" % f32bits(1e-5))
    e("s_mov_b32 s30, 0xffff0000")
    e("s_setprio 3")
    e("s_mov_b32 s40, 0x3f803f80")
    e("s_mov_b32 s41, 0x00003f80")
    e("s_mov_b32 s42, 0x3f800000")
    S, T, X = 8, 64, 96
    for r in range(16):
        e("v_mov_b32 v%d, 0" % (S + r))
    for r in range(8):
        e("s_waitcnt vmcnt(%d)" % (7 - r))
        R = RX + 4 * r
        for k in range(4):
            e("v_dot2_f32_bf16 v%d, v%d, s40, v%d" % (S + r, R + k, S + r))
            e("v_dot2_f32_bf16 v%d, v%d, v%d, v%d" % (S + 8 + r, R + k, R + k, S + 8 + r))
    stamp(e, 190)
    e("s_mov_b64 exec, s[26:27]")
    for r in range(8):
        e("ds_write_b128 v4, %s offset:%d" % (vr(RX + 4 * r, 4), 32 * 912 + r * 912))
    e("s_mov_b64 exec, s[24:25]")
    reduce64_multi(e, S, T, 16)
    V = S + 8
    for r in range(16):
        e("v_mul_f32 v%d, s28, v%d" % (S + r, S + r))
    for r in range(8):
        e("v_fma_f32 v%d, -v%d, v%d, v%d" % (V + r, S + r, S + r, V + r))
    for r in range(8):
        e("v_max_f32 v%d, 0, v%d" % (V + r, V + r))
    for r in range(8):
        e("v_cvt_pk_bf16_f32 v%d, v%d, v%d" % (S + r, S + r, S + r))
        e("v_cvt_pk_bf16_f32 v%d, v%d, v%d" % (V + r, V + r, V + r))
    for r in range(8):
        e("v_lshlrev_b32 v%d, 16, v%d" % (S + r, S + r))
        e("v_lshlrev_b32 v%d, 16, v%d" % (V + r, V + r))
    for r in range(8):
        e("v_add_f32 v%d, s29, v%d" % (V + r, V + r))
        e("v_sub_f32 v%d, 0, v%d" % (S + r, S + r))
    for r in range(8):
        e("v_cvt_pk_bf16_f32 v%d, v%d, v%d" % (V + r, V + r, V + r))
    for r in range(8):
        e("v_lshlrev_b32 v%d, 16, v%d" % (V + r, V + r))
    for r in range(8):
        e("v_sqrt_f32 v%d, v%d" % (V + r, V + r))
    for r in range(8):
        e("v_cvt_pk_bf16_f32 v%d, v%d, v%d" % (V + r, V + r, V + r))
    for r in range(8):
        e("v_lshlrev_b32 v%d, 16, v%d" % (V + r, V + r))
    for r in range(8):
        e("v_rcp_f32 v%d, v%d" % (V + r, V + r))
    for r in range(8):
        R = RX + 4 * r
        xb = X + 8 * (r & 1)
        for k in range(4):
            e("v_dot2_f32_bf16 v%d, v%d, s41, v%d" % (xb + 2 * k, R + k, S + r))
            e("v_dot2_f32_bf16 v%d, v%d, s42, v%d" % (xb + 2 * k + 1, R + k, S + r))
        e.nop(2)
        for k in range(4):
            e("v_cvt_pk_bf16_f32 v%d, v%d, v%d" % (R + k, xb + 2 * k, xb + 2 * k + 1))
        for k in range(4):
            e("v_lshlrev_b32 v%d, 16, v%d" % (xb + 2 * k, R + k))
            e("v_mul_f32 v%d, v%d, v%d" % (xb + 2 * k, xb + 2 * k, V + r))
            e("v_and_b32 v%d, s30, v%d" % (xb + 2 * k + 1, R + k))
            e("v_mul_f32 v%d, v%d, v%d" % (xb + 2 * k + 1, xb + 2 * k + 1, V + r))
        for k in range(4):
            e("v_cvt_pk_bf16_f32 v%d, v%d, v%d" % (R + k, xb + 2 * k, xb + 2 * k + 1))
    e("s_mov_b64 exec, s[26:27]")
    for r in range(8):
        e("ds_write_b128 v4, %s offset:%d" % (vr(RX + 4 * r, 4), r * 912))
    e("s_mov_b64 exec, s[24:25]")
    stamp(e, 190)
    e("s_waitcnt lgkmcnt(0)")
    e("s_barrier")
    stamp(e, 190)
    e("v_and_b32 v5, 15, v2")
    e("v_lshrrev_b32 v6, 4, v2")
    e("v_lshrrev_b32 v7, 2, v5")
    e("v_and_b32 v8, 3, v5")
    e("v_lshlrev_b32 v9, 3, v6")
    e("v_add_u32 v10, v9, v7")
    e("v_mul_u32_u24 v10, 912, v10")
    e("v_lshl_add_u32 v10, v8, 3, v10")
    e("v_sub_u32 v11, v9, v7")
    e("v_add_u32 v11, 3, v11")
    e("v_mul_u32_u24 v11, 912, v11")
    e("v_lshl_add_u32 v11, v8, 3, v11")
    e("v_lshlrev_b32 v12, 12, v5")
    e("s_lshl_b32 s31, s20, 1")
    e("v_lshl_add_u32 v13, v9, 1, v12")
    e("v_add_u32 v13, s31, v13")
    e("v_lshlrev_b32 v14, 1, v9")
    e("v_sub_u32 v14, v12, v14")
    e("s_sub_u32 s32, 4080, s31")
    e("v_add_u32 v14, s32, v14")
    e("s_lshl_b32 s33, s3, 5")
    e("s_lshl_b32 s34, s3, 16")
    e("v_add_u32 v11, s33, v11")
    e("v_add_u32 v10, s33, v10")
    for k in range(7):
        co = k * 128
        b = 16 + 8 * k
        e("ds_read_b64_tr_b16 %s, v11 offset:%d" % (vr(b, 2), co + 4 * 912))
        e("ds_read_b64_tr_b16 %s, v11 offset:%d" % (vr(b + 2, 2), co))
        e("ds_read_b64_tr_b16 %s, v10 offset:%d" % (vr(b + 4, 2), co + 32 * 912))
        e("ds_read_b64_tr_b16 %s, v10 offset:%d" % (vr(b + 6, 2), co + 32 * 912 + 4 * 912))
    for k in range(7):
        b = 16 + 8 * k
        e("s_waitcnt lgkmcnt(%d)" % min(15, 4 * (6 - k) + 2))
        e("buffer_store_dwordx4 %s, v14, s[12:15], s34 offen" % vr(b, 4))
        e("s_waitcnt lgkmcnt(%d)" % min(15, 4 * (6 - k)))
        e("buffer_store_dwordx4 %s, v13, s[16:19], s34 offen" % vr(b + 4, 4))
        e("s_add_u32 s34, s34, 0x%x" % (64 * 4096))
    stamp(e, 190)
    if "stamp" in OPTS:
        e("s_waitcnt vmcnt(0)")
        stamp(e, 190)
    e("s_branch K1_END")

    e.label("K1_KGB")
    if "nokg" in OPTS: e("s_branch K1_END")
    e("s_load_dwordx8 s[8:15], s[0:1], 8")
    e("s_load_dwordx2 s[16:17], s[0:1], 40")
    e("s_mov_b32 s20, s2")
    e("s_waitcnt lgkmcnt(0)")
    stamp_init(e, 190)
    stamp(e, 190)
    srd(e, 24, 8, 9, 0, D * N * 2)
    srd(e, 28, 10, 11, 0, D * N * 2)
    srd(e, 32, 12, 13, 0, D * N * 2)
    srd(e, 36, 14, 15, 0, D * N * 2)
    srd(e, 40, 16, 17, 0, D * 2)
    e("s_lshl_b32 s21, s20, 9")
    e("v_lshlrev_b32 v3, 1, v0")
    e("s_lshl_b32 s22, s20, 1")
    e("v_mov_b32 v4, 0")
    e("buffer_load_ushort v8, v3, s[24:27], s21 offen")
    e("buffer_load_ushort v12, v4, s[40:43], s22 offen")
    e("buffer_load_ushort v9, v3, s[28:31], s21 offen")
    e("buffer_load_ushort v10, v3, s[32:35], s21 offen")
    e("buffer_load_ushort v11, v3, s[36:39], s21 offen")
    import numpy as np
    lhi = np.float32(1.4426950408889634)
    llo = np.float32(1.4426950408889634 - float(lhi))
    e("s_mov_b32 s44, 0x%x" % f32bits(float(lhi)))
    e("s_mov_b32 s45, 0x%x" % f32bits(float(llo)))
    e("s_mov_b32 s46, 0x%x" % f32bits(0.6931471805599453))
    e("s_mov_b32 s47, 0xffff0000")
    e("s_mov_b32 s48, 0x%x" % f32bits(0.15915494309189535))
    e("s_mul_i32 s50, s3, %d" % (64 * 288))
    e("s_mov_b32 m0, s50")
    e("v_and_b32 v105, 15, v2")
    e("v_mul_u32_u24 v105, 288, v105")
    e("v_lshrrev_b32 v106, 4, v2")
    e("v_lshl_add_u32 v105, v106, 4, v105")
    e("v_add_u32 v105, s50, v105")
    ACC = 108
    FR = 124
    for i in range(16):
        e("v_mov_b32 v%d, 0" % (ACC + i))
    e("s_waitcnt vmcnt(0)")
    stamp(e, 190)
    for r in (8, 9, 10, 11, 12):
        e("v_lshlrev_b32 v%d, 16, v%d" % (r, r))

    def exp_acc(dst, x, t1, t2):
        e("v_mul_f32 v%d, s44, v%d" % (t1, x))
        e("v_fma_f32 v%d, v%d, s44, -v%d" % (t2, x, t1))
        e("v_fmac_f32 v%d, s45, v%d" % (t2, x))
        e("v_exp_f32 v%d, v%d" % (t1, t1))
        e("v_mul_f32 v%d, s46, v%d" % (t2, t2))
        e("v_fma_f32 v%d, v%d, v%d, v%d" % (dst, t1, t2, t1))
        rb1(e, dst, dst)

    exp_acc(12, 12, 13, 14)
    exp_acc(8, 8, 13, 14)
    e("v_mul_f32 v8, v8, v12")
    e("v_mul_f32 v9, v9, v12")
    e("v_mul_f32 v10, v10, v12")
    e("v_mul_f32 v11, v11, v12")
    e("v_mul_f32 v8, s44, v8")
    e("v_mul_f32 v9, s48, v9")
    Z = 16
    for k0 in range(0, 12, 4):
        ks = range(k0, k0 + 4)
        for k in ks:
            e("v_mul_f32 v%d, 0x%x, v8" % (FR + 3 * (k - k0), f32bits(float(2 ** k))))
            e("v_mul_f32 v%d, 0x%x, v9" % (FR + 3 * (k - k0) + 1, f32bits(float(2 ** k))))
        for k in ks:
            t = FR + 3 * (k - k0)
            e("v_exp_f32 v%d, -v%d" % (t, t))
            e("v_fract_f32 v%d, v%d" % (t + 1, t + 1))
        for k in ks:
            t = FR + 3 * (k - k0)
            e("v_cos_f32 v%d, v%d" % (t + 2, t + 1))
            e("v_sin_f32 v%d, v%d" % (t + 1, t + 1))
        e.nop(1)
        for k in ks:
            t = FR + 3 * (k - k0)
            e("v_mul_f32 v%d, v%d, v%d" % (Z + 2 * k, t, t + 2))
            e("v_mul_f32 v%d, v%d, v%d" % (Z + 2 * k + 1, t, t + 1))

    stamp(e, 190)
    def zr(k):
        return Z + 2 * k

    Ereg = {}
    Greg = {}
    Erow = {}
    EB = 40
    GB = 72
    cnt = [0]
    e("s_mov_b32 s57, 0x0000bf80")
    e("s_mov_b32 s58, 0xbf800000")

    def cmul(dst, a, b, conj=False):
        T = (4, 6)[cnt[0] & 1]; cnt[0] += 1
        e("v_pk_mul_f32 %s, %s, %s op_sel:[1,1] op_sel_hi:[1,0]" % (vr(T, 2), vr(a, 2), vr(b, 2)))
        e("v_pk_fma_f32 %s, %s, %s, %s op_sel:[0,0,0] op_sel_hi:[0,1,1] %s" % (vr(dst, 2), vr(a, 2), vr(b, 2), vr(T, 2), "neg_hi:[0,0,1]" if conj else "neg_lo:[0,0,1]"))

    def split_write_list(items):
        TS = [(13, 14, 15), (104, 106, 107)]
        for k in range(0, len(items), 2):
            grp = items[k:k + 2]
            for (src_, row), (h, l0, l1) in zip(grp, TS):
                e("v_cvt_pk_bf16_f32 v%d, v%d, v%d" % (h, src_, src_ + 1))
            for (src_, row), (h, l0, l1) in zip(grp, TS):
                e("v_dot2_f32_bf16 v%d, v%d, s57, v%d" % (l0, h, src_))
                e("v_dot2_f32_bf16 v%d, v%d, s58, v%d" % (l1, h, src_ + 1))
            for (src_, row), (h, l0, l1) in zip(grp, TS):
                e("ds_write_addtid_b32 v%d offset:%d" % (h, row * 288))
            if len(grp) == 1:
                e.nop(3)
            for (src_, row), (h, l0, l1) in zip(grp, TS):
                e("v_cvt_pk_bf16_f32 v%d, v%d, v%d" % (l0, l0, l1))
            for (src_, row), (h, l0, l1) in zip(grp, TS):
                e("ds_write_addtid_b32 v%d offset:%d" % (l0, (row + 16) * 288))

    def mfma_seg(t):
        for s in range(4):
            e("ds_read_b128 %s, v105 offset:%d" % (vr(FR + 16 * s + 0, 4), 64 * s))
            e("ds_read_b128 %s, v105 offset:%d" % (vr(FR + 16 * s + 8, 4), 64 * s + 32 * 288))
            e("ds_read_b128 %s, v105 offset:%d" % (vr(FR + 16 * s + 12, 4), 64 * s + 48 * 288))
            e("ds_read_b128 %s, v105 offset:%d" % (vr(FR + 16 * s + 4, 4), 64 * s + 16 * 288))
        for s in range(4):
            e("s_waitcnt lgkmcnt(%d)" % (12 - 4 * s))
            a = vr(ACC + 4 * t, 4)
            ah, al, bh, bl = (vr(FR + 16 * s + 4 * q, 4) for q in range(4))
            e("v_mfma_f32_16x16x32_bf16 %s, %s, %s, %s" % (a, ah, bh, a))
            e("v_mfma_f32_16x16x32_bf16 %s, %s, %s, %s" % (a, ah, bl, a))
            e("v_mfma_f32_16x16x32_bf16 %s, %s, %s, %s" % (a, al, bh, a))

    colb = []
    e("v_mov_b32 v%d, 1.0" % EB)
    e("v_mov_b32 v%d, 0" % (EB + 1))
    Ereg[0] = EB
    for b in range(1, 16):
        Ereg[b] = EB + 2 * b
        k = b.bit_length() - 1
        hb = 1 << k
        if b == hb:
            e("v_mov_b32 v%d, v%d" % (Ereg[b], zr(k)))
            e("v_mov_b32 v%d, v%d" % (Ereg[b] + 1, zr(k) + 1))
        else:
            cmul(Ereg[b], zr(k), Ereg[b - hb])
    e("v_mov_b32 v%d, v10" % GB)
    e("v_sub_f32 v%d, 0, v11" % (GB + 1))
    Greg[0] = GB
    for a in range(1, 16):
        p = 16 * a
        Greg[p] = GB + 2 * a
        k = p.bit_length() - 1
        cmul(Greg[p], zr(k), Greg[p - (1 << k)], True)
    for b in range(16):
        Erow[b] = b
    split_write_list([(Greg[16 * a], a) for a in range(16)] + [(Ereg[b], 32 + b) for b in range(16)])
    colb.append(list(range(16)))
    mfma_seg(0)
    stamp(e, 190)

    for sg in (1, 2, 3):
        st = 1 << sg
        base = 128 << sg
        hs = 16 << sg
        freeE = sorted(r for p, r in Ereg.items() if p % st != 0)
        freeR = sorted(r for p, r in Erow.items() if p % st != 0)
        Ereg = {p: r for p, r in Ereg.items() if p % st == 0}
        Erow = {p: r for p, r in Erow.items() if p % st == 0}
        kz = 3 + sg
        for b in range(8, 16):
            p = st * b
            Ereg[p] = freeE.pop(0)
            Erow[p] = freeR.pop(0)
            if b == 8:
                e("v_mov_b32 v%d, v%d" % (Ereg[p], zr(kz)))
                e("v_mov_b32 v%d, v%d" % (Ereg[p] + 1, zr(kz) + 1))
            else:
                cmul(Ereg[p], zr(kz), Ereg[p - 8 * st])
        freeG = sorted(r for p, r in Greg.items() if p % hs != 0)
        Greg = {p: r for p, r in Greg.items() if p % hs == 0}
        kz = 7 + sg
        for a in range(8):
            p = base + hs * a
            Greg[p] = freeG.pop(0)
            cmul(Greg[p], zr(kz), Greg[hs * a], True)
        rows = 8
        if sg == 3:
            Greg[2048] = zr(0)
            cmul(Greg[2048], zr(11), Greg[0], True)
            rows = 9
        split_write_list([(Greg[base + hs * a], a) for a in range(rows)] + [(Ereg[st * b], 32 + Erow[st * b]) for b in range(8, 16)])
        cb = [0] * 16
        for b in range(16):
            cb[Erow[st * b]] = b
        colb.append(cb)
        mfma_seg(sg)
        stamp(e, 190)

    e("v_and_b32 v13, 15, v2")
    e("v_lshrrev_b32 v14, 4, v2")
    e("v_lshlrev_b32 v14, 8, v14")
    e("v_add_u32 v14, s50, v14")
    e("v_lshl_add_u32 v16, v13, 2, v14")
    e("v_and_b32 v15, 7, v2")
    e("v_lshlrev_b32 v15, 2, v15")
    e("v_cmp_gt_u32 vcc, 8, v13")
    for sg in (1, 2, 3):
        lo = sum(colb[sg][c] << (4 * c) for c in range(8))
        hi = sum(colb[sg][8 + c] << (4 * c) for c in range(8))
        e("s_mov_b32 s54, 0x%x" % lo)
        e("s_mov_b32 s55, 0x%x" % hi)
        e("v_bfe_u32 v20, s54, v15, 4")
        e("v_bfe_u32 v21, s55, v15, 4")
        e("v_cndmask_b32 v20, v21, v20, vcc")
        e("v_lshl_add_u32 v%d, v20, 2, v14" % (16 + sg))
    e.nop(4)
    e("s_waitcnt lgkmcnt(0)")
    for i in range(4):
        e("ds_write_b32 v16, v%d offset:%d" % (ACC + i, 64 * i))
    e("s_mov_b64 s[52:53], exec")
    e("s_mov_b32 exec_lo, -1")
    e("s_mov_b32 exec_hi, 0")
    for sg in (1, 2, 3):
        qb = 128 + 128 * sg
        for i in range(4):
            e("ds_write_b32 v%d, v%d offset:%d" % (16 + sg, ACC + 4 * sg + i, qb * 4 + 64 * i))
    e("s_mov_b32 s54, 0")
    e("s_mov_b32 s55, 0xffff")
    e("s_mov_b64 exec, s[54:55]")
    e("ds_write_b32 v19, v%d offset:%d" % (ACC + 12, 512 * 4))
    e("s_mov_b64 exec, s[52:53]")
    srd(e, 24, 4, 5, WS_K, D * KQS)
    e("s_mul_i32 s21, s20, %d" % KQS)
    e("v_lshlrev_b32 v9, 2, v0")
    e("s_waitcnt lgkmcnt(0)")
    e("s_barrier")
    stamp(e, 190)
    for m in range(3):
        for w in range(4):
            e("ds_read_b32 v%d, v9 offset:%d" % (24 + 4 * m + w, w * 64 * 288 + 1024 * m))
    for m in range(3):
        e("s_waitcnt lgkmcnt(%d)" % (8 - 4 * m))
        b = 24 + 4 * m
        e("v_add_f32 v%d, v%d, v%d" % (b, b, b + 1))
        e("v_add_f32 v%d, v%d, v%d" % (b + 2, b + 2, b + 3))
        e("v_add_f32 v%d, v%d, v%d" % (b, b, b + 2))
        e("v_add_f32 v%d, v%d, v%d" % (b, b, b))
        e("buffer_store_dword v%d, v9, s[24:27], s21 offen offset:%d" % (b, 1024 * m))
    if "stamp" in OPTS:
        e("s_waitcnt vmcnt(0)")
        stamp(e, 190)
    e.label("K1_END")
    endpgm(e, 0)
    e.label("K1_EXIT")
    e("s_endpgm")
    WGT_IDX[0] += 1
    return kernel_desc(name, 192)


def gen_k5(e, specs):
    name = "k5_kernel"
    e.raw(".text")
    e.raw(".globl %s" % name)
    e.raw(".p2align 8")
    e.raw(".type %s,@function" % name)
    e.label(name)
    e("s_cmp_ge_u32 s2, 1")
    e("s_cbranch_scc1 K5_EXIT")
    e("s_load_dwordx2 s[4:5], s[0:1], 112")
    e("s_load_dwordx2 s[6:7], s[0:1], 104")
    e("s_waitcnt lgkmcnt(0)")
    srd(e, 8, 4, 5, 0x4000000, 0x400000)
    srd(e, 12, 6, 7, 0, 256)
    e("s_sub_u32 s16, s6, %d" % (512 * len(specs)))
    e("s_subb_u32 s17, s7, 0")
    e("s_and_b32 s17, s17, 0xffff")
    e("s_mov_b32 s18, 256")
    e("s_mov_b32 s19, 0x00020000")
    e("v_mov_b32 v10, -1")
    e("v_mov_b32 v11, 0")
    e("v_lshlrev_b32 v12, 3, v0")
    e("v_and_b32 v13, 7, v0")
    e("v_lshlrev_b32 v13, 3, v13")
    e("ds_write_b64 v13, v[10:11]")
    e("s_waitcnt lgkmcnt(0)")
    for i, (g, nw) in enumerate(specs):
        e("v_mov_b32 v10, -1")
        e("v_mov_b32 v11, 0")
        for c in range((g + 63) // 64):
            e("v_add_u32 v1, %d, v0" % (64 * c))
            e("v_min_u32 v1, %d, v1" % (g - 1))
            e("v_lshlrev_b32 v1, 7, v1")
            e("s_mov_b32 s20, 0x%x" % (i * 0x100000))
            for w in range(nw):
                e("buffer_load_dwordx2 v[%d:%d], v1, s[8:11], s20 offen offset:%d" % (20 + 2 * w, 21 + 2 * w, 8 * w))
            e("s_waitcnt vmcnt(0)")
            for w in range(nw):
                e("v_min_u32 v10, v10, v%d" % (20 + 2 * w))
                e("v_max_u32 v11, v11, v%d" % (21 + 2 * w))
        e("v_mov_b32 v2, %d" % (8 * i))
        e("ds_min_u32 v2, v10")
        e("ds_max_u32 v2, v11 offset:4")
    e("s_waitcnt lgkmcnt(0)")
    e("v_lshlrev_b32 v3, 2, v0")
    e("v_mov_b32 v4, 0")
    e("ds_read_b32 v5, v3")
    e("ds_read_b32 v6, v4")
    e("s_waitcnt lgkmcnt(0)")
    e("v_sub_u32 v5, v5, v6")
    e("v_cmp_gt_u32 vcc, 8, v0")
    e("s_and_saveexec_b64 s[22:23], vcc")
    e("buffer_store_dword v5, v3, s[12:15], 0 offen")
    e("buffer_store_dword v5, v3, s[16:19], 0 offen")
    e.label("K5_EXIT")
    e("s_endpgm")
    return kernel_desc(name, 64)


def main():
    out = []
    hdr = open("cdna_kernels/%s.s.ref" % NAME).read().split("\n")
    for ln in hdr:
        if ln.startswith("; @launch") or not ln.startswith(";"):
            break
        out.append(ln)
    launches = []
    e = E()
    descs = []
    import gen_rest
    descs.append(gen_k1(e))
    launches.append(("k1_kernel", K1_GRID, 256, K1_LDS))
    for (nm, fn, grid, blk, lds) in gen_rest.kernels():
        descs.append(fn(e))
        launches.append((nm, grid, blk, lds))
    if "k5" in OPTS:
        descs.append(gen_k5(e, [(g, b // 64) for (_, g, b, _) in launches]))
        launches.append(("k5_kernel", 1, 64, 1024))
    nl = int(sys.argv[1]) if len(sys.argv) > 1 else len(launches)
    for (nm, g, b, l) in launches[:nl]:
        out.append("; @launch kernel=%s grid=(%d,1,1) block=(%d,1,1) lds=%d" % (nm, g, b, l))
    out.append('.amdgcn_target "amdgcn-amd-amdhsa--gfx950"')
    txt = "\n".join(out) + "\n" + e.text() + "".join(descs)
    open(os.environ.get("GENOUT", "cdna_kernels/%s.s" % NAME), "w").write(txt)
    print("written", len(txt), "bytes")


if __name__ == "__main__":
    main()
```

```python
import sys, struct, os
OPTS = os.environ.get("GENOPTS", "").split(",")

NAME = "sequential_preLN__ssm_conv_s4d__dense_activation_gelu__prompt"
L = 2048; D = 448; N = 256; F = 1792

WS_UT = 0x0
WS_XT = 0x200000
WS_K = 0x400000
KCH = 15360
KQS = 3072
WS_HT = 0xC00000
WS_H1 = 0x1000000
WS_WP = 0x1800000
W1P_SZ = 56 * 28 * 1024
TSZ = D * L * 2


def f32bits(x):
    return struct.unpack("<I", struct.pack("<f", x))[0]


class E:
    def __init__(self):
        self.lines = []

    def __call__(self, s):
        self.lines.append("    " + s)

    def label(self, s):
        self.lines.append(s + ":")

    def c(self, s):
        self.lines.append("    ; " + s)

    def raw(self, s):
        self.lines.append(s)

    def nop(self, n):
        while n > 0:
            k = min(n, 16)
            self("s_nop %d" % (k - 1))
            n -= k

    def text(self):
        return "\n".join(self.lines) + "\n"


def vr(a, n=1):
    return "v%d" % a if n == 1 else "v[%d:%d]" % (a, a + n - 1)


def sr(a, n=1):
    return "s%d" % a if n == 1 else "s[%d:%d]" % (a, a + n - 1)


def srd(e, dst, base_lo, base_hi, off, size):
    if off:
        e("s_add_u32 s%d, s%d, 0x%x" % (dst, base_lo, off))
        e("s_addc_u32 s%d, s%d, 0" % (dst + 1, base_hi))
    else:
        e("s_mov_b32 s%d, s%d" % (dst, base_lo))
        e("s_mov_b32 s%d, s%d" % (dst + 1, base_hi))
    e("s_and_b32 s%d, s%d, 0xffff" % (dst + 1, dst + 1))
    e("s_mov_b32 s%d, 0x%x" % (dst + 2, size))
    e("s_mov_b32 s%d, 0x00020000" % (dst + 3))


def reduce64(e, v, t):
    e.nop(2)
    e("v_add_f32_dpp v%d, v%d, v%d quad_perm:[1,0,3,2] row_mask:0xf bank_mask:0xf" % (v, v, v))
    e.nop(2)
    e("v_add_f32_dpp v%d, v%d, v%d quad_perm:[2,3,0,1] row_mask:0xf bank_mask:0xf" % (v, v, v))
    e.nop(2)
    e("v_add_f32_dpp v%d, v%d, v%d row_half_mirror row_mask:0xf bank_mask:0xf" % (v, v, v))
    e.nop(2)
    e("v_add_f32_dpp v%d, v%d, v%d row_mirror row_mask:0xf bank_mask:0xf" % (v, v, v))
    e("v_mov_b32 v%d, v%d" % (t, v))
    e.nop(2)
    e("v_permlane16_swap_b32 v%d, v%d" % (v, t))
    e("v_add_f32 v%d, v%d, v%d" % (v, v, t))
    e("v_mov_b32 v%d, v%d" % (t, v))
    e.nop(2)
    e("v_permlane32_swap_b32 v%d, v%d" % (v, t))
    e("v_add_f32 v%d, v%d, v%d" % (v, v, t))


def rb1(e, dst, src):
    e("v_cvt_pk_bf16_f32 v%d, v%d, v%d" % (dst, src, src))
    e("v_lshlrev_b32 v%d, 16, v%d" % (dst, dst))


STAMP_WG = int(os.environ.get("STAMPWG", "0"))
def stamp_init(e, vtmp):
    if "stamp" not in OPTS: return
    e("s_load_dwordx2 s[90:91], s[0:1], 104")
    e("s_waitcnt lgkmcnt(0)")
    e("s_mov_b32 s92, s90")
    e("s_and_b32 s93, s91, 0xffff")
    e("s_mov_b32 s94, 256")
    e("s_mov_b32 s95, 0x00020000")
    e.stampn = 0

def stamp(e, vtmp):
    if "stamp" not in OPTS: return
    n = e.stampn; e.stampn += 1
    lab = "STP_%d" % len(e.lines)
    e("s_cmp_lg_u32 s2, %d" % STAMP_WG)
    e("s_cbranch_scc1 %s" % lab)
    e("s_cmp_lg_u32 s3, %d" % int(os.environ.get("STAMPWAVE", "0")))
    e("s_cbranch_scc1 %s" % lab)
    e("s_memtime s[96:97]")
    e("s_waitcnt lgkmcnt(0)")
    e("v_mov_b32 v%d, s96" % vtmp)
    e("s_mov_b64 s[98:99], exec")
    e("s_mov_b64 exec, 1")
    e("v_mov_b32 v%d, 0" % (vtmp + 1))
    e("buffer_store_dword v%d, v%d, s[92:95], 0 offen offset:%d" % (vtmp, vtmp + 1, 4 * n))
    e("s_mov_b64 exec, s[98:99]")
    e.label(lab)


WGT_IDX = [0]
def kernel_header(e, name):
    e.raw(".text")
    e.raw(".globl %s" % name)
    e.raw(".p2align 8")
    e.raw(".type %s,@function" % name)
    e.label(name)
    if "wgt" in OPTS:
        e("s_memrealtime s[86:87]")
        e("s_load_dwordx2 s[84:85], s[0:1], 112")
        e("s_waitcnt lgkmcnt(0)")
    if "hdbg" in OPTS:
        e("s_memrealtime s[86:87]")
        e("s_load_dwordx2 s[84:85], s[0:1], 104")
        e("s_waitcnt lgkmcnt(0)")


def endpgm(e, idx):
    if "wgt" in OPTS:
        e("s_waitcnt vmcnt(0)")
        e("s_memrealtime s[88:89]")
        e("s_waitcnt lgkmcnt(0)")
        srd(e, 80, 84, 85, 0x4000000 + idx * 0x100000, 0x100000)
        e("s_mov_b64 exec, 1")
        e("v_mov_b32 v0, s86")
        e("v_mov_b32 v1, s88")
        e("s_lshl_b32 s90, s2, 4")
        e("s_add_u32 s90, s90, s3")
        e("s_lshl_b32 s90, s90, 3")
        e("v_mov_b32 v2, s90")
        e("buffer_store_dwordx2 v[0:1], v2, s[80:83], 0 offen")
    if "hdbg" in OPTS:
        e("s_waitcnt vmcnt(0)")
        e("s_memrealtime s[88:89]")
        e("s_waitcnt lgkmcnt(0)")
        e("s_sub_u32 s80, s84, %d" % (512 * idx))
        e("s_subb_u32 s81, s85, 0")
        e("s_and_b32 s81, s81, 0xffff")
        e("s_mov_b32 s82, 256")
        e("s_mov_b32 s83, 0x00020000")
        e("s_mov_b64 exec, 1")
        e("s_not_b32 s86, s86")
        e("v_mov_b32 v0, s86")
        e("v_mov_b32 v1, s88")
        e("v_mov_b32 v2, 0")
        e("buffer_atomic_umax v0, v2, s[80:83], 0 offen offset:%d" % (8 * idx))
        e("buffer_atomic_umax v1, v2, s[80:83], 0 offen offset:%d" % (8 * idx + 4))
    e("s_endpgm")


def kernel_desc(name, vgpr, sgpr=102, accum=None):
    if accum is None:
        accum = (vgpr + 3) // 4 * 4
    return """.section .rodata,"a"
.p2align 6
.amdhsa_kernel %s
  .amdhsa_next_free_vgpr %d
  .amdhsa_next_free_sgpr %d
  .amdhsa_accum_offset %d
  .amdhsa_group_segment_fixed_size 0
  .amdhsa_kernarg_size 120
  .amdhsa_user_sgpr_count 2
  .amdhsa_user_sgpr_kernarg_segment_ptr 1
  .amdhsa_system_sgpr_workgroup_id_x 1
.end_amdhsa_kernel
""" % (name, vgpr, sgpr, accum)


K1_LN = 64
K1_KG = 448
K1_GRID = K1_LN + K1_KG
K1_LDS = 4 * 64 * 288 + 64


def reduce64_multi(e, S, T, n):
    for mod in ("quad_perm:[1,0,3,2]", "quad_perm:[2,3,0,1]", "row_half_mirror", "row_mirror"):
        for r in range(n):
            e("v_add_f32_dpp v%d, v%d, v%d %s row_mask:0xf bank_mask:0xf" % (S + r, S + r, S + r, mod))
    for sw in ("v_permlane16_swap_b32", "v_permlane32_swap_b32"):
        for r in range(n):
            e("v_mov_b32 v%d, v%d" % (T + r, S + r))
        for r in range(n):
            e("%s v%d, v%d" % (sw, S + r, T + r))
        for r in range(n):
            e("v_add_f32 v%d, v%d, v%d" % (S + r, S + r, T + r))


def gen_k1(e):
    name = "k1_kernel"
    kernel_header(e, name)
    e("s_cmp_ge_u32 s2, %d" % K1_GRID)
    e("s_cbranch_scc1 K1_EXIT")
    e("s_load_dwordx2 s[4:5], s[0:1], 112")
    e("v_lshrrev_b32 v1, 6, v0")
    e("v_and_b32 v2, 63, v0")
    e("s_nop 0")
    e("v_readfirstlane_b32 s3, v1")
    e("s_cmp_ge_u32 s2, %d" % K1_KG)
    e("s_cbranch_scc0 K1_KGB")

    e.label("K1_LNB")
    if "noln" in OPTS: e("s_branch K1_END")
    e("s_load_dwordx2 s[6:7], s[0:1], 0")
    e("s_waitcnt lgkmcnt(0)")
    stamp_init(e, 190)
    stamp(e, 190)
    srd(e, 8, 6, 7, 0, TSZ)
    srd(e, 12, 4, 5, WS_UT, TSZ)
    srd(e, 16, 4, 5, WS_XT, TSZ)
    e("s_sub_u32 s20, s2, %d" % K1_KG)
    e("s_lshl_b32 s20, s20, 5")
    e("s_lshl_b32 s21, s3, 3")
    e("s_add_u32 s21, s21, s20")
    e("s_mul_i32 s22, s21, 896")
    e("v_lshlrev_b32 v3, 4, v2")
    RX = 32
    for i in range(32):
        e("v_mov_b32 v%d, 0" % (RX + i))
    e("s_mov_b64 s[24:25], exec")
    e("v_cmp_gt_u32 vcc, 56, v2")
    e("s_mov_b64 s[26:27], vcc")
    e("s_mov_b64 exec, s[26:27]")
    for r in range(8):
        if r == 4:
            e("s_add_u32 s22, s22, 3584")
        e("buffer_load_dwordx4 %s, v3, s[8:11], s22 offen offset:%d" % (vr(RX + 4 * r, 4), (r & 3) * 896))
    e("s_mov_b64 exec, s[24:25]")
    e("s_lshl_b32 s23, s3, 3")
    e("s_mul_i32 s23, s23, 912")
    e("v_add_u32 v4, s23, v3")
    e("s_mov_b32 s28, 0x%x" % f32bits(1.0 / 448.0))
    e("s_mov_b32 s29, 0x%x" % f32bits(1e-5))
    e("s_mov_b32 s30, 0xffff0000")
    e("s_setprio 3")
    e("s_mov_b32 s40, 0x3f803f80")
    e("s_mov_b32 s41, 0x00003f80")
    e("s_mov_b32 s42, 0x3f800000")
    S, T, X = 8, 64, 96
    for r in range(16):
        e("v_mov_b32 v%d, 0" % (S + r))
    for r in range(8):
        e("s_waitcnt vmcnt(%d)" % (7 - r))
        R = RX + 4 * r
        for k in range(4):
            e("v_dot2_f32_bf16 v%d, v%d, s40, v%d" % (S + r, R + k, S + r))
            e("v_dot2_f32_bf16 v%d, v%d, v%d, v%d" % (S + 8 + r, R + k, R + k, S + 8 + r))
    stamp(e, 190)
    e("s_mov_b64 exec, s[26:27]")
    for r in range(8):
        e("ds_write_b128 v4, %s offset:%d" % (vr(RX + 4 * r, 4), 32 * 912 + r * 912))
    e("s_mov_b64 exec, s[24:25]")
    reduce64_multi(e, S, T, 16)
    V = S + 8
    for r in range(16):
        e("v_mul_f32 v%d, s28, v%d" % (S + r, S + r))
    for r in range(8):
        e("v_fma_f32 v%d, -v%d, v%d, v%d" % (V + r, S + r, S + r, V + r))
    for r in range(8):
        e("v_max_f32 v%d, 0, v%d" % (V + r, V + r))
    for r in range(8):
        e("v_cvt_pk_bf16_f32 v%d, v%d, v%d" % (S + r, S + r, S + r))
        e("v_cvt_pk_bf16_f32 v%d, v%d, v%d" % (V + r, V + r, V + r))
    for r in range(8):
        e("v_lshlrev_b32 v%d, 16, v%d" % (S + r, S + r))
        e("v_lshlrev_b32 v%d, 16, v%d" % (V + r, V + r))
    for r in range(8):
        e("v_add_f32 v%d, s29, v%d" % (V + r, V + r))
        e("v_sub_f32 v%d, 0, v%d" % (S + r, S + r))
    for r in range(8):
        e("v_cvt_pk_bf16_f32 v%d, v%d, v%d" % (V + r, V + r, V + r))
    for r in range(8):
        e("v_lshlrev_b32 v%d, 16, v%d" % (V + r, V + r))
    for r in range(8):
        e("v_sqrt_f32 v%d, v%d" % (V + r, V + r))
    for r in range(8):
        e("v_cvt_pk_bf16_f32 v%d, v%d, v%d" % (V + r, V + r, V + r))
    for r in range(8):
        e("v_lshlrev_b32 v%d, 16, v%d" % (V + r, V + r))
    for r in range(8):
        e("v_rcp_f32 v%d, v%d" % (V + r, V + r))
    for r in range(8):
        R = RX + 4 * r
        xb = X + 8 * (r & 1)
        for k in range(4):
            e("v_dot2_f32_bf16 v%d, v%d, s41, v%d" % (xb + 2 * k, R + k, S + r))
            e("v_dot2_f32_bf16 v%d, v%d, s42, v%d" % (xb + 2 * k + 1, R + k, S + r))
        e.nop(2)
        for k in range(4):
            e("v_cvt_pk_bf16_f32 v%d, v%d, v%d" % (R + k, xb + 2 * k, xb + 2 * k + 1))
        for k in range(4):
            e("v_lshlrev_b32 v%d, 16, v%d" % (xb + 2 * k, R + k))
            e("v_mul_f32 v%d, v%d, v%d" % (xb + 2 * k, xb + 2 * k, V + r))
            e("v_and_b32 v%d, s30, v%d" % (xb + 2 * k + 1, R + k))
            e("v_mul_f32 v%d, v%d, v%d" % (xb + 2 * k + 1, xb + 2 * k + 1, V + r))
        for k in range(4):
            e("v_cvt_pk_bf16_f32 v%d, v%d, v%d" % (R + k, xb + 2 * k, xb + 2 * k + 1))
    e("s_mov_b64 exec, s[26:27]")
    for r in range(8):
        e("ds_write_b128 v4, %s offset:%d" % (vr(RX + 4 * r, 4), r * 912))
    e("s_mov_b64 exec, s[24:25]")
    stamp(e, 190)
    e("s_waitcnt lgkmcnt(0)")
    e("s_barrier")
    stamp(e, 190)
    e("v_and_b32 v5, 15, v2")
    e("v_lshrrev_b32 v6, 4, v2")
    e("v_lshrrev_b32 v7, 2, v5")
    e("v_and_b32 v8, 3, v5")
    e("v_lshlrev_b32 v9, 3, v6")
    e("v_add_u32 v10, v9, v7")
    e("v_mul_u32_u24 v10, 912, v10")
    e("v_lshl_add_u32 v10, v8, 3, v10")
    e("v_sub_u32 v11, v9, v7")
    e("v_add_u32 v11, 3, v11")
    e("v_mul_u32_u24 v11, 912, v11")
    e("v_lshl_add_u32 v11, v8, 3, v11")
    e("v_lshlrev_b32 v12, 12, v5")
    e("s_lshl_b32 s31, s20, 1")
    e("v_lshl_add_u32 v13, v9, 1, v12")
    e("v_add_u32 v13, s31, v13")
    e("v_lshlrev_b32 v14, 1, v9")
    e("v_sub_u32 v14, v12, v14")
    e("s_sub_u32 s32, 4080, s31")
    e("v_add_u32 v14, s32, v14")
    e("s_lshl_b32 s33, s3, 5")
    e("s_lshl_b32 s34, s3, 16")
    e("v_add_u32 v11, s33, v11")
    e("v_add_u32 v10, s33, v10")
    for k in range(7):
        co = k * 128
        b = 16 + 8 * k
        e("ds_read_b64_tr_b16 %s, v11 offset:%d" % (vr(b, 2), co + 4 * 912))
        e("ds_read_b64_tr_b16 %s, v11 offset:%d" % (vr(b + 2, 2), co))
        e("ds_read_b64_tr_b16 %s, v10 offset:%d" % (vr(b + 4, 2), co + 32 * 912))
        e("ds_read_b64_tr_b16 %s, v10 offset:%d" % (vr(b + 6, 2), co + 32 * 912 + 4 * 912))
    for k in range(7):
        b = 16 + 8 * k
        e("s_waitcnt lgkmcnt(%d)" % min(15, 4 * (6 - k) + 2))
        e("buffer_store_dwordx4 %s, v14, s[12:15], s34 offen" % vr(b, 4))
        e("s_waitcnt lgkmcnt(%d)" % min(15, 4 * (6 - k)))
        e("buffer_store_dwordx4 %s, v13, s[16:19], s34 offen" % vr(b + 4, 4))
        e("s_add_u32 s34, s34, 0x%x" % (64 * 4096))
    stamp(e, 190)
    if "stamp" in OPTS:
        e("s_waitcnt vmcnt(0)")
        stamp(e, 190)
    e("s_branch K1_END")

    e.label("K1_KGB")
    if "nokg" in OPTS: e("s_branch K1_END")
    e("s_load_dwordx8 s[8:15], s[0:1], 8")
    e("s_load_dwordx2 s[16:17], s[0:1], 40")
    e("s_mov_b32 s20, s2")
    e("s_waitcnt lgkmcnt(0)")
    stamp_init(e, 190)
    stamp(e, 190)
    srd(e, 24, 8, 9, 0, D * N * 2)
    srd(e, 28, 10, 11, 0, D * N * 2)
    srd(e, 32, 12, 13, 0, D * N * 2)
    srd(e, 36, 14, 15, 0, D * N * 2)
    srd(e, 40, 16, 17, 0, D * 2)
    e("s_lshl_b32 s21, s20, 9")
    e("v_lshlrev_b32 v3, 1, v0")
    e("s_lshl_b32 s22, s20, 1")
    e("v_mov_b32 v4, 0")
    e("buffer_load_ushort v8, v3, s[24:27], s21 offen")
    e("buffer_load_ushort v12, v4, s[40:43], s22 offen")
    e("buffer_load_ushort v9, v3, s[28:31], s21 offen")
    e("buffer_load_ushort v10, v3, s[32:35], s21 offen")
    e("buffer_load_ushort v11, v3, s[36:39], s21 offen")
    import numpy as np
    lhi = np.float32(1.4426950408889634)
    llo = np.float32(1.4426950408889634 - float(lhi))
    e("s_mov_b32 s44, 0x%x" % f32bits(float(lhi)))
    e("s_mov_b32 s45, 0x%x" % f32bits(float(llo)))
    e("s_mov_b32 s46, 0x%x" % f32bits(0.6931471805599453))
    e("s_mov_b32 s47, 0xffff0000")
    e("s_mov_b32 s48, 0x%x" % f32bits(0.15915494309189535))
    e("s_mul_i32 s50, s3, %d" % (64 * 288))
    e("s_mov_b32 m0, s50")
    e("v_and_b32 v105, 15, v2")
    e("v_mul_u32_u24 v105, 288, v105")
    e("v_lshrrev_b32 v106, 4, v2")
    e("v_lshl_add_u32 v105, v106, 4, v105")
    e("v_add_u32 v105, s50, v105")
    ACC = 108
    FR = 124
    for i in range(16):
        e("v_mov_b32 v%d, 0" % (ACC + i))
    e("s_waitcnt vmcnt(0)")
    stamp(e, 190)
    for r in (8, 9, 10, 11, 12):
        e("v_lshlrev_b32 v%d, 16, v%d" % (r, r))

    def exp_acc(dst, x, t1, t2):
        e("v_mul_f32 v%d, s44, v%d" % (t1, x))
        e("v_fma_f32 v%d, v%d, s44, -v%d" % (t2, x, t1))
        e("v_fmac_f32 v%d, s45, v%d" % (t2, x))
        e("v_exp_f32 v%d, v%d" % (t1, t1))
        e("v_mul_f32 v%d, s46, v%d" % (t2, t2))
        e("v_fma_f32 v%d, v%d, v%d, v%d" % (dst, t1, t2, t1))
        rb1(e, dst, dst)

    exp_acc(12, 12, 13, 14)
    exp_acc(8, 8, 13, 14)
    e("v_mul_f32 v8, v8, v12")
    e("v_mul_f32 v9, v9, v12")
    e("v_mul_f32 v10, v10, v12")
    e("v_mul_f32 v11, v11, v12")
    e("v_mul_f32 v8, s44, v8")
    e("v_mul_f32 v9, s48, v9")
    Z = 16
    for k0 in range(0, 12, 4):
        ks = range(k0, k0 + 4)
        for k in ks:
            e("v_mul_f32 v%d, 0x%x, v8" % (FR + 3 * (k - k0), f32bits(float(2 ** k))))
            e("v_mul_f32 v%d, 0x%x, v9" % (FR + 3 * (k - k0) + 1, f32bits(float(2 ** k))))
        for k in ks:
            t = FR + 3 * (k - k0)
            e("v_exp_f32 v%d, -v%d" % (t, t))
            e("v_fract_f32 v%d, v%d" % (t + 1, t + 1))
        for k in ks:
            t = FR + 3 * (k - k0)
            e("v_cos_f32 v%d, v%d" % (t + 2, t + 1))
            e("v_sin_f32 v%d, v%d" % (t + 1, t + 1))
        e.nop(1)
        for k in ks:
            t = FR + 3 * (k - k0)
            e("v_mul_f32 v%d, v%d, v%d" % (Z + 2 * k, t, t + 2))
            e("v_mul_f32 v%d, v%d, v%d" % (Z + 2 * k + 1, t, t + 1))

    stamp(e, 190)
    def zr(k):
        return Z + 2 * k

    Ereg = {}
    Greg = {}
    Erow = {}
    EB = 40
    GB = 72
    cnt = [0]
    e("s_mov_b32 s57, 0x0000bf80")
    e("s_mov_b32 s58, 0xbf800000")

    def cmul(dst, a, b, conj=False):
        T = (4, 6)[cnt[0] & 1]; cnt[0] += 1
        e("v_pk_mul_f32 %s, %s, %s op_sel:[1,1] op_sel_hi:[1,0]" % (vr(T, 2), vr(a, 2), vr(b, 2)))
        e("v_pk_fma_f32 %s, %s, %s, %s op_sel:[0,0,0] op_sel_hi:[0,1,1] %s" % (vr(dst, 2), vr(a, 2), vr(b, 2), vr(T, 2), "neg_hi:[0,0,1]" if conj else "neg_lo:[0,0,1]"))

    def split_write_list(items):
        TS = [(13, 14, 15), (104, 106, 107)]
        for k in range(0, len(items), 2):
            grp = items[k:k + 2]
            for (src_, row), (h, l0, l1) in zip(grp, TS):
                e("v_cvt_pk_bf16_f32 v%d, v%d, v%d" % (h, src_, src_ + 1))
            for (src_, row), (h, l0, l1) in zip(grp, TS):
                e("v_dot2_f32_bf16 v%d, v%d, s57, v%d" % (l0, h, src_))
                e("v_dot2_f32_bf16 v%d, v%d, s58, v%d" % (l1, h, src_ + 1))
            for (src_, row), (h, l0, l1) in zip(grp, TS):
                e("ds_write_addtid_b32 v%d offset:%d" % (h, row * 288))
            if len(grp) == 1:
                e.nop(3)
            for (src_, row), (h, l0, l1) in zip(grp, TS):
                e("v_cvt_pk_bf16_f32 v%d, v%d, v%d" % (l0, l0, l1))
            for (src_, row), (h, l0, l1) in zip(grp, TS):
                e("ds_write_addtid_b32 v%d offset:%d" % (l0, (row + 16) * 288))

    def mfma_seg(t):
        for s in range(4):
            e("ds_read_b128 %s, v105 offset:%d" % (vr(FR + 16 * s + 0, 4), 64 * s))
            e("ds_read_b128 %s, v105 offset:%d" % (vr(FR + 16 * s + 8, 4), 64 * s + 32 * 288))
            e("ds_read_b128 %s, v105 offset:%d" % (vr(FR + 16 * s + 12, 4), 64 * s + 48 * 288))
            e("ds_read_b128 %s, v105 offset:%d" % (vr(FR + 16 * s + 4, 4), 64 * s + 16 * 288))
        for s in range(4):
            e("s_waitcnt lgkmcnt(%d)" % (12 - 4 * s))
            a = vr(ACC + 4 * t, 4)
            ah, al, bh, bl = (vr(FR + 16 * s + 4 * q, 4) for q in range(4))
            e("v_mfma_f32_16x16x32_bf16 %s, %s, %s, %s" % (a, ah, bh, a))
            e("v_mfma_f32_16x16x32_bf16 %s, %s, %s, %s" % (a, ah, bl, a))
            e("v_mfma_f32_16x16x32_bf16 %s, %s, %s, %s" % (a, al, bh, a))

    colb = []
    e("v_mov_b32 v%d, 1.0" % EB)
    e("v_mov_b32 v%d, 0" % (EB + 1))
    Ereg[0] = EB
    for b in range(1, 16):
        Ereg[b] = EB + 2 * b
        k = b.bit_length() - 1
        hb = 1 << k
        if b == hb:
            e("v_mov_b32 v%d, v%d" % (Ereg[b], zr(k)))
            e("v_mov_b32 v%d, v%d" % (Ereg[b] + 1, zr(k) + 1))
        else:
            cmul(Ereg[b], zr(k), Ereg[b - hb])
    e("v_mov_b32 v%d, v10" % GB)
    e("v_sub_f32 v%d, 0, v11" % (GB + 1))
    Greg[0] = GB
    for a in range(1, 16):
        p = 16 * a
        Greg[p] = GB + 2 * a
        k = p.bit_length() - 1
        cmul(Greg[p], zr(k), Greg[p - (1 << k)], True)
    for b in range(16):
        Erow[b] = b
    split_write_list([(Greg[16 * a], a) for a in range(16)] + [(Ereg[b], 32 + b) for b in range(16)])
    colb.append(list(range(16)))
    mfma_seg(0)
    stamp(e, 190)

    for sg in (1, 2, 3):
        st = 1 << sg
        base = 128 << sg
        hs = 16 << sg
        freeE = sorted(r for p, r in Ereg.items() if p % st != 0)
        freeR = sorted(r for p, r in Erow.items() if p % st != 0)
        Ereg = {p: r for p, r in Ereg.items() if p % st == 0}
        Erow = {p: r for p, r in Erow.items() if p % st == 0}
        kz = 3 + sg
        for b in range(8, 16):
            p = st * b
            Ereg[p] = freeE.pop(0)
            Erow[p] = freeR.pop(0)
            if b == 8:
                e("v_mov_b32 v%d, v%d" % (Ereg[p], zr(kz)))
                e("v_mov_b32 v%d, v%d" % (Ereg[p] + 1, zr(kz) + 1))
            else:
                cmul(Ereg[p], zr(kz), Ereg[p - 8 * st])
        freeG = sorted(r for p, r in Greg.items() if p % hs != 0)
        Greg = {p: r for p, r in Greg.items() if p % hs == 0}
        kz = 7 + sg
        for a in range(8):
            p = base + hs * a
            Greg[p] = freeG.pop(0)
            cmul(Greg[p], zr(kz), Greg[hs * a], True)
        rows = 8
        if sg == 3:
            Greg[2048] = zr(0)
            cmul(Greg[2048], zr(11), Greg[0], True)
            rows = 9
        split_write_list([(Greg[base + hs * a], a) for a in range(rows)] + [(Ereg[st * b], 32 + Erow[st * b]) for b in range(8, 16)])
        cb = [0] * 16
        for b in range(16):
            cb[Erow[st * b]] = b
        colb.append(cb)
        mfma_seg(sg)
        stamp(e, 190)

    e("v_and_b32 v13, 15, v2")
    e("v_lshrrev_b32 v14, 4, v2")
    e("v_lshlrev_b32 v14, 8, v14")
    e("v_add_u32 v14, s50, v14")
    e("v_lshl_add_u32 v16, v13, 2, v14")
    e("v_and_b32 v15, 7, v2")
    e("v_lshlrev_b32 v15, 2, v15")
    e("v_cmp_gt_u32 vcc, 8, v13")
    for sg in (1, 2, 3):
        lo = sum(colb[sg][c] << (4 * c) for c in range(8))
        hi = sum(colb[sg][8 + c] << (4 * c) for c in range(8))
        e("s_mov_b32 s54, 0x%x" % lo)
        e("s_mov_b32 s55, 0x%x" % hi)
        e("v_bfe_u32 v20, s54, v15, 4")
        e("v_bfe_u32 v21, s55, v15, 4")
        e("v_cndmask_b32 v20, v21, v20, vcc")
        e("v_lshl_add_u32 v%d, v20, 2, v14" % (16 + sg))
    e.nop(4)
    e("s_waitcnt lgkmcnt(0)")
    for i in range(4):
        e("ds_write_b32 v16, v%d offset:%d" % (ACC + i, 64 * i))
    e("s_mov_b64 s[52:53], exec")
    e("s_mov_b32 exec_lo, -1")
    e("s_mov_b32 exec_hi, 0")
    for sg in (1, 2, 3):
        qb = 128 + 128 * sg
        for i in range(4):
            e("ds_write_b32 v%d, v%d offset:%d" % (16 + sg, ACC + 4 * sg + i, qb * 4 + 64 * i))
    e("s_mov_b32 s54, 0")
    e("s_mov_b32 s55, 0xffff")
    e("s_mov_b64 exec, s[54:55]")
    e("ds_write_b32 v19, v%d offset:%d" % (ACC + 12, 512 * 4))
    e("s_mov_b64 exec, s[52:53]")
    srd(e, 24, 4, 5, WS_K, D * KQS)
    e("s_mul_i32 s21, s20, %d" % KQS)
    e("v_lshlrev_b32 v9, 2, v0")
    e("s_waitcnt lgkmcnt(0)")
    e("s_barrier")
    stamp(e, 190)
    for m in range(3):
        for w in range(4):
            e("ds_read_b32 v%d, v9 offset:%d" % (24 + 4 * m + w, w * 64 * 288 + 1024 * m))
    for m in range(3):
        e("s_waitcnt lgkmcnt(%d)" % (8 - 4 * m))
        b = 24 + 4 * m
        e("v_add_f32 v%d, v%d, v%d" % (b, b, b + 1))
        e("v_add_f32 v%d, v%d, v%d" % (b + 2, b + 2, b + 3))
        e("v_add_f32 v%d, v%d, v%d" % (b, b, b + 2))
        e("v_add_f32 v%d, v%d, v%d" % (b, b, b))
        e("buffer_store_dword v%d, v9, s[24:27], s21 offen offset:%d" % (b, 1024 * m))
    if "stamp" in OPTS:
        e("s_waitcnt vmcnt(0)")
        stamp(e, 190)
    e.label("K1_END")
    endpgm(e, 0)
    e.label("K1_EXIT")
    e("s_endpgm")
    WGT_IDX[0] += 1
    return kernel_desc(name, 192)


def gen_k5(e, specs):
    name = "k5_kernel"
    e.raw(".text")
    e.raw(".globl %s" % name)
    e.raw(".p2align 8")
    e.raw(".type %s,@function" % name)
    e.label(name)
    e("s_cmp_ge_u32 s2, 1")
    e("s_cbranch_scc1 K5_EXIT")
    e("s_memtime s[30:31]")
    e("s_memrealtime s[32:33]")
    e("s_load_dwordx2 s[4:5], s[0:1], 112")
    e("s_load_dwordx2 s[6:7], s[0:1], 104")
    e("s_waitcnt lgkmcnt(0)")
    srd(e, 8, 4, 5, 0x4000000, 0x400000)
    srd(e, 12, 6, 7, 0, 256)
    e("s_sub_u32 s16, s6, %d" % (512 * len(specs)))
    e("s_subb_u32 s17, s7, 0")
    e("s_and_b32 s17, s17, 0xffff")
    e("s_mov_b32 s18, 256")
    e("s_mov_b32 s19, 0x00020000")
    e("v_mov_b32 v10, -1")
    e("v_mov_b32 v11, 0")
    e("v_lshlrev_b32 v12, 3, v0")
    e("v_and_b32 v13, 7, v0")
    e("v_lshlrev_b32 v13, 3, v13")
    e("ds_write_b64 v13, v[10:11]")
    e("s_waitcnt lgkmcnt(0)")
    for i, (g, nw) in enumerate(specs):
        e("v_mov_b32 v10, -1")
        e("v_mov_b32 v11, 0")
        for c in range((g + 63) // 64):
            e("v_add_u32 v1, %d, v0" % (64 * c))
            e("v_min_u32 v1, %d, v1" % (g - 1))
            e("v_lshlrev_b32 v1, 7, v1")
            e("s_mov_b32 s20, 0x%x" % (i * 0x100000))
            for w in range(nw):
                e("buffer_load_dwordx2 v[%d:%d], v1, s[8:11], s20 offen offset:%d" % (20 + 2 * w, 21 + 2 * w, 8 * w))
            e("s_waitcnt vmcnt(0)")
            for w in range(nw):
                e("v_min_u32 v10, v10, v%d" % (20 + 2 * w))
                e("v_max_u32 v11, v11, v%d" % (21 + 2 * w))
        e("v_mov_b32 v2, %d" % (8 * i))
        e("ds_min_u32 v2, v10")
        e("ds_max_u32 v2, v11 offset:4")
    e("s_waitcnt lgkmcnt(0)")
    e("v_lshlrev_b32 v3, 2, v0")
    e("v_mov_b32 v4, 0")
    e("ds_read_b32 v5, v3")
    e("ds_read_b32 v6, v4")
    e("s_waitcnt lgkmcnt(0)")
    e("v_sub_u32 v5, v5, v6")
    e("v_cmp_gt_u32 vcc, 8, v0")
    e("s_and_saveexec_b64 s[22:23], vcc")
    e("buffer_store_dword v5, v3, s[12:15], 0 offen")
    e("buffer_store_dword v5, v3, s[16:19], 0 offen")
    e("s_memtime s[34:35]")
    e("s_memrealtime s[36:37]")
    e("s_waitcnt lgkmcnt(0)")
    e("s_sub_u32 s34, s34, s30")
    e("s_sub_u32 s36, s36, s32")
    e("v_mov_b32 v14, s34")
    e("v_mov_b32 v15, s36")
    e("v_mov_b32 v16, s32")
    e("ds_read_b32 v8, v4")
    e("s_waitcnt lgkmcnt(0)")
    e("v_sub_u32 v16, v16, v8")
    e("s_mov_b64 exec, 1")
    e("buffer_store_dwordx3 v[14:16], v4, s[16:19], 0 offen offset:32")
    e.label("K5_EXIT")
    e("s_endpgm")
    return kernel_desc(name, 64)


def main():
    out = []
    hdr = open("cdna_kernels/%s.s.ref" % NAME).read().split("\n")
    for ln in hdr:
        if ln.startswith("; @launch") or not ln.startswith(";"):
            break
        out.append(ln)
    launches = []
    e = E()
    descs = []
    import gen_rest
    descs.append(gen_k1(e))
    launches.append(("k1_kernel", K1_GRID, 256, K1_LDS))
    for (nm, fn, grid, blk, lds) in gen_rest.kernels():
        descs.append(fn(e))
        launches.append((nm, grid, blk, lds))
    if "k5" in OPTS:
        descs.append(gen_k5(e, [(g, b // 64) for (_, g, b, _) in launches]))
        launches.append(("k5_kernel", 1, 64, 1024))
    nl = int(sys.argv[1]) if len(sys.argv) > 1 else len(launches)
    for (nm, g, b, l) in launches[:nl]:
        out.append("; @launch kernel=%s grid=(%d,1,1) block=(%d,1,1) lds=%d" % (nm, g, b, l))
    out.append('.amdgcn_target "amdgcn-amd-amdhsa--gfx950"')
    txt = "\n".join(out) + "\n" + e.text() + "".join(descs)
    open(os.environ.get("GENOUT", "cdna_kernels/%s.s" % NAME), "w").write(txt)
    print("written", len(txt), "bytes")


if __name__ == "__main__":
    main()
```

```python
from gen import *

K2_CONV = 224
K2_GRID = 256
UC_STRIDE = 4160
UC_SZ = 8 * UC_STRIDE
CH_SZ = UC_SZ + KCH
K2_LDS = max(2 * CH_SZ + 20480, 8 * 64 * 192)


def gen_k2(e):
    name = "k2_kernel"
    kernel_header(e, name)
    e("s_cmp_ge_u32 s2, %d" % K2_GRID)
    e("s_cbranch_scc1 K2_EXIT")
    e("s_load_dwordx2 s[4:5], s[0:1], 112")
    e("s_load_dwordx2 s[6:7], s[0:1], 48")
    e("v_lshrrev_b32 v1, 6, v0")
    e("v_and_b32 v2, 63, v0")
    e("s_nop 0")
    e("v_readfirstlane_b32 s3, v1")
    e("s_cmp_ge_u32 s2, %d" % K2_CONV)
    e("s_cbranch_scc1 K2_PACK")
    e("s_waitcnt lgkmcnt(0)")
    stamp_init(e, 62)
    stamp(e, 62)
    srd(e, 8, 4, 5, WS_UX, UXSZ)
    srd(e, 12, 4, 5, WS_K, D * KQS)
    srd(e, 20, 4, 5, WS_HT, TSZ)
    srd(e, 24, 6, 7, 0, D * 2)
    e("s_lshl_b32 s28, s2, 1")
    e("s_mov_b32 s47, 0xffff0000")
    e("v_bfe_u32 v3, v0, 1, 1")
    e("v_and_b32 v5, 1, v0")
    e("v_lshrrev_b32 v4, 2, v0")
    e("v_lshlrev_b32 v6, 7, v4")
    e("v_lshl_add_u32 v4, v4, 1, v5")
    e("v_lshl_add_u32 v6, v3, 5, v6")
    e("v_lshl_add_u32 v6, v5, 4, v6")
    e("v_mul_u32_u24 v5, 96, v5")
    e("v_add_u32 v5, v5, v6")
    e("s_lshl_b32 s29, s2, 14")
    e("buffer_load_dwordx4 v[8:11], v6, s[8:11], s29 offen")
    e("buffer_load_dwordx4 v[12:15], v5, s[8:11], s29 offen offset:16")
    KQ = 2 * CH_SZ
    e("s_mul_i32 s30, s28, %d" % KQS)
    e("v_lshlrev_b32 v6, 4, v0")
    e("v_cmp_gt_u32 vcc, 384, v0")
    e("s_and_saveexec_b64 s[34:35], vcc")
    e("s_cbranch_execz K2_P2A")
    e("buffer_load_dwordx4 v[32:35], v6, s[12:15], s30 offen")
    e.label("K2_P2A")
    e("s_mov_b64 exec, s[34:35]")
    e("s_mov_b32 s56, 0x7fff")
    e("v_lshlrev_b32 v36, 3, v4")
    for jj in range(8):
        e("v_add_u32 v%d, %d, v36" % (40 + jj, jj))
    for jj in range(8):
        e("v_cvt_f32_u32 v%d, v%d" % (48 + jj, 40 + jj))
    for jj in range(8):
        e("v_bfe_u32 v%d, v%d, 16, 1" % (64 + jj, 48 + jj))
    for jj in range(8):
        e("v_add3_u32 v%d, v%d, v%d, s56" % (48 + jj, 48 + jj, 64 + jj))
    for jj in range(8):
        e("v_lshrrev_b32 v%d, 16, v%d" % (48 + jj, 48 + jj))
    for jj in range(8):
        e("v_subrev_u32 v%d, 0x%x, v%d" % (48 + jj, 0x4380 - 256, 48 + jj))
    e("v_cmp_gt_u32 vcc, 32, v4")
    e("s_and_saveexec_b64 s[34:35], vcc")
    for jj in range(8):
        e("v_mov_b32 v%d, v%d" % (48 + jj, 40 + jj))
    e("s_mov_b64 exec, s[34:35]")
    e("v_mul_u32_u24 v36, %d, v3" % KQS)
    e("v_add_u32 v36, %d, v36" % KQ)
    for jj in range(8):
        e("v_lshl_add_u32 v%d, v%d, 2, v36" % (48 + jj, 48 + jj))
    e("s_mov_b32 s36, %d" % CH_SZ)
    e("v_mul_lo_u32 v7, v3, s36")
    e("v_lshl_add_u32 v7, v4, 4, v7")
    e("v_add_u32 v37, %d, v6" % KQ)
    e("s_waitcnt vmcnt(0)")
    e("v_cmp_gt_u32 vcc, 384, v0")
    e("s_and_saveexec_b64 s[34:35], vcc")
    e("ds_write_b128 v37, v[32:35]")
    e("s_mov_b64 exec, s[34:35]")
    e("v_cmp_eq_u32 vcc, 255, v4")
    e.nop(1)
    for i in range(4):
        e("v_cndmask_b32 v%d, v%d, 0, vcc" % (12 + i, 12 + i))
    W = 8
    e("ds_write_b128 v7, v[8:11] offset:0")
    for phi in range(1, 8):
        q = phi >> 1
        if phi & 1:
            for i in range(4):
                e("v_alignbit_b32 v%d, v%d, v%d, 16" % (16 + 4 * (phi & 3) + i, W + q + i + 1, W + q + i))
            e("ds_write_b128 v7, %s offset:%d" % (vr(16 + 4 * (phi & 3), 4), phi * UC_STRIDE))
        elif q % 2 == 0:
            e("ds_write_b128 v7, %s offset:%d" % (vr(W + q, 4), phi * UC_STRIDE))
        else:
            for i in range(4):
                e("v_mov_b32 v%d, v%d" % (16 + 4 * (phi & 3) + i, W + q + i))
            e("ds_write_b128 v7, %s offset:%d" % (vr(16 + 4 * (phi & 3), 4), phi * UC_STRIDE))
    for i in range(4):
        e("v_mov_b32 v%d, 0" % (56 + i))
    e("v_lshrrev_b32 v60, 2, v4")
    e("v_mul_u32_u24 v60, %d, v60" % UC_STRIDE)
    e("v_and_b32 v61, 3, v4")
    e("v_lshl_add_u32 v60, v61, 4, v60")
    e("v_mul_lo_u32 v61, v3, s36")
    e("v_add_u32 v60, v60, v61")
    e("v_cmp_gt_u32 vcc, 32, v4")
    e("s_and_saveexec_b64 s[34:35], vcc")
    e("ds_write_b128 v60, v[56:59] offset:4096")
    e("s_mov_b64 exec, s[34:35]")
    e("v_lshlrev_b32 v60, 4, v4")
    e("v_add_u32 v60, v60, v61")
    e("v_cmp_gt_u32 vcc, 96, v4")
    e("s_and_saveexec_b64 s[34:35], vcc")
    e("ds_write_b128 v60, v[56:59] offset:%d" % UC_SZ)
    e("ds_write_b128 v60, v[56:59] offset:%d" % (UC_SZ + KCH // 2))
    e("s_mov_b64 exec, s[34:35]")
    stamp(e, 62)
    e("s_waitcnt lgkmcnt(0)")
    e("s_barrier")
    for jj in range(8):
        e("ds_read_b32 v%d, v%d" % (40 + jj, 48 + jj))
    e("v_lshrrev_b32 v60, 2, v4")
    e("v_mul_u32_u24 v60, 96, v60")
    e("v_and_b32 v36, 3, v4")
    e("v_lshl_add_u32 v60, v36, 4, v60")
    e("v_add_u32 v60, v60, v61")
    e("s_mov_b32 s57, 0x0000bf80")
    e("s_mov_b32 s58, 0xbf800000")
    e("s_waitcnt lgkmcnt(0)")
    for p in range(4):
        e("v_cvt_pk_bf16_f32 v%d, v%d, v%d" % (32 + p, 40 + 2 * p, 41 + 2 * p))
    for p in range(4):
        e("v_dot2_f32_bf16 v%d, v%d, s57, v%d" % (48 + 2 * p, 32 + p, 40 + 2 * p))
        e("v_dot2_f32_bf16 v%d, v%d, s58, v%d" % (49 + 2 * p, 32 + p, 41 + 2 * p))
    e("ds_write_b128 v60, v[32:35] offset:%d" % (UC_SZ + 16 * 96))
    e.nop(2)
    for p in range(4):
        e("v_cvt_pk_bf16_f32 v%d, v%d, v%d" % (36 + p, 48 + 2 * p, 49 + 2 * p))
    e("ds_write_b128 v60, v[36:39] offset:%d" % (UC_SZ + 16 * 96 + KCH // 2))
    e("s_lshr_b32 s37, s3, 2")
    e("s_and_b32 s48, s3, 3")
    e("s_sub_u32 s38, 3, s48")
    e("s_mul_i32 s52, s48, 20")
    e("s_mov_b32 s43, 5")
    e("s_mov_b32 s51, 3")
    e("s_cmp_eq_u32 s48, 2")
    e("s_cselect_b32 s43, 2, s43")
    e("s_cmp_eq_u32 s48, 3")
    e("s_cselect_b32 s43, 4, s43")
    e("s_cselect_b32 s51, 1, s51")
    e("s_cselect_b32 s52, 0, s52")
    e("s_mul_i32 s40, s37, %d" % CH_SZ)
    e("v_and_b32 v3, 15, v2")
    e("v_lshrrev_b32 v4, 4, v2")
    e("v_and_b32 v5, 7, v3")
    e("v_sub_u32 v5, 7, v5")
    e("v_mul_u32_u24 v5, %d, v5" % UC_STRIDE)
    e("v_lshrrev_b32 v6, 3, v3")
    e("v_sub_u32 v6, v4, v6")
    e("v_lshl_add_u32 v5, v6, 4, v5")
    e("s_add_u32 s41, s40, %d" % (255 * 16 - 32 - 7 * 64))
    e("v_add_u32 v60, s41, v5")
    e("v_mul_u32_u24 v6, 96, v3")
    e("v_lshl_add_u32 v6, v4, 4, v6")
    e("s_add_u32 s42, s40, %d" % (UC_SZ + 16 * 96 - 7 * 96 - 16 * 96))
    e("v_add_u32 v61, s42, v6")
    e("s_lshl_b32 s55, s52, 6")
    e("v_subrev_u32 v5, s55, v60")
    e("s_mul_i32 s55, s51, %d" % (16 * 96))
    e("s_mul_i32 s56, s52, 96")
    e("s_sub_u32 s55, s55, s56")
    e("v_add_u32 v6, s55, v61")
    e("s_mul_i32 s55, s37, 10240")
    e("s_add_u32 s55, s55, %d" % (2 * CH_SZ))
    e("v_lshlrev_b32 v178, 4, v2")
    e("v_add_u32 v178, s55, v178")
    e("s_add_u32 s44, s28, s37")
    e("s_lshl_b32 s45, s44, 1")
    e("v_mov_b32 v176, 0")
    e("buffer_load_ushort v176, v176, s[24:27], s45 offen")
    e("v_lshlrev_b32 v8, 5, v3")
    e("v_lshl_add_u32 v8, v4, 2, v8")
    e("s_lshl_b32 s46, s38, 9")
    e("v_add_u32 v8, s46, v8")
    e("v_lshlrev_b32 v177, 1, v8")
    e("s_lshl_b32 s45, s44, 12")
    e("v_lshlrev_b32 v9, 8, v3")
    e("v_lshlrev_b32 v14, 3, v4")
    e("v_sub_u32 v9, v14, v9")
    e("s_lshl_b32 s46, s38, 12")
    e("s_lshl_b32 s55, s37, 5")
    e("s_sub_u32 s55, s55, s46")
    e("s_add_u32 s55, s55, %d" % (126 * 128 + 64))
    e("v_add_u32 v9, s55, v9")
    e("buffer_load_dwordx2 v[10:11], v9, s[8:11], s29 offen offset:128")
    e("buffer_load_dwordx2 v[12:13], v9, s[8:11], s29 offen")
    ACC = 16
    ACQ = 160
    for i in range(8):
        e("v_mov_b32 v%d, 0" % (ACC + i))
        e("v_mov_b32 v%d, 0" % (ACQ + i))
    e("s_waitcnt lgkmcnt(0)")
    e("s_barrier")
    stamp(e, 62)

    FR = [64, 88, 112, 136]

    def issue(i, joint):
        if "k2nord" in OPTS: return
        b = FR[i & 3]
        e("ds_read_b128 %s, v5 offset:%d" % (vr(b, 4), 448 - 64 * i + 32))
        e("ds_read_b128 %s, v6 offset:%d" % (vr(b + 8, 4), 1536 + 672 - 96 * i))
        e("ds_read_b128 %s, v5 offset:%d" % (vr(b + 4, 4), 448 - 64 * i))
        e("ds_read_b128 %s, v6 offset:%d" % (vr(b + 12, 4), 1536 + 672 - 96 * i + KCH // 2))
        if joint:
            e("ds_read_b128 %s, v6 offset:%d" % (vr(b + 16, 4), 672 - 96 * i))
            e("ds_read_b128 %s, v6 offset:%d" % (vr(b + 20, 4), 672 - 96 * i + KCH // 2))

    def mm(i, joint):
        if "k2nomm" in OPTS: return
        b = FR[i & 3]
        a0, a1 = vr(ACC, 4), vr(ACC + 4, 4)
        q0, q1 = vr(ACQ, 4), vr(ACQ + 4, 4)
        e("v_mfma_f32_16x16x32_bf16 %s, %s, %s, %s" % (a0, vr(b, 4), vr(b + 8, 4), a0))
        e("v_mfma_f32_16x16x32_bf16 %s, %s, %s, %s" % (a1, vr(b + 4, 4), vr(b + 8, 4), a1))
        if joint:
            e("v_mfma_f32_16x16x32_bf16 %s, %s, %s, %s" % (q0, vr(b, 4), vr(b + 16, 4), q0))
            e("v_mfma_f32_16x16x32_bf16 %s, %s, %s, %s" % (q1, vr(b + 4, 4), vr(b + 16, 4), q1))
        e("v_mfma_f32_16x16x32_bf16 %s, %s, %s, %s" % (a0, vr(b, 4), vr(b + 12, 4), a0))
        e("v_mfma_f32_16x16x32_bf16 %s, %s, %s, %s" % (a1, vr(b + 4, 4), vr(b + 12, 4), a1))
        if joint:
            e("v_mfma_f32_16x16x32_bf16 %s, %s, %s, %s" % (q0, vr(b, 4), vr(b + 20, 4), q0))
            e("v_mfma_f32_16x16x32_bf16 %s, %s, %s, %s" % (q1, vr(b + 4, 4), vr(b + 20, 4), q1))

    def seg_loop(tag, joint):
        n = 6 if joint else 4
        issue(0, joint); issue(1, joint)
        e("s_sub_u32 s43, s43, 1")
        e.label("K2_LOOP%s" % tag)
        for i in range(4):
            issue(i + 2, joint)
            e("s_waitcnt lgkmcnt(%d)" % (2 * n))
            mm(i, joint)
        e("v_subrev_u32 v5, 256, v5")
        e("v_subrev_u32 v6, 384, v6")
        e("s_sub_u32 s43, s43, 1")
        e("s_cmp_lg_u32 s43, 0")
        e("s_cbranch_scc1 K2_LOOP%s" % tag)
        for i in range(4):
            if i < 2:
                issue(i + 2, joint)
            e("s_waitcnt lgkmcnt(%d)" % (n * min(2, 3 - i)))
            mm(i, joint)
        e("v_subrev_u32 v5, 256, v5")
        e("v_subrev_u32 v6, 384, v6")

    def wr(acc, slot):
        e("ds_write_b128 v178, %s offset:%d" % (vr(acc, 4), slot * 2048))
        e("ds_write_b128 v178, %s offset:%d" % (vr(acc + 4, 4), slot * 2048 + 1024))

    def rd_add(slots):
        for k, sl in enumerate(slots):
            e("ds_read_b128 %s, v178 offset:%d" % (vr(64 + 8 * k, 4), sl * 2048))
            e("ds_read_b128 %s, v178 offset:%d" % (vr(68 + 8 * k, 4), sl * 2048 + 1024))
        e("s_waitcnt lgkmcnt(0)")
        for k in range(len(slots)):
            for i in range(8):
                e("v_add_f32 v%d, v%d, v%d" % (ACC + i, ACC + i, 64 + 8 * k + i))

    seg_loop("J", True)
    e("s_cmp_ge_u32 s48, 2")
    e("s_cbranch_scc1 K2_CD")
    e.nop(8)
    e("s_cmp_eq_u32 s48, 1")
    e("s_cbranch_scc1 K2_B")
    wr(ACQ, 0)
    e("s_waitcnt lgkmcnt(0)")
    e("s_barrier")
    rd_add([1, 2])
    e("s_branch K2_EPI")
    e.label("K2_B")
    wr(ACC, 1)
    for i in range(8):
        e("v_mov_b32 v%d, v%d" % (ACC + i, ACQ + i))
    e("s_waitcnt lgkmcnt(0)")
    e("s_barrier")
    rd_add([0, 3])
    e("s_branch K2_EPI")
    e.label("K2_CD")
    e("s_mov_b32 s43, 4")
    e("s_cmp_eq_u32 s48, 2")
    e("s_cbranch_scc1 K2_C1")
    e("s_mov_b32 s43, 2")
    e("v_subrev_u32 v5, 512, v5")
    e("v_subrev_u32 v6, 768, v6")
    e.label("K2_C1")
    seg_loop("S1", False)
    e.nop(8)
    e("s_cmp_eq_u32 s48, 2")
    e("s_cbranch_scc1 K2_C2")
    wr(ACC, 4)
    for i in range(8):
        e("v_mov_b32 v%d, v%d" % (ACC + i, ACQ + i))
    e("s_waitcnt lgkmcnt(0)")
    e("s_barrier")
    e("s_branch K2_EPI")
    e.label("K2_C2")
    wr(ACC, 2)
    wr(ACQ, 3)
    for i in range(8):
        e("v_mov_b32 v%d, 0" % (ACC + i))
    e("v_subrev_u32 v5, %d, v60" % (16 * 64))
    e("v_add_u32 v6, %d, v61" % (16 * 96 - 16 * 96))
    e("s_mov_b32 s43, 2")
    seg_loop("S2", False)
    e("s_barrier")
    rd_add([4])
    e.label("K2_EPI")
    stamp(e, 62)
    e("v_mov_b32 v9, v177")
    e("v_sub_u32 v14, %d, v9" % (2 * 2028))
    e("v_add_u32 v14, s40, v14")
    e("ds_read_b64 v[24:25], v14 offset:32")
    e("ds_read_b64 v[26:27], v14")
    e("s_waitcnt vmcnt(0) lgkmcnt(0)")
    e("v_lshlrev_b32 v7, 16, v176")
    for T in range(2):
        A = ACC + 4 * T
        U = 24 + 2 * T
        Xr = 10 + 2 * T
        e("v_and_b32 v32, s47, v%d" % (U + 1))
        e("v_lshlrev_b32 v33, 16, v%d" % (U + 1))
        e("v_and_b32 v34, s47, v%d" % U)
        e("v_lshlrev_b32 v35, 16, v%d" % U)
        for i in range(4):
            e("v_mul_f32 v%d, v%d, v7" % (32 + i, 32 + i))
        e("v_cvt_pk_bf16_f32 v36, v32, v33")
        e("v_cvt_pk_bf16_f32 v37, v34, v35")
        e("v_cvt_pk_bf16_f32 v38, v%d, v%d" % (A, A + 1))
        e("v_cvt_pk_bf16_f32 v39, v%d, v%d" % (A + 2, A + 3))
        e("v_lshlrev_b32 v32, 16, v36")
        e("v_and_b32 v33, s47, v36")
        e("v_lshlrev_b32 v34, 16, v37")
        e("v_and_b32 v35, s47, v37")
        e("v_lshlrev_b32 v40, 16, v38")
        e("v_and_b32 v41, s47, v38")
        e("v_lshlrev_b32 v42, 16, v39")
        e("v_and_b32 v43, s47, v39")
        for i in range(4):
            e("v_add_f32 v%d, v%d, v%d" % (32 + i, 32 + i, 40 + i))
        e("v_cvt_pk_bf16_f32 v36, v32, v33")
        e("v_cvt_pk_bf16_f32 v37, v34, v35")
        e("v_lshlrev_b32 v32, 16, v36")
        e("v_and_b32 v33, s47, v36")
        e("v_lshlrev_b32 v34, 16, v37")
        e("v_and_b32 v35, s47, v37")
        e("v_lshlrev_b32 v40, 16, v%d" % Xr)
        e("v_and_b32 v41, s47, v%d" % Xr)
        e("v_lshlrev_b32 v42, 16, v%d" % (Xr + 1))
        e("v_and_b32 v43, s47, v%d" % (Xr + 1))
        for i in range(4):
            e("v_add_f32 v%d, v%d, v%d" % (32 + i, 32 + i, 40 + i))
        e("v_cvt_pk_bf16_f32 v%d, v32, v33" % (44 + 2 * T))
        e("v_cvt_pk_bf16_f32 v%d, v34, v35" % (45 + 2 * T))
        e("buffer_store_dwordx2 %s, v9, s[20:23], s45 offen offset:%d" % (vr(44 + 2 * T, 2), 32 * T))
    if "stamp" in OPTS:
        e("s_waitcnt vmcnt(0)")
        stamp(e, 62)
    endpgm(e, 1)
    e.label("K2_PACK")
    if "nopk" in OPTS: e("s_branch K2_END")
    e("s_load_dwordx2 s[8:9], s[0:1], 64")
    e("s_load_dwordx2 s[10:11], s[0:1], 80")
    e("s_sub_u32 s20, s2, %d" % K2_CONV)
    e("s_lshl_b32 s20, s20, 3")
    e("s_add_u32 s20, s20, s3")
    e("s_waitcnt lgkmcnt(0)")
    srd(e, 12, 4, 5, WS_WP, 2 * W1P_SZ)
    srd(e, 24, 8, 9, 0, D * F * 2)
    srd(e, 28, 10, 11, 0, D * F * 2)
    PRS = 192
    e("v_lshrrev_b32 v3, 3, v2")
    e("v_and_b32 v4, 7, v2")
    e("v_lshlrev_b32 v5, 4, v4")
    e("s_mov_b32 s21, 3584")
    e("v_mul_lo_u32 v6, v3, s21")
    e("v_add_u32 v6, v6, v5")
    e("v_mul_u32_u24 v7, 896, v3")
    e("v_add_u32 v7, v7, v5")
    e("s_mul_i32 s22, s3, %d" % (64 * PRS))
    e("v_mul_u32_u24 v8, %d, v3" % PRS)
    e("v_add_u32 v8, v8, v5")
    e("v_add_u32 v8, s22, v8")
    e("v_and_b32 v9, 15, v2")
    e("v_lshrrev_b32 v10, 2, v9")
    e("v_lshrrev_b32 v11, 5, v2")
    e("v_lshl_add_u32 v10, v11, 3, v10")
    e("v_mul_u32_u24 v10, %d, v10" % PRS)
    e("v_and_b32 v11, 3, v9")
    e("v_lshl_add_u32 v10, v11, 3, v10")
    e("v_bfe_u32 v11, v2, 4, 1")
    e("v_lshl_add_u32 v10, v11, 5, v10")
    e("v_add_u32 v10, s22, v10")
    e("v_lshrrev_b32 v11, 5, v2")
    e("v_mul_u32_u24 v11, %d, v11" % (4 * PRS))
    e("v_sub_u32 v12, v10, v11")
    e("v_lshlrev_b32 v11, 4, v2")
    e("s_cmp_ge_u32 s20, 196")
    e("s_cbranch_scc1 K2_PKA2")
    e("s_mul_hi_u32 s32, s20, 0x%x" % ((2**32 + 27) // 28))
    e("s_mul_i32 s33, s32, 28")
    e("s_sub_u32 s33, s20, s33")
    e("s_mul_i32 s34, s32, %d" % (64 * 3584))
    e("s_lshl_b32 s35, s33, 7")
    e("s_add_u32 s34, s34, s35")
    for i in range(8):
        e("buffer_load_dwordx4 %s, v6, s[24:27], s34 offen" % vr(16 + 4 * i, 4))
        e("s_add_u32 s34, s34, %d" % (8 * 3584))
    e("s_mul_i32 s36, s33, %d" % (2 * 28 * 1024))
    e("s_lshl_b32 s37, s32, 12")
    e("s_add_u32 s36, s36, s37")
    e("s_mov_b32 s38, %d" % (28 * 1024))
    e("v_mov_b32 v13, v10")
    e("s_mov_b32 s39, %d" % (4 * PRS))
    e("s_branch K2_PKA3")
    e.label("K2_PKA2")
    e("s_sub_u32 s41, s20, 196")
    e("s_mul_hi_u32 s32, s41, 0x%x" % ((2**32 + 6) // 7))
    e("s_mul_i32 s33, s32, 7")
    e("s_sub_u32 s33, s41, s33")
    e("v_mov_b32 v13, v12")
    e("s_mov_b32 s39, %d" % (8 * PRS))
    e("s_mul_i32 s34, s32, %d" % (64 * 896))
    e("s_lshl_b32 s35, s33, 7")
    e("s_add_u32 s34, s34, s35")
    for i in range(8):
        e("buffer_load_dwordx4 %s, v7, s[28:31], s34 offen" % vr(16 + 4 * i, 4))
        e("s_add_u32 s34, s34, %d" % (8 * 896))
    e("s_mul_i32 s36, s33, %d" % (2 * 112 * 1024))
    e("s_lshl_b32 s37, s32, 12")
    e("s_add_u32 s36, s36, s37")
    e("s_add_u32 s36, s36, %d" % W1P_SZ)
    e("s_mov_b32 s38, %d" % (112 * 1024))
    e.label("K2_PKA3")
    e("s_cmp_ge_u32 s20, 136")
    e("s_cbranch_scc1 K2_PKB0")
    e("s_add_u32 s41, s20, 60")
    e("s_mul_hi_u32 s32, s41, 0x%x" % ((2**32 + 6) // 7))
    e("s_mul_i32 s33, s32, 7")
    e("s_sub_u32 s33, s41, s33")
    e("s_mul_i32 s34, s32, %d" % (64 * 896))
    e("s_lshl_b32 s35, s33, 7")
    e("s_add_u32 s34, s34, s35")
    for i in range(8):
        e("buffer_load_dwordx4 %s, v7, s[28:31], s34 offen" % vr(48 + 4 * i, 4))
        e("s_add_u32 s34, s34, %d" % (8 * 896))
    e("s_mul_i32 s40, s33, %d" % (2 * 112 * 1024))
    e("s_lshl_b32 s37, s32, 12")
    e("s_add_u32 s40, s40, s37")
    e("s_add_u32 s40, s40, %d" % W1P_SZ)
    e("s_waitcnt vmcnt(8)")
    e("s_branch K2_PKB1")
    e.label("K2_PKB0")
    e("s_waitcnt vmcnt(0)")
    e.label("K2_PKB1")

    def pack_unit(src, sdst, scs, va, vb):
        for i in range(8):
            e("ds_write_b128 v8, %s offset:%d" % (vr(src + 4 * i, 4), i * 8 * PRS))
        for c in range(2):
            for j in range(4):
                b = 80 + 4 * (4 * c + j)
                o = j * 16 * PRS + 64 * c
                e("ds_read_b64_tr_b16 %s, v%d offset:%d" % (vr(b, 2), va, o))
                e("ds_read_b64_tr_b16 %s, v%d offset:%d" % (vr(b + 2, 2), vb, o))
        for c in range(2):
            for j in range(4):
                b = 80 + 4 * (4 * c + j)
                e("s_waitcnt lgkmcnt(%d)" % (14 - 2 * (4 * c + j)))
                e("buffer_store_dwordx4 %s, v11, s[12:15], s%d offen offset:%d" % (vr(b, 4), sdst, j * 1024))
            if c == 0:
                e("s_add_u32 s%d, s%d, %s" % (sdst, sdst, scs))

    e("v_add_u32 v14, s39, v13")
    e("v_add_u32 v15, %d, v12" % (8 * PRS))
    pack_unit(16, 36, "s38", 13, 14)
    e("s_cmp_ge_u32 s20, 136")
    e("s_cbranch_scc1 K2_END")
    e("s_waitcnt vmcnt(8)")
    e("s_waitcnt vmcnt(0)")
    pack_unit(48, 40, "%d" % (112 * 1024), 12, 15)
    e.label("K2_END")
    endpgm(e, 1)
    e.label("K2_EXIT")
    e("s_endpgm")
    WGT_IDX[0] += 1
    return kernel_desc(name, 184)


K3_GRID = 224
A_RS = 192
AT = 2048
K3_LDS = AT + 448 * A_RS


def gen_k3(e):
    name = "k3_kernel"
    kernel_header(e, name)
    e("s_cmp_ge_u32 s2, %d" % K3_GRID)
    e("s_cbranch_scc1 K3_EXIT")
    e("s_load_dwordx2 s[4:5], s[0:1], 112")
    e("s_load_dwordx2 s[6:7], s[0:1], 72")
    e("v_lshrrev_b32 v1, 6, v0")
    e("v_and_b32 v2, 63, v0")
    e("s_nop 0")
    e("v_readfirstlane_b32 s3, v1")
    e("s_waitcnt lgkmcnt(0)")
    stamp_init(e, 0)
    stamp(e, 0)
    srd(e, 8, 4, 5, WS_HT, TSZ)
    srd(e, 12, 4, 5, WS_WP, W1P_SZ)
    srd(e, 16, 4, 5, WS_H1, 64 * 112 * 1024)
    srd(e, 20, 6, 7, 0, F * 2)
    e("s_and_b32 s24, s2, 31")
    e("s_lshr_b32 s25, s2, 5")
    e("s_lshl_b32 s26, s25, 3")
    e("s_add_u32 s26, s26, s3")
    e("s_mov_b32 s47, 0xffff0000")
    e("v_lshrrev_b32 v3, 3, v2")
    e("v_and_b32 v4, 7, v2")
    e("v_lshlrev_b32 v5, 12, v3")
    e("v_lshl_add_u32 v5, v4, 4, v5")
    e("s_lshl_b32 s27, s3, 15")
    e("s_lshl_b32 s28, s24, 7")
    e("s_add_u32 s27, s27, s28")
    HR = 8
    for i in range(7):
        e("buffer_load_dwordx4 %s, v5, s[8:11], s27 offen" % vr(HR + 4 * i, 4))
        e("s_add_u32 s27, s27, 0x%x" % (64 * 4096))
    WF = 144
    e("v_lshlrev_b32 v6, 4, v2")
    e("s_mul_i32 s29, s26, %d" % (28 * 1024))
    e("v_lshrrev_b32 v7, 5, v2")
    e("v_lshlrev_b32 v7, 3, v7")
    e("s_lshl_b32 s30, s26, 6")
    pl = []
    for s in range(28):
        it = []
        if s % 4 == 0 and s > 0:
            it.append("s_add_u32 s29, s29, 4096")
        it.append("buffer_load_dwordx4 %s, v6, s[12:15], s29 offen offset:%d" % (vr(WF + 4 * s, 4), (s % 4) * 1024))
        pl.append(it)
    for q in range(4):
        pl.append(["buffer_load_dwordx2 %s, v7, s[20:23], s30 offen offset:%d" % (vr(136 + 2 * q, 2), 16 * q)])

    def pend(n):
        for _ in range(n):
            if pl:
                for x in pl.pop(0):
                    e(x)

    def issued():
        return 32 - len(pl)
    K3PRE = int(os.environ.get("K3PRE", "8"))
    pend(K3PRE)
    e("v_mul_u32_u24 v57, %d, v3" % A_RS)
    e("v_lshl_add_u32 v57, v4, 4, v57")
    e("s_mul_i32 s38, s3, %d" % (8 * A_RS))
    e("s_add_u32 s38, s38, %d" % AT)
    e("v_add_u32 v57, s38, v57")
    e("v_add_u32 v62, %d, v57" % (4 * 64 * A_RS))
    e("v_and_b32 v58, 15, v2")
    e("v_lshrrev_b32 v59, 2, v58")
    e("v_lshrrev_b32 v60, 5, v2")
    e("v_lshl_add_u32 v59, v60, 3, v59")
    e("v_mul_u32_u24 v59, %d, v59" % A_RS)
    e("v_and_b32 v60, 3, v58")
    e("v_lshl_add_u32 v59, v60, 3, v59")
    e("v_bfe_u32 v60, v2, 4, 1")
    e("v_lshl_add_u32 v59, v60, 5, v59")
    e("s_and_b32 s31, s3, 1")
    e("s_lshr_b32 s32, s3, 1")
    e("s_lshl_b32 s33, s31, 6")
    e("s_mul_i32 s34, s32, %d" % (16 * A_RS))
    e("s_add_u32 s33, s33, s34")
    e("s_add_u32 s33, s33, %d" % AT)
    e("v_add_u32 v59, s33, v59")
    e("v_add_u32 v61, %d, v59" % (4 * 4 * 16 * A_RS))
    e("s_mul_i32 s35, s31, %d" % (28 * 1024))
    e("s_lshl_b32 s36, s32, 10")
    e("s_add_u32 s35, s35, s36")
    e("s_add_u32 s35, s35, %d" % AT)
    e("v_add_u32 v63, s35, v6")
    e("v_and_b32 v56, 31, v2")
    e("v_lshlrev_b32 v56, 3, v56")
    e("s_lshl_b32 s36, s31, 10")
    e("v_add_u32 v56, s36, v56")
    e("s_lshl_b32 s37, s32, 8")
    e("v_add_u32 v55, s37, v56")
    e("s_mov_b32 s40, 0x3f803f80")
    e("s_mov_b32 s41, 0x00003f80")
    e("s_mov_b32 s42, 0x3f800000")
    e("s_waitcnt vmcnt(%d)" % K3PRE)
    stamp(e, 0)
    for i in range(7):
        e("ds_write_b128 v%d, %s offset:%d" % (57 if i < 4 else 62, vr(HR + 4 * i, 4), (i & 3) * 64 * A_RS))
    pend(12 - K3PRE)
    for i in range(4):
        e("v_mov_b32 v%d, 0" % (40 + i))
    e("s_waitcnt lgkmcnt(0)")
    e("s_barrier")
    stamp(e, 0)
    RF = 8
    for j in range(7):
        o = (j & 3) * 4 * 16 * A_RS
        va = 59 if j < 4 else 61
        e("ds_read_b64_tr_b16 %s, v%d offset:%d" % (vr(RF + 4 * j, 2), va, o))
        e("ds_read_b64_tr_b16 %s, v%d offset:%d" % (vr(RF + 4 * j + 2, 2), va, o + 4 * A_RS))
    for j in range(7):
        e("s_waitcnt lgkmcnt(%d)" % (12 - 2 * j))
        pend(1)
        for k in range(4):
            R = RF + 4 * j + k
            if "nodots" in OPTS:
                e("v_lshlrev_b32 v44, 16, v%d" % R)
                e("v_and_b32 v45, s47, v%d" % R)
                e("v_add_f32 v40, v40, v44")
                e("v_add_f32 v41, v41, v45")
                e("v_fmac_f32 v42, v44, v44")
                e("v_fmac_f32 v43, v45, v45")
            else:
                e("v_dot2_f32_bf16 v%d, v%d, s40, v%d" % (40 + (k & 1), R, 40 + (k & 1)))
                e("v_dot2_f32_bf16 v%d, v%d, v%d, v%d" % (42 + (k & 1), R, R, 42 + (k & 1)))
    e.nop(4)
    e("v_add_f32 v40, v40, v41")
    e("v_add_f32 v41, v42, v43")
    e("v_mov_b32 v42, v40")
    e("v_mov_b32 v43, v41")
    e.nop(1)
    e("v_permlane32_swap_b32 v40, v42")
    e("v_permlane32_swap_b32 v41, v43")
    e("v_add_f32 v40, v40, v42")
    e("v_add_f32 v41, v41, v43")
    e("ds_write_b64 v55, v[40:41]")
    e("s_waitcnt lgkmcnt(0)")
    e("s_barrier")
    stamp(e, 0)
    for w in range(4):
        e("ds_read_b64 %s, v56 offset:%d" % (vr(44 + 2 * w, 2), 256 * w))
    e("s_mov_b32 s36, 0x%x" % f32bits(1.0 / 448.0))
    e("s_mov_b32 s37, 0x%x" % f32bits(1e-5))
    e("s_waitcnt lgkmcnt(0)")
    e("v_add_f32 v40, v44, v46")
    e("v_add_f32 v41, v45, v47")
    e("v_add_f32 v42, v48, v50")
    e("v_add_f32 v43, v49, v51")
    e("v_add_f32 v40, v40, v42")
    e("v_add_f32 v41, v41, v43")
    e("v_mul_f32 v40, s36, v40")
    e("v_mul_f32 v41, s36, v41")
    e("v_fma_f32 v41, -v40, v40, v41")
    e("v_max_f32 v41, 0, v41")
    rb1(e, 40, 40)
    rb1(e, 41, 41)
    e("v_add_f32 v41, s37, v41")
    rb1(e, 41, 41)
    e("v_sqrt_f32 v41, v41")
    e("v_sub_f32 v40, 0, v40")
    rb1(e, 41, 41)
    e("v_rcp_f32 v41, v41")
    for j in range(7):
        R = RF + 4 * j
        T = 44 + 8 * (j & 1)
        for k in range(4):
            if "nodotn" in OPTS:
                e("v_lshlrev_b32 v%d, 16, v%d" % (T + 2 * k, R + k))
                e("v_and_b32 v%d, s47, v%d" % (T + 2 * k + 1, R + k))
                e("v_add_f32 v%d, v%d, v40" % (T + 2 * k, T + 2 * k))
                e("v_add_f32 v%d, v%d, v40" % (T + 2 * k + 1, T + 2 * k + 1))
            else:
                e("v_dot2_f32_bf16 v%d, v%d, s41, v40" % (T + 2 * k, R + k))
                e("v_dot2_f32_bf16 v%d, v%d, s42, v40" % (T + 2 * k + 1, R + k))
        for k in range(4):
            e("v_cvt_pk_bf16_f32 v%d, v%d, v%d" % (R + k, T + 2 * k, T + 2 * k + 1))
        for k in range(4):
            e("v_lshlrev_b32 v%d, 16, v%d" % (T + 2 * k, R + k))
            e("v_mul_f32 v%d, v%d, v41" % (T + 2 * k, T + 2 * k))
            e("v_and_b32 v%d, s47, v%d" % (T + 2 * k + 1, R + k))
            e("v_mul_f32 v%d, v%d, v41" % (T + 2 * k + 1, T + 2 * k + 1))
        for k in range(4):
            e("v_cvt_pk_bf16_f32 v%d, v%d, v%d" % (R + k, T + 2 * k, T + 2 * k + 1))
        e("ds_write_b128 v63, %s offset:%d" % (vr(R, 4), 4096 * j))
        if j % 2 == 1: pend(1)
    ACC = 72
    for i in range(32):
        e("v_mov_b32 v%d, 0" % (ACC + i))
    e("v_add_u32 v59, %d, v6" % AT)
    e("s_waitcnt lgkmcnt(0)")
    e("s_barrier")
    stamp(e, 0)
    BF = [104, 108, 112, 116]

    def issue(t, s):
        e("ds_read_b128 %s, v59 offset:%d" % (vr(BF[s & 3], 4), (t * 28 + s) * 1024))

    BI = 40
    cgel = -2.0 * 0.7978845608028654 * 1.4426950408889634

    def epi(t):
        o = []
        A = ACC + 16 * t
        for hh in range(2):
            ps = range(4 * hh, 4 * hh + 4)
            for p in ps:
                o.append("v_cvt_pk_bf16_f32 v%d, v%d, v%d" % (24 + (p & 3), A + 2 * p, A + 2 * p + 1))
            for p in ps:
                x = 8 + 2 * (p & 3)
                o.append("v_dot2_f32_bf16 v%d, v%d, s41, v%d" % (x, 24 + (p & 3), BI + 2 * p))
                o.append("v_dot2_f32_bf16 v%d, v%d, s42, v%d" % (x + 1, 24 + (p & 3), BI + 2 * p + 1))
            o.append("s_nop 1")
            for p in ps:
                x = 8 + 2 * (p & 3)
                o.append("v_cvt_pk_bf16_f32 v%d, v%d, v%d" % (24 + (p & 3), x, x + 1))
            for p in ps:
                x = 8 + 2 * (p & 3)
                o.append("v_lshlrev_b32 v%d, 16, v%d" % (x, 24 + (p & 3)))
                o.append("v_mul_f32 v%d, v%d, v%d" % (x + 8, x, x))
                o.append("v_and_b32 v%d, s47, v%d" % (x + 1, 24 + (p & 3)))
                o.append("v_mul_f32 v%d, v%d, v%d" % (x + 9, x + 1, x + 1))
            for i in range(8):
                o.append("v_fma_f32 v%d, v%d, s44, v28" % (16 + i, 16 + i))
            for i in range(8):
                o.append("v_mul_f32 v%d, v%d, v%d" % (16 + i, 16 + i, 8 + i))
            for i in range(8):
                o.append("v_exp_f32 v%d, v%d" % (16 + i, 16 + i))
            for i in range(8):
                o.append("v_add_f32 v%d, 1.0, v%d" % (16 + i, 16 + i))
            for i in range(8):
                o.append("v_rcp_f32 v%d, v%d" % (16 + i, 16 + i))
            for i in range(8):
                o.append("v_mul_f32 v%d, v%d, v%d" % (8 + i, 8 + i, 16 + i))
            for p in ps:
                x = 8 + 2 * (p & 3)
                o.append("v_cvt_pk_bf16_f32 v%d, v%d, v%d" % (120 + 8 * t + p, x, x + 1))
            o.append("buffer_store_dwordx4 %s, v6, s[16:19], s48 offen offset:%d" % (vr(120 + 8 * t + 4 * hh, 4), 1024 * hh))
        o.append("s_add_u32 s48, s48, %d" % (112 * 1024))
        return o

    for s in range(3):
        issue(0, s)
    for s in range(28):
        if s + 3 < 28:
            issue(0, s + 3)
        else:
            issue(1, s + 3 - 28)
        pend(1)
        e("s_waitcnt lgkmcnt(3) vmcnt(%d)" % (issued() - (s + 1)))
        a = vr(ACC, 16)
        e("v_mfma_f32_32x32x16_bf16 %s, %s, %s, %s" % (a, vr(WF + 4 * s, 4), vr(BF[s & 3], 4), a))
    e("s_waitcnt vmcnt(0)")
    stamp(e, 0)
    pre = []
    for q in range(4):
        pre.append("v_lshlrev_b32 v%d, 16, v%d" % (40 + 4 * q, 136 + 2 * q))
        pre.append("v_and_b32 v%d, s47, v%d" % (41 + 4 * q, 136 + 2 * q))
        pre.append("v_lshlrev_b32 v%d, 16, v%d" % (42 + 4 * q, 137 + 2 * q))
        pre.append("v_and_b32 v%d, s47, v%d" % (43 + 4 * q, 137 + 2 * q))
    e("s_mov_b32 s44, 0x%x" % f32bits(0.044715 * cgel))
    e("v_mov_b32 v28, 0x%x" % f32bits(cgel))
    e("s_mul_i32 s48, s24, %d" % (2 * 112 * 1024))
    e("s_lshl_b32 s43, s26, 11")
    e("s_add_u32 s48, s48, s43")
    lst = pre + epi(0)
    per = (len(lst) + 26) // 27
    for s in range(28):
        if s + 3 < 28:
            issue(1, s + 3)
        e("s_waitcnt lgkmcnt(%d)" % min(3, 27 - s))
        a = vr(ACC + 16, 16)
        e("v_mfma_f32_32x32x16_bf16 %s, %s, %s, %s" % (a, vr(WF + 4 * s, 4), vr(BF[s & 3], 4), a))
        if s >= 1:
            for _ in range(per):
                if lst: e(lst.pop(0))
    for x in lst:
        e(x)
    e.nop(16)
    stamp(e, 0)
    for x in epi(1):
        e(x)
    if "stamp" in OPTS:
        e("s_waitcnt vmcnt(0)")
        stamp(e, 0)
    e.label("K3_END")
    endpgm(e, 2)
    e.label("K3_EXIT")
    e("s_endpgm")
    WGT_IDX[0] += 1
    return kernel_desc(name, 256)


K4_GRID = 224
P_RS = 272
P_SZ = 64 * P_RS
H_RS = 192
HT_SZ = 64 * H_RS
K4_LDS = 4 * P_SZ + HT_SZ


def gen_k4(e):
    name = NAME + "_kernel"
    kernel_header(e, name)
    e("s_cmp_ge_u32 s2, %d" % K4_GRID)
    e("s_cbranch_scc1 K4_EXIT")
    e("s_load_dwordx2 s[4:5], s[0:1], 112")
    e("s_load_dwordx2 s[6:7], s[0:1], 88")
    e("s_load_dwordx2 s[44:45], s[0:1], 96")
    e("v_lshrrev_b32 v1, 6, v0")
    e("v_and_b32 v2, 63, v0")
    e("s_nop 0")
    e("v_readfirstlane_b32 s3, v1")
    e("s_waitcnt lgkmcnt(0)")
    stamp_init(e, 200)
    stamp(e, 200)
    srd(e, 8, 4, 5, WS_H1, 64 * 112 * 1024)
    srd(e, 12, 4, 5, WS_WP + W1P_SZ, W1P_SZ)
    srd(e, 16, 4, 5, WS_HT, TSZ)
    srd(e, 20, 6, 7, 0, D * 2)
    srd(e, 24, 44, 45, 0, TSZ)
    e("s_and_b32 s28, s2, 31")
    e("s_lshr_b32 s29, s2, 5")
    e("s_mov_b32 s47, 0xffff0000")
    e("v_lshlrev_b32 v6, 4, v2")
    e("s_mul_i32 s30, s3, %d" % (28 * 1024))
    e("s_mul_i32 s31, s28, %d" % (2 * 112 * 1024))
    e("s_add_u32 s31, s31, s30")
    e("s_add_u32 s32, s31, %d" % (112 * 1024))
    e("s_mul_i32 s33, s29, %d" % (2 * 112 * 1024))
    e("s_add_u32 s33, s33, s30")
    e("s_add_u32 s34, s33, %d" % (112 * 1024))
    RING = 7
    RB = 80

    def ld(s):
        b = RB + 16 * (s % RING)
        o = (s % 4) * 1024
        e("buffer_load_dwordx4 %s, v6, s[12:15], s33 offen offset:%d" % (vr(b, 4), o))
        e("buffer_load_dwordx4 %s, v6, s[8:11], s31 offen offset:%d" % (vr(b + 8, 4), o))
        e("buffer_load_dwordx4 %s, v6, s[12:15], s34 offen offset:%d" % (vr(b + 4, 4), o))
        e("buffer_load_dwordx4 %s, v6, s[8:11], s32 offen offset:%d" % (vr(b + 12, 4), o))
        if s % 4 == 3:
            for r in (31, 32, 33, 34):
                e("s_add_u32 s%d, s%d, 4096" % (r, r))

    e("v_lshrrev_b32 v3, 3, v0")
    e("v_and_b32 v4, 7, v0")
    e("v_lshlrev_b32 v5, 12, v3")
    e("v_lshl_add_u32 v5, v4, 4, v5")
    e("s_lshl_b32 s35, s29, 18")
    e("s_lshl_b32 s36, s28, 7")
    e("s_add_u32 s35, s35, s36")
    e("buffer_load_dwordx4 v[8:11], v5, s[16:19], s35 offen")
    e("s_add_u32 s35, s35, 0x%x" % (32 * 4096))
    e("buffer_load_dwordx4 v[12:15], v5, s[16:19], s35 offen")
    e("v_lshrrev_b32 v204, 4, v2")
    e("v_lshlrev_b32 v204, 4, v204")
    e("s_lshl_b32 s40, s29, 7")
    e("buffer_load_dwordx4 v[192:195], v204, s[20:23], s40 offen")
    e("buffer_load_dwordx4 v[196:199], v204, s[20:23], s40 offen offset:64")
    for s in range(RING):
        ld(s)
    ACC = 16
    for i in range(64):
        e("v_mov_b32 v%d, 0" % (ACC + i))
    e("v_mul_u32_u24 v7, %d, v3" % H_RS)
    e("v_lshl_add_u32 v7, v4, 4, v7")
    e("s_waitcnt vmcnt(%d)" % (4 * RING))
    e("ds_write_b128 v7, v[8:11] offset:%d" % (0))
    e("ds_write_b128 v7, v[12:15] offset:%d" % (32 * H_RS))
    for s in range(28):
        outstanding_after = min(28 - 1 - s, RING - 1) * 4
        e("s_waitcnt vmcnt(%d)" % outstanding_after)
        if s in (0, 7, 14, 21): stamp(e, 200)
        b = RB + 16 * (s % RING)
        for dl in range(2):
            for t in range(2):
                a = vr(ACC + 16 * (2 * dl + t), 16)
                e("v_mfma_f32_32x32x16_bf16 %s, %s, %s, %s" % (a, vr(b + 4 * dl, 4), vr(b + 8 + 4 * t, 4), a))
        if s + RING < 28:
            ld(s + RING)
    stamp(e, 200)
    e("v_and_b32 v3, 31, v2")
    e("v_mul_u32_u24 v3, %d, v3" % P_RS)
    e("v_lshrrev_b32 v4, 5, v2")
    e("v_lshl_add_u32 v3, v4, 4, v3")
    e("s_mul_i32 s37, s3, %d" % P_SZ)
    e("v_add_u32 v3, s37, v3")
    e.nop(12)
    for dl in range(2):
        for t in range(2):
            for q in range(4):
                e("ds_write_b128 v3, %s offset:%d" % (vr(ACC + 16 * (2 * dl + t) + 4 * q, 4), HT_SZ + t * 32 * P_RS + dl * 128 + q * 32))
    e("s_waitcnt lgkmcnt(0)")
    e("s_barrier")
    e("v_and_b32 v3, 15, v2")
    e("v_lshrrev_b32 v4, 4, v2")
    e("s_lshl_b32 s38, s3, 4")
    e("v_add_u32 v5, s38, v3")
    e("v_mul_u32_u24 v7, %d, v5" % P_RS)
    e("v_lshl_add_u32 v7, v4, 5, v7")
    e("v_lshrrev_b32 v8, 2, v3")
    e("v_lshl_add_u32 v8, v4, 3, v8")
    e("v_mul_u32_u24 v8, %d, v8" % H_RS)
    e("v_and_b32 v9, 3, v3")
    e("v_lshl_add_u32 v8, v9, 3, v8")
    e("s_lshl_b32 s39, s3, 5")
    e("v_add_u32 v8, s39, v8")
    e("v_lshlrev_b32 v9, 4, v4")
    e("s_mov_b32 s41, 896")
    e("v_mul_lo_u32 v10, v5, s41")
    e("v_add_u32 v10, v10, v9")
    e("s_mul_i32 s42, s28, %d" % (64 * 896))
    e("s_add_u32 s42, s42, s40")
    for hf in range(2):
        for w in range(4):
            e("ds_read_b128 %s, v7 offset:%d" % (vr(16 + 8 * w, 4), HT_SZ + w * P_SZ + hf * 128))
            e("ds_read_b128 %s, v7 offset:%d" % (vr(20 + 8 * w, 4), HT_SZ + w * P_SZ + hf * 128 + 16))
        e("ds_read_b64_tr_b16 v[48:49], v8 offset:%d" % (hf * 32 * H_RS))
        e("ds_read_b64_tr_b16 v[50:51], v8 offset:%d" % (hf * 32 * H_RS + 4 * H_RS))
        e("s_waitcnt lgkmcnt(0) vmcnt(0)")
        for i in range(8):
            e("v_add_f32 v%d, v%d, v%d" % (16 + i, 16 + i, 24 + i))
            e("v_add_f32 v%d, v%d, v%d" % (32 + i, 32 + i, 40 + i))
            e("v_add_f32 v%d, v%d, v%d" % (16 + i, 16 + i, 32 + i))
        BB = 192 + 4 * hf
        for p in range(4):
            e("v_cvt_pk_bf16_f32 v24, v%d, v%d" % (16 + 2 * p, 17 + 2 * p))
            e("v_and_b32 v25, s47, v24")
            e("v_lshlrev_b32 v24, 16, v24")
            e("v_lshlrev_b32 v26, 16, v%d" % (BB + p))
            e("v_and_b32 v27, s47, v%d" % (BB + p))
            e("v_add_f32 v24, v24, v26")
            e("v_add_f32 v25, v25, v27")
            e("v_cvt_pk_bf16_f32 v24, v24, v25")
            e("v_and_b32 v25, s47, v24")
            e("v_lshlrev_b32 v24, 16, v24")
            e("v_lshlrev_b32 v26, 16, v%d" % (48 + p))
            e("v_and_b32 v27, s47, v%d" % (48 + p))
            e("v_add_f32 v24, v24, v26")
            e("v_add_f32 v25, v25, v27")
            e("v_cvt_pk_bf16_f32 v%d, v24, v25" % (52 + 4 * hf + p))
        e("buffer_store_dwordx4 %s, v10, s[24:27], s42 offen offset:%d" % (vr(52 + 4 * hf, 4), 64 * hf))
    e("s_waitcnt vmcnt(0)")
    stamp(e, 200)
    e.label("K4_END")
    endpgm(e, 3)
    e.label("K4_EXIT")
    e("s_endpgm")
    WGT_IDX[0] += 1
    return kernel_desc(name, 208)


def kernels():
    return [
        ("k2_kernel", gen_k2, K2_GRID, 512, K2_LDS),
        ("k3_kernel", gen_k3, K3_GRID, 512, K3_LDS),
        (NAME + "_kernel", gen_k4, K4_GRID, 256, K4_LDS),
    ]
```

```python
import sys, struct, os
OPTS = os.environ.get("GENOPTS", "").split(",")

NAME = "sequential_preLN__ssm_conv_s4d__dense_activation_gelu__prompt"
L = 2048; D = 448; N = 256; F = 1792

WS_UX = 0x0
UXSZ = 224 * 16384
WS_K = 0x400000
KCH = 15360
KQS = 3072
WS_HT = 0xC00000
WS_H1 = 0x1000000
WS_WP = 0x1800000
W1P_SZ = 56 * 28 * 1024
TSZ = D * L * 2


def f32bits(x):
    return struct.unpack("<I", struct.pack("<f", x))[0]


class E:
    def __init__(self):
        self.lines = []

    def __call__(self, s):
        self.lines.append("    " + s)

    def label(self, s):
        self.lines.append(s + ":")

    def c(self, s):
        self.lines.append("    ; " + s)

    def raw(self, s):
        self.lines.append(s)

    def nop(self, n):
        while n > 0:
            k = min(n, 16)
            self("s_nop %d" % (k - 1))
            n -= k

    def text(self):
        return "\n".join(self.lines) + "\n"


def vr(a, n=1):
    return "v%d" % a if n == 1 else "v[%d:%d]" % (a, a + n - 1)


def sr(a, n=1):
    return "s%d" % a if n == 1 else "s[%d:%d]" % (a, a + n - 1)


def srd(e, dst, base_lo, base_hi, off, size):
    if off:
        e("s_add_u32 s%d, s%d, 0x%x" % (dst, base_lo, off))
        e("s_addc_u32 s%d, s%d, 0" % (dst + 1, base_hi))
    else:
        e("s_mov_b32 s%d, s%d" % (dst, base_lo))
        e("s_mov_b32 s%d, s%d" % (dst + 1, base_hi))
    e("s_and_b32 s%d, s%d, 0xffff" % (dst + 1, dst + 1))
    e("s_mov_b32 s%d, 0x%x" % (dst + 2, size))
    e("s_mov_b32 s%d, 0x00020000" % (dst + 3))


def reduce64(e, v, t):
    e.nop(2)
    e("v_add_f32_dpp v%d, v%d, v%d quad_perm:[1,0,3,2] row_mask:0xf bank_mask:0xf" % (v, v, v))
    e.nop(2)
    e("v_add_f32_dpp v%d, v%d, v%d quad_perm:[2,3,0,1] row_mask:0xf bank_mask:0xf" % (v, v, v))
    e.nop(2)
    e("v_add_f32_dpp v%d, v%d, v%d row_half_mirror row_mask:0xf bank_mask:0xf" % (v, v, v))
    e.nop(2)
    e("v_add_f32_dpp v%d, v%d, v%d row_mirror row_mask:0xf bank_mask:0xf" % (v, v, v))
    e("v_mov_b32 v%d, v%d" % (t, v))
    e.nop(2)
    e("v_permlane16_swap_b32 v%d, v%d" % (v, t))
    e("v_add_f32 v%d, v%d, v%d" % (v, v, t))
    e("v_mov_b32 v%d, v%d" % (t, v))
    e.nop(2)
    e("v_permlane32_swap_b32 v%d, v%d" % (v, t))
    e("v_add_f32 v%d, v%d, v%d" % (v, v, t))


def rb1(e, dst, src):
    e("v_cvt_pk_bf16_f32 v%d, v%d, v%d" % (dst, src, src))
    e("v_lshlrev_b32 v%d, 16, v%d" % (dst, dst))


STAMP_WG = int(os.environ.get("STAMPWG", "0"))
def stamp_init(e, vtmp):
    if "stamp" not in OPTS: return
    e("s_load_dwordx2 s[90:91], s[0:1], 104")
    e("s_waitcnt lgkmcnt(0)")
    e("s_mov_b32 s92, s90")
    e("s_and_b32 s93, s91, 0xffff")
    e("s_mov_b32 s94, 256")
    e("s_mov_b32 s95, 0x00020000")
    e.stampn = 0
    stamp(e, vtmp, 100)

def stamp(e, vtmp, sreg=96):
    if "stamp" not in OPTS: return
    n = e.stampn; e.stampn += 1
    lab = "STP_%d" % len(e.lines)
    e("s_cmp_lg_u32 s2, %d" % STAMP_WG)
    e("s_cbranch_scc1 %s" % lab)
    e("s_cmp_lg_u32 s3, %d" % int(os.environ.get("STAMPWAVE", "0")))
    e("s_cbranch_scc1 %s" % lab)
    if sreg == 96:
        e("s_memtime s[96:97]")
        e("s_waitcnt lgkmcnt(0)")
    e("v_mov_b32 v%d, s%d" % (vtmp, sreg))
    e("s_mov_b64 s[98:99], exec")
    e("s_mov_b64 exec, 1")
    e("v_mov_b32 v%d, 0" % (vtmp + 1))
    e("buffer_store_dword v%d, v%d, s[92:95], 0 offen offset:%d" % (vtmp, vtmp + 1, 4 * n))
    e("s_mov_b64 exec, s[98:99]")
    e.label(lab)


WGT_IDX = [0]
def kernel_header(e, name):
    e.raw(".text")
    e.raw(".globl %s" % name)
    e.raw(".p2align 8")
    e.raw(".type %s,@function" % name)
    e.label(name)
    if "wgt" in OPTS:
        e("s_memrealtime s[86:87]")
        e("s_load_dwordx2 s[84:85], s[0:1], 112")
        e("s_waitcnt lgkmcnt(0)")
    if "stamp" in OPTS:
        e("s_memtime s[100:101]")
    if "hdbg" in OPTS:
        e("s_memrealtime s[86:87]")
        e("s_load_dwordx2 s[84:85], s[0:1], 104")
        e("s_waitcnt lgkmcnt(0)")


def endpgm(e, idx):
    if "wgt" in OPTS:
        e("s_waitcnt vmcnt(0)")
        e("s_memrealtime s[88:89]")
        e("s_waitcnt lgkmcnt(0)")
        srd(e, 80, 84, 85, 0x4000000 + idx * 0x100000, 0x100000)
        e("s_mov_b64 exec, 1")
        e("v_mov_b32 v0, s86")
        e("v_mov_b32 v1, s88")
        e("s_lshl_b32 s90, s2, 4")
        e("s_add_u32 s90, s90, s3")
        e("s_lshl_b32 s90, s90, 3")
        e("v_mov_b32 v2, s90")
        e("buffer_store_dwordx2 v[0:1], v2, s[80:83], 0 offen")
    if "hdbg" in OPTS:
        e("s_waitcnt vmcnt(0)")
        e("s_memrealtime s[88:89]")
        e("s_waitcnt lgkmcnt(0)")
        e("s_sub_u32 s80, s84, %d" % (512 * idx))
        e("s_subb_u32 s81, s85, 0")
        e("s_and_b32 s81, s81, 0xffff")
        e("s_mov_b32 s82, 256")
        e("s_mov_b32 s83, 0x00020000")
        e("s_mov_b64 exec, 1")
        e("s_not_b32 s86, s86")
        e("v_mov_b32 v0, s86")
        e("v_mov_b32 v1, s88")
        e("v_mov_b32 v2, 0")
        e("buffer_atomic_umax v0, v2, s[80:83], 0 offen offset:%d" % (8 * idx))
        e("buffer_atomic_umax v1, v2, s[80:83], 0 offen offset:%d" % (8 * idx + 4))
    e("s_endpgm")


def kernel_desc(name, vgpr, sgpr=102, accum=None):
    if accum is None:
        accum = (vgpr + 3) // 4 * 4
    return """.section .rodata,"a"
.p2align 6
.amdhsa_kernel %s
  .amdhsa_next_free_vgpr %d
  .amdhsa_next_free_sgpr %d
  .amdhsa_accum_offset %d
  .amdhsa_group_segment_fixed_size 0
  .amdhsa_kernarg_size 120
  .amdhsa_user_sgpr_count 2
  .amdhsa_user_sgpr_kernarg_segment_ptr 1
  .amdhsa_system_sgpr_workgroup_id_x 1
.end_amdhsa_kernel
""" % (name, vgpr, sgpr, accum)


K1_LN = 128
K1_KG = 448
K1_GRID = K1_LN + K1_KG
KG_WSZ = 32 * 288
K1_LDS = 4 * KG_WSZ


def reduce64_multi(e, S, T, n):
    for mod in ("quad_perm:[1,0,3,2]", "quad_perm:[2,3,0,1]", "row_half_mirror", "row_mirror"):
        for r in range(n):
            e("v_add_f32_dpp v%d, v%d, v%d %s row_mask:0xf bank_mask:0xf" % (S + r, S + r, S + r, mod))
    for sw in ("v_permlane16_swap_b32", "v_permlane32_swap_b32"):
        for r in range(n):
            e("v_mov_b32 v%d, v%d" % (T + r, S + r))
        for r in range(n):
            e("%s v%d, v%d" % (sw, S + r, T + r))
        for r in range(n):
            e("v_add_f32 v%d, v%d, v%d" % (S + r, S + r, T + r))


def pkb(r):
    return (vr(r & ~1, 2), r & 1)


def pk_mul_b(e, dst, src, r):
    p, h = pkb(r)
    e("v_pk_mul_f32 %s, %s, %s op_sel:[0,%d] op_sel_hi:[1,%d]" % (vr(dst, 2), vr(src, 2), p, h, h))


def gen_k1(e):
    name = "k1_kernel"
    kernel_header(e, name)
    e("s_cmp_ge_u32 s2, %d" % K1_GRID)
    e("s_cbranch_scc1 K1_EXIT")
    e("s_load_dwordx2 s[4:5], s[0:1], 112")
    e("v_lshrrev_b32 v1, 6, v0")
    e("v_and_b32 v2, 63, v0")
    e("s_nop 0")
    e("v_readfirstlane_b32 s3, v1")
    e("s_cmp_ge_u32 s2, %d" % K1_KG)
    e("s_cbranch_scc0 K1_KGB")

    e.label("K1_LNB")
    if "noln" in OPTS: e("s_branch K1_END")
    e("s_load_dwordx2 s[6:7], s[0:1], 0")
    e("s_setprio 3")
    e("s_sub_u32 s20, s2, %d" % K1_KG)
    e("s_lshl_b32 s21, s20, 4")
    e("s_lshl_b32 s23, s3, 2")
    e("s_add_u32 s21, s21, s23")
    e("s_mul_i32 s22, s21, 896")
    e("v_lshlrev_b32 v3, 4, v2")
    RX = 32
    for i in range(16):
        e("v_mov_b32 v%d, 0" % (RX + i))
    e("s_mov_b64 s[24:25], exec")
    e("v_cmp_gt_u32 vcc, 56, v2")
    e("s_mov_b64 s[26:27], vcc")
    e("s_waitcnt lgkmcnt(0)")
    stamp_init(e, 160)
    stamp(e, 160)
    srd(e, 8, 6, 7, 0, TSZ)
    srd(e, 12, 4, 5, WS_UX, UXSZ)
    e("s_mov_b64 exec, s[26:27]")
    for r in range(4):
        e("buffer_load_dwordx4 %s, v3, s[8:11], s22 offen offset:%d" % (vr(RX + 4 * r, 4), r * 896))
    e("s_mov_b64 exec, s[24:25]")
    XT = 16 * 912
    e("s_mul_i32 s23, s23, 912")
    e("v_add_u32 v4, s23, v3")
    e("s_mov_b32 s28, 0x%x" % f32bits(1.0 / 448.0))
    e("s_mov_b32 s29, 0x%x" % f32bits(1e-5))
    e("s_mov_b32 s30, 0xffff0000")
    e("s_mov_b32 s40, 0x3f803f80")
    e("s_mov_b32 s41, 0x00003f80")
    e("s_mov_b32 s42, 0x3f800000")
    e("v_and_b32 v5, 15, v2")
    e("v_lshrrev_b32 v6, 4, v2")
    e("v_lshrrev_b32 v7, 2, v5")
    e("v_and_b32 v16, 3, v5")
    e("v_and_b32 v17, 1, v6")
    e("v_lshlrev_b32 v18, 3, v17")
    e("v_add_u32 v19, v18, v7")
    e("v_sub_u32 v20, 15, v19")
    e("v_add_u32 v19, 16, v19")
    e("v_cmp_gt_u32 vcc, 2, v6")
    e("v_cndmask_b32 v19, v19, v20, vcc")
    e("v_mul_u32_u24 v10, 912, v19")
    e("v_lshl_add_u32 v10, v16, 3, v10")
    e("s_lshl_b32 s33, s3, 5")
    e("v_add_u32 v10, s33, v10")
    e("v_mov_b32 v19, %d" % (4 * 912))
    e("v_mov_b32 v20, %d" % (-4 * 912))
    e("v_cndmask_b32 v19, v19, v20, vcc")
    e("v_add_u32 v11, v10, v19")
    e("v_lshrrev_b32 v12, 1, v5")
    e("v_lshlrev_b32 v12, 14, v12")
    e("v_and_b32 v19, 1, v5")
    e("v_lshl_add_u32 v12, v19, 5, v12")
    e("v_lshrrev_b32 v19, 1, v6")
    e("v_lshl_add_u32 v12, v19, 6, v12")
    e("v_lshl_add_u32 v12, v17, 4, v12")
    e("s_sub_u32 s34, 127, s20")
    e("s_lshl_b32 s34, s34, 7")
    e("s_lshl_b32 s35, s3, 17")
    e("s_add_u32 s34, s34, s35")
    S, T, X = 16, 64, 96
    for r in range(8):
        e("v_mov_b32 v%d, 0" % (S + r))
    for r in range(4):
        e("s_waitcnt vmcnt(%d)" % (3 - r))
        R = RX + 4 * r
        for k in range(4):
            e("v_dot2_f32_bf16 v%d, v%d, s40, v%d" % (S + r, R + k, S + r))
            e("v_dot2_f32_bf16 v%d, v%d, v%d, v%d" % (S + 4 + r, R + k, R + k, S + 4 + r))
    stamp(e, 160)
    e("s_mov_b64 exec, s[26:27]")
    for r in range(4):
        e("ds_write_b128 v4, %s offset:%d" % (vr(RX + 4 * r, 4), XT + r * 912))
    e("s_mov_b64 exec, s[24:25]")
    reduce64_multi(e, S, T, 8)
    V = S + 4
    for r in range(8):
        e("v_mul_f32 v%d, s28, v%d" % (S + r, S + r))
    for r in range(4):
        e("v_fma_f32 v%d, -v%d, v%d, v%d" % (V + r, S + r, S + r, V + r))
    for r in range(4):
        e("v_max_f32 v%d, 0, v%d" % (V + r, V + r))
    for r in range(4):
        e("v_cvt_pk_bf16_f32 v%d, v%d, v%d" % (S + r, S + r, S + r))
        e("v_cvt_pk_bf16_f32 v%d, v%d, v%d" % (V + r, V + r, V + r))
    for r in range(4):
        e("v_lshlrev_b32 v%d, 16, v%d" % (S + r, S + r))
        e("v_lshlrev_b32 v%d, 16, v%d" % (V + r, V + r))
    for r in range(4):
        e("v_add_f32 v%d, s29, v%d" % (V + r, V + r))
        e("v_sub_f32 v%d, 0, v%d" % (S + r, S + r))
    for r in range(4):
        e("v_cvt_pk_bf16_f32 v%d, v%d, v%d" % (V + r, V + r, V + r))
    for r in range(4):
        e("v_lshlrev_b32 v%d, 16, v%d" % (V + r, V + r))
    for r in range(4):
        e("v_sqrt_f32 v%d, v%d" % (V + r, V + r))
    for r in range(4):
        e("v_cvt_pk_bf16_f32 v%d, v%d, v%d" % (V + r, V + r, V + r))
    for r in range(4):
        e("v_lshlrev_b32 v%d, 16, v%d" % (V + r, V + r))
    for r in range(4):
        e("v_rcp_f32 v%d, v%d" % (V + r, V + r))
    for r in range(4):
        R = RX + 4 * r
        xb = X + 8 * r
        for k in range(4):
            e("v_dot2_f32_bf16 v%d, v%d, s41, v%d" % (xb + 2 * k, R + k, S + r))
            e("v_dot2_f32_bf16 v%d, v%d, s42, v%d" % (xb + 2 * k + 1, R + k, S + r))
    for r in range(4):
        R = RX + 4 * r
        xb = X + 8 * r
        for k in range(4):
            e("v_cvt_pk_bf16_f32 v%d, v%d, v%d" % (R + k, xb + 2 * k, xb + 2 * k + 1))
        for k in range(4):
            e("v_lshlrev_b32 v%d, 16, v%d" % (xb + 2 * k, R + k))
            e("v_and_b32 v%d, s30, v%d" % (xb + 2 * k + 1, R + k))
        for k in range(4):
            pk_mul_b(e, xb + 2 * k, xb + 2 * k, V + r)
        for k in range(4):
            e("v_cvt_pk_bf16_f32 v%d, v%d, v%d" % (R + k, xb + 2 * k, xb + 2 * k + 1))
    e("s_mov_b64 exec, s[26:27]")
    for r in range(4):
        e("ds_write_b128 v4, %s offset:%d" % (vr(RX + 4 * r, 4), r * 912))
    e("s_mov_b64 exec, s[24:25]")
    stamp(e, 160)
    e("s_waitcnt lgkmcnt(0)")
    e("s_barrier")
    stamp(e, 160)
    for k in range(7):
        b = 64 + 4 * k
        e("ds_read_b64_tr_b16 %s, v10 offset:%d" % (vr(b, 2), k * 128))
        e("ds_read_b64_tr_b16 %s, v11 offset:%d" % (vr(b + 2, 2), k * 128))
    for k in range(7):
        b = 64 + 4 * k
        e("s_waitcnt lgkmcnt(%d)" % (2 * (6 - k)))
        e("buffer_store_dwordx4 %s, v12, s[12:15], s34 offen" % vr(b, 4))
        if k < 6:
            e("s_add_u32 s34, s34, 0x%x" % (32 * 16384))
    stamp(e, 160)
    if "stamp" in OPTS:
        e("s_waitcnt vmcnt(0)")
        stamp(e, 160)
    e("s_branch K1_END")

    e.label("K1_KGB")
    if "nokg" in OPTS: e("s_branch K1_END")
    e("s_load_dwordx8 s[8:15], s[0:1], 8")
    e("s_load_dwordx2 s[16:17], s[0:1], 40")
    e("s_mov_b32 s20, s2")
    e("s_lshl_b32 s21, s20, 9")
    e("v_lshlrev_b32 v3, 1, v0")
    e("s_lshl_b32 s22, s20, 1")
    e("v_mov_b32 v4, 0")
    e("s_waitcnt lgkmcnt(0)")
    stamp_init(e, 166)
    stamp(e, 166)
    srd(e, 24, 8, 9, 0, D * N * 2)
    srd(e, 40, 16, 17, 0, D * 2)
    e("buffer_load_ushort v8, v3, s[24:27], s21 offen")
    e("buffer_load_ushort v12, v4, s[40:43], s22 offen")
    srd(e, 28, 10, 11, 0, D * N * 2)
    e("buffer_load_ushort v9, v3, s[28:31], s21 offen")
    srd(e, 32, 12, 13, 0, D * N * 2)
    e("buffer_load_ushort v10, v3, s[32:35], s21 offen")
    srd(e, 36, 14, 15, 0, D * N * 2)
    e("buffer_load_ushort v11, v3, s[36:39], s21 offen")
    import numpy as np
    lhi = np.float32(1.4426950408889634)
    llo = np.float32(1.4426950408889634 - float(lhi))
    e("s_mov_b32 s44, 0x%x" % f32bits(float(lhi)))
    e("s_mov_b32 s45, 0x%x" % f32bits(float(llo)))
    e("s_mov_b32 s46, 0x%x" % f32bits(0.6931471805599453))
    e("s_mov_b32 s48, 0x%x" % f32bits(0.15915494309189535))
    e("s_mul_i32 s50, s3, %d" % KG_WSZ)
    e("s_mov_b32 m0, s50")
    e("v_and_b32 v5, 15, v2")
    e("v_lshrrev_b32 v6, 4, v2")
    e("v_mul_u32_u24 v7, 288, v5")
    e("v_lshl_add_u32 v7, v6, 4, v7")
    e("v_add_u32 v7, s50, v7")
    e("v_lshrrev_b32 v1, 1, v6")
    e("v_lshlrev_b32 v1, 9, v1")
    e("v_and_b32 v14, 1, v6")
    e("v_lshl_add_u32 v1, v14, 4, v1")
    e("v_lshl_add_u32 v1, v5, 5, v1")
    e("v_add_u32 v1, s50, v1")
    e("v_lshlrev_b32 v3, 8, v6")
    e("v_add_u32 v3, s50, v3")
    e("v_lshl_add_u32 v13, v5, 2, v3")
    e("v_lshl_add_u32 v14, v5, 4, v3")
    e("v_lshl_add_u32 v15, v5, 3, v3")
    e("v_cmp_gt_u32 vcc, 2, v6")
    e("v_cndmask_b32 v3, v15, v14, vcc")
    e("v_add_u32 v14, 8, v3")
    e("v_add_u32 v15, 128, v3")
    e("v_cndmask_b32 v4, v15, v14, vcc")
    Z = 16
    EB = 40
    G0 = 72
    G1 = 104
    AF = 136
    ACC = 16
    e("s_waitcnt vmcnt(0)")
    stamp(e, 166)
    for r in (8, 9, 10, 11, 12):
        e("v_lshlrev_b32 v%d, 16, v%d" % (r, r))

    def exp_acc(dst, x, t1, t2):
        e("v_mul_f32 v%d, s44, v%d" % (t1, x))
        e("v_fma_f32 v%d, v%d, s44, -v%d" % (t2, x, t1))
        e("v_fmac_f32 v%d, s45, v%d" % (t2, x))
        e("v_exp_f32 v%d, v%d" % (t1, t1))
        e("v_mul_f32 v%d, s46, v%d" % (t2, t2))
        e("v_fma_f32 v%d, v%d, v%d, v%d" % (dst, t1, t2, t1))
        rb1(e, dst, dst)

    exp_acc(12, 12, 14, 15)
    exp_acc(8, 8, 14, 15)
    e("v_mul_f32 v8, v8, v12")
    e("v_mul_f32 v9, v9, v12")
    e("v_mul_f32 v8, s44, v8")
    e("v_mul_f32 v9, s48, v9")
    e("v_mul_f32 v%d, 0x%x, v10" % (G0, f32bits(1024.0)))
    e("v_mul_f32 v%d, 0x%x, v11" % (G0 + 1, f32bits(-1024.0)))
    e("v_mul_f32 v12, 0x%x, v12" % f32bits(2.0 ** -24))
    e("s_mov_b32 s52, 0x%x" % f32bits(32768.0))
    e("s_mov_b32 s53, s52")
    RT = AF
    order = [3, 4, 5, 6, 0, 1, 2, 7, 8, 9, 10, 11]
    e("v_mov_b32 v%d, v8" % RT)
    e("v_mov_b32 v%d, v9" % (RT + 1))
    for k in range(1, 12):
        e("v_pk_add_f32 %s, %s, %s" % (vr(RT + 2 * k, 2), vr(RT + 2 * k - 2, 2), vr(RT + 2 * k - 2, 2)))
    for k0 in range(0, 12, 4):
        ks = order[k0:k0 + 4]
        for k in ks:
            e("v_exp_f32 v%d, -v%d" % (RT + 2 * k, RT + 2 * k))
            e("v_fract_f32 v%d, v%d" % (RT + 2 * k + 1, RT + 2 * k + 1))
        for k in ks:
            e("v_cos_f32 v%d, v%d" % (Z + 2 * k, RT + 2 * k + 1))
            e("v_sin_f32 v%d, v%d" % (Z + 2 * k + 1, RT + 2 * k + 1))
        e.nop(1)
        for k in ks:
            pk_mul_b(e, Z + 2 * k, Z + 2 * k, RT + 2 * k)
    stamp(e, 166)

    def zr(k):
        return Z + 2 * k

    cnt = [0]

    def cmul_l(dst, a, b, conj=False):
        T = (8, 10)[cnt[0] & 1]; cnt[0] += 1
        return ["v_pk_mul_f32 %s, %s, %s op_sel:[1,1] op_sel_hi:[1,0]" % (vr(T, 2), vr(a, 2), vr(b, 2)),
                "v_pk_fma_f32 %s, %s, %s, %s op_sel:[0,0,0] op_sel_hi:[0,1,1] %s" % (vr(dst, 2), vr(a, 2), vr(b, 2), vr(T, 2), "neg_hi:[0,0,1]" if conj else "neg_lo:[0,0,1]")]

    def cmul(dst, a, b, conj=False):
        for x in cmul_l(dst, a, b, conj): e(x)

    def split_list(items):
        o = []
        TS = [(14, 15), (5, 6)]
        for k in range(0, len(items), 2):
            grp = items[k:k + 2]
            for (src_, row), (h, l) in zip(grp, TS):
                o.append("v_cvt_pk_f16_f32 v%d, v%d, v%d" % (h, src_, src_ + 1))
            for (src_, row), (h, l) in zip(grp, TS):
                o.append("v_fma_mixlo_f16 v%d, v%d, -1.0, v%d op_sel:[0,0,0] op_sel_hi:[1,0,0]" % (l, h, src_))
            for (src_, row), (h, l) in zip(grp, TS):
                o.append("v_fma_mixhi_f16 v%d, v%d, -1.0, v%d op_sel:[1,0,0] op_sel_hi:[1,0,0]" % (l, h, src_ + 1))
            for (src_, row), (h, l) in zip(grp, TS):
                o.append("ds_write_addtid_b32 v%d offset:%d" % (h, row * 288))
            for (src_, row), (h, l) in zip(grp, TS):
                o.append("ds_write_addtid_b32 v%d offset:%d" % (l, (row + 16) * 288))
        return o

    def frag_reads(base):
        for s in range(4):
            e("ds_read_b128 %s, v7 offset:%d" % (vr(base + 8 * s, 4), 64 * s))
            e("ds_read_b128 %s, v7 offset:%d" % (vr(base + 8 * s + 4, 4), 64 * s + 16 * 288))

    def mfma_l(t):
        o = []
        a = vr(ACC + 4 * t, 4)
        for s in range(4):
            ah, al = vr(AF + 8 * s, 4), vr(AF + 8 * s + 4, 4)
            bh, bl = vr(EB + 8 * s, 4), vr(EB + 8 * s + 4, 4)
            o.append("v_mfma_f32_16x16x32_f16 %s, %s, %s, %s" % (a, ah, bh, "0" if s == 0 else a))
            o.append("v_mfma_f32_16x16x32_f16 %s, %s, %s, %s" % (a, ah, bl, a))
            o.append("v_mfma_f32_16x16x32_f16 %s, %s, %s, %s" % (a, al, bh, a))
        return o

    def interleave(mf, other):
        per = (len(other) + len(mf) - 1) // len(mf) if mf else 0
        other = list(other)
        for m in mf:
            e(m)
            for _ in range(per):
                if other: e(other.pop(0))
        for x in other: e(x)

    e("v_mov_b32 v%d, s52" % EB)
    e("v_mov_b32 v%d, 0" % (EB + 1))
    Er = {0: EB}
    for b in range(1, 16):
        k = b.bit_length() - 1
        hb = 1 << k
        Er[b] = EB + 2 * b
        if b == hb:
            e("v_pk_mul_f32 %s, %s, s[52:53]" % (vr(Er[b], 2), vr(zr(3 + k), 2)))
        else:
            cmul(Er[b], zr(3 + k), Er[b - hb])
    for x in split_list([(Er[b], b) for b in range(16)]): e(x)
    G = {0: G0}
    for c in range(1, 8):
        k = c.bit_length() - 1
        G[c] = G0 + 2 * c
        cmul(G[c], zr(k), G[c - (1 << k)], True)
    frag_reads(EB)
    for c in range(8):
        G[128 + c] = G0 + 16 + 2 * c
        cmul(G[128 + c], zr(7), G[c], True)
    for x in split_list([(G[128 * a + c], 8 * a + c) for a in range(2) for c in range(8)]): e(x)
    frag_reads(AF)
    stamp(e, 166)
    t1rows = []
    for a in range(2):
        for c in range(4):
            p = 256 + 128 * a + 2 * c
            G[p] = G1 + 2 * (4 * a + c)
            cmul(G[p], zr(8), G[128 * a + 2 * c], True)
            t1rows.append((G[p], 4 * a + c))
    for gp in range(2):
        for i in range(4):
            a = 2 * gp + (i >> 1); c = i & 1
            p = 512 + 128 * a + 4 * c
            G[p] = G1 + 16 + 2 * (4 * gp + i)
            cmul(G[p], zr(9), G[128 * a + 4 * c], True)
            t1rows.append((G[p], 8 + 4 * gp + i))
    e("s_waitcnt lgkmcnt(0)")
    interleave(mfma_l(0), split_list(t1rows))
    frag_reads(AF)
    stamp(e, 166)
    t2rows = []
    slots = [G0 + 2 * r for r in (1, 2, 3, 4, 5, 6, 7, 9, 10)]
    for a in range(8):
        p = 1024 + 128 * a
        G[p] = slots[a]
        cmul(G[p], zr(10), G[128 * a], True)
        t2rows.append((G[p], a))
    G[2048] = slots[8]
    cmul(G[2048], zr(11), G[0], True)
    t2rows.append((G[2048], 8))
    e("s_waitcnt lgkmcnt(0)")
    interleave(mfma_l(1), split_list(t2rows))
    frag_reads(AF)
    stamp(e, 166)
    srd(e, 24, 4, 5, WS_K, D * KQS)
    e("s_mul_i32 s21, s20, %d" % KQS)
    e("v_lshlrev_b32 v9, 2, v0")
    e("s_waitcnt lgkmcnt(0)")
    mf = mfma_l(2)
    for m in mf[:6]: e(m)
    e("ds_write_b128 v1, %s" % vr(ACC, 4))
    for m in mf[6:9]: e(m)
    e("ds_write_b64 v3, %s offset:1024" % vr(ACC + 4, 2))
    e("ds_write_b64 v4, %s offset:1024" % vr(ACC + 6, 2))
    for m in mf[9:]: e(m)
    e.nop(14)
    for i in range(4):
        e("ds_write_b32 v13, v%d offset:%d" % (ACC + 8 + i, 2048 + 64 * i))
    e("s_waitcnt lgkmcnt(0)")
    e("s_barrier")
    stamp(e, 166)
    for m in range(3):
        for w in range(4):
            e("ds_read_b32 v%d, v9 offset:%d" % (40 + 4 * m + w, w * KG_WSZ + 1024 * m))
    for m in range(3):
        e("s_waitcnt lgkmcnt(%d)" % (8 - 4 * m))
        b = 40 + 4 * m
        e("v_add_f32 v%d, v%d, v%d" % (b, b, b + 1))
        e("v_add_f32 v%d, v%d, v%d" % (b + 2, b + 2, b + 3))
        e("v_add_f32 v%d, v%d, v%d" % (b, b, b + 2))
        e("v_mul_f32 v%d, v%d, v12" % (b, b))
        e("buffer_store_dword v%d, v9, s[24:27], s21 offen offset:%d" % (b, 1024 * m))
    if "stamp" in OPTS:
        e("s_waitcnt vmcnt(0)")
        stamp(e, 166)
    e.label("K1_END")
    endpgm(e, 0)
    e.label("K1_EXIT")
    e("s_endpgm")
    WGT_IDX[0] += 1
    return kernel_desc(name, 168)


def gen_k5(e, specs):
    name = "k5_kernel"
    e.raw(".text")
    e.raw(".globl %s" % name)
    e.raw(".p2align 8")
    e.raw(".type %s,@function" % name)
    e.label(name)
    e("s_cmp_ge_u32 s2, 1")
    e("s_cbranch_scc1 K5_EXIT")
    e("s_memtime s[30:31]")
    e("s_memrealtime s[32:33]")
    e("s_load_dwordx2 s[4:5], s[0:1], 112")
    e("s_load_dwordx2 s[6:7], s[0:1], 104")
    e("s_waitcnt lgkmcnt(0)")
    srd(e, 8, 4, 5, 0x4000000, 0x400000)
    srd(e, 12, 6, 7, 0, 256)
    e("s_sub_u32 s16, s6, %d" % (512 * len(specs)))
    e("s_subb_u32 s17, s7, 0")
    e("s_and_b32 s17, s17, 0xffff")
    e("s_mov_b32 s18, 256")
    e("s_mov_b32 s19, 0x00020000")
    e("v_mov_b32 v10, -1")
    e("v_mov_b32 v11, 0")
    e("v_lshlrev_b32 v12, 3, v0")
    e("v_and_b32 v13, 7, v0")
    e("v_lshlrev_b32 v13, 3, v13")
    e("ds_write_b64 v13, v[10:11]")
    e("s_waitcnt lgkmcnt(0)")
    for i, (g, nw) in enumerate(specs):
        e("v_mov_b32 v10, -1")
        e("v_mov_b32 v11, 0")
        for c in range((g + 63) // 64):
            e("v_add_u32 v1, %d, v0" % (64 * c))
            e("v_min_u32 v1, %d, v1" % (g - 1))
            e("v_lshlrev_b32 v1, 7, v1")
            e("s_mov_b32 s20, 0x%x" % (i * 0x100000))
            for w in range(nw):
                e("buffer_load_dwordx2 v[%d:%d], v1, s[8:11], s20 offen offset:%d" % (20 + 2 * w, 21 + 2 * w, 8 * w))
            e("s_waitcnt vmcnt(0)")
            for w in range(nw):
                e("v_min_u32 v10, v10, v%d" % (20 + 2 * w))
                e("v_max_u32 v11, v11, v%d" % (21 + 2 * w))
        e("v_mov_b32 v2, %d" % (8 * i))
        e("ds_min_u32 v2, v10")
        e("ds_max_u32 v2, v11 offset:4")
    e("s_waitcnt lgkmcnt(0)")
    e("v_lshlrev_b32 v3, 2, v0")
    e("v_mov_b32 v4, 0")
    e("ds_read_b32 v5, v3")
    e("ds_read_b32 v6, v4")
    e("s_waitcnt lgkmcnt(0)")
    e("v_sub_u32 v5, v5, v6")
    e("v_cmp_gt_u32 vcc, 8, v0")
    e("s_and_saveexec_b64 s[22:23], vcc")
    e("buffer_store_dword v5, v3, s[12:15], 0 offen")
    e("buffer_store_dword v5, v3, s[16:19], 0 offen")
    e("s_memtime s[34:35]")
    e("s_memrealtime s[36:37]")
    e("s_waitcnt lgkmcnt(0)")
    e("s_sub_u32 s34, s34, s30")
    e("s_sub_u32 s36, s36, s32")
    e("v_mov_b32 v14, s34")
    e("v_mov_b32 v15, s36")
    e("v_mov_b32 v16, s32")
    e("ds_read_b32 v8, v4")
    e("s_waitcnt lgkmcnt(0)")
    e("v_sub_u32 v16, v16, v8")
    e("s_mov_b64 exec, 1")
    e("buffer_store_dwordx3 v[14:16], v4, s[16:19], 0 offen offset:32")
    e.label("K5_EXIT")
    e("s_endpgm")
    return kernel_desc(name, 64)


def main():
    out = []
    hdr = open("cdna_kernels/%s.s.ref" % NAME).read().split("\n")
    for ln in hdr:
        if ln.startswith("; @launch") or not ln.startswith(";"):
            break
        out.append(ln)
    launches = []
    e = E()
    descs = []
    import gen_rest
    descs.append(gen_k1(e))
    launches.append(("k1_kernel", K1_GRID, 256, K1_LDS))
    for (nm, fn, grid, blk, lds) in gen_rest.kernels():
        descs.append(fn(e))
        launches.append((nm, grid, blk, lds))
    if "k5" in OPTS:
        descs.append(gen_k5(e, [(g, b // 64) for (_, g, b, _) in launches]))
        launches.append(("k5_kernel", 1, 64, 1024))
    nl = int(sys.argv[1]) if len(sys.argv) > 1 else len(launches)
    for (nm, g, b, l) in launches[:nl]:
        out.append("; @launch kernel=%s grid=(%d,1,1) block=(%d,1,1) lds=%d" % (nm, g, b, l))
    out.append('.amdgcn_target "amdgcn-amd-amdhsa--gfx950"')
    txt = "\n".join(out) + "\n" + e.text() + "".join(descs)
    open(os.environ.get("GENOUT", "cdna_kernels/%s.s" % NAME), "w").write(txt)
    print("written", len(txt), "bytes")


if __name__ == "__main__":
    main()
```

```python
import sys, struct, os
OPTS = os.environ.get("GENOPTS", "").split(",")

NAME = "sequential_preLN__ssm_conv_s4d__dense_activation_gelu__prompt"
L = 2048; D = 448; N = 256; F = 1792

WS_UX = 0x0
UXSZ = 224 * 16384
WS_K = 0x400000
KCH = 15360
KQS = 3072
WS_HT = 0xC00000
WS_H1 = 0x1000000
WS_WP = 0x1800000
W1P_SZ = 56 * 28 * 1024
TSZ = D * L * 2


def f32bits(x):
    return struct.unpack("<I", struct.pack("<f", x))[0]


class E:
    def __init__(self):
        self.lines = []

    def __call__(self, s):
        self.lines.append("    " + s)

    def label(self, s):
        self.lines.append(s + ":")

    def c(self, s):
        self.lines.append("    ; " + s)

    def raw(self, s):
        self.lines.append(s)

    def nop(self, n):
        while n > 0:
            k = min(n, 16)
            self("s_nop %d" % (k - 1))
            n -= k

    def text(self):
        return "\n".join(self.lines) + "\n"


def vr(a, n=1):
    return "v%d" % a if n == 1 else "v[%d:%d]" % (a, a + n - 1)


def sr(a, n=1):
    return "s%d" % a if n == 1 else "s[%d:%d]" % (a, a + n - 1)


def srd(e, dst, base_lo, base_hi, off, size):
    if off:
        e("s_add_u32 s%d, s%d, 0x%x" % (dst, base_lo, off))
        e("s_addc_u32 s%d, s%d, 0" % (dst + 1, base_hi))
    else:
        e("s_mov_b32 s%d, s%d" % (dst, base_lo))
        e("s_mov_b32 s%d, s%d" % (dst + 1, base_hi))
    e("s_and_b32 s%d, s%d, 0xffff" % (dst + 1, dst + 1))
    e("s_mov_b32 s%d, 0x%x" % (dst + 2, size))
    e("s_mov_b32 s%d, 0x00020000" % (dst + 3))


def reduce64(e, v, t):
    e.nop(2)
    e("v_add_f32_dpp v%d, v%d, v%d quad_perm:[1,0,3,2] row_mask:0xf bank_mask:0xf" % (v, v, v))
    e.nop(2)
    e("v_add_f32_dpp v%d, v%d, v%d quad_perm:[2,3,0,1] row_mask:0xf bank_mask:0xf" % (v, v, v))
    e.nop(2)
    e("v_add_f32_dpp v%d, v%d, v%d row_half_mirror row_mask:0xf bank_mask:0xf" % (v, v, v))
    e.nop(2)
    e("v_add_f32_dpp v%d, v%d, v%d row_mirror row_mask:0xf bank_mask:0xf" % (v, v, v))
    e("v_mov_b32 v%d, v%d" % (t, v))
    e.nop(2)
    e("v_permlane16_swap_b32 v%d, v%d" % (v, t))
    e("v_add_f32 v%d, v%d, v%d" % (v, v, t))
    e("v_mov_b32 v%d, v%d" % (t, v))
    e.nop(2)
    e("v_permlane32_swap_b32 v%d, v%d" % (v, t))
    e("v_add_f32 v%d, v%d, v%d" % (v, v, t))


def rb1(e, dst, src):
    e("v_cvt_pk_bf16_f32 v%d, v%d, v%d" % (dst, src, src))
    e("v_lshlrev_b32 v%d, 16, v%d" % (dst, dst))


STAMP_WG = int(os.environ.get("STAMPWG", "0"))
def stamp_init(e, vtmp):
    if "stamp" not in OPTS: return
    e("s_load_dwordx2 s[90:91], s[0:1], 104")
    e("s_waitcnt lgkmcnt(0)")
    e("s_mov_b32 s92, s90")
    e("s_and_b32 s93, s91, 0xffff")
    e("s_mov_b32 s94, 256")
    e("s_mov_b32 s95, 0x00020000")
    e.stampn = 0
    stamp(e, vtmp, 100)

def stamp(e, vtmp, sreg=96):
    if "stamp" not in OPTS: return
    n = e.stampn; e.stampn += 1
    lab = "STP_%d" % len(e.lines)
    e("s_cmp_lg_u32 s2, %d" % STAMP_WG)
    e("s_cbranch_scc1 %s" % lab)
    e("s_cmp_lg_u32 s3, %d" % int(os.environ.get("STAMPWAVE", "0")))
    e("s_cbranch_scc1 %s" % lab)
    if sreg == 96:
        e("s_memtime s[96:97]")
        e("s_waitcnt lgkmcnt(0)")
    e("v_mov_b32 v%d, s%d" % (vtmp, sreg))
    e("s_mov_b64 s[98:99], exec")
    e("s_mov_b64 exec, 1")
    e("v_mov_b32 v%d, 0" % (vtmp + 1))
    e("buffer_store_dword v%d, v%d, s[92:95], 0 offen offset:%d" % (vtmp, vtmp + 1, 4 * n))
    e("s_mov_b64 exec, s[98:99]")
    e.label(lab)


WGT_IDX = [0]
def kernel_header(e, name):
    e.raw(".text")
    e.raw(".globl %s" % name)
    e.raw(".p2align 8")
    e.raw(".type %s,@function" % name)
    e.label(name)
    if "wgt" in OPTS:
        e("s_memrealtime s[86:87]")
        e("s_load_dwordx2 s[84:85], s[0:1], 112")
        e("s_waitcnt lgkmcnt(0)")
    if "stamp" in OPTS:
        e("s_memtime s[100:101]")
    dl = os.environ.get("DELAY", "")
    if dl and dl.split(":")[0] == name[:2]:
        e("s_memrealtime s[96:97]")
        e("s_waitcnt lgkmcnt(0)")
        e.label("DLY_%s" % name)
        e("s_memrealtime s[98:99]")
        e("s_waitcnt lgkmcnt(0)")
        e("s_sub_u32 s98, s98, s96")
        e("s_cmp_lt_u32 s98, %d" % int(dl.split(":")[1]))
        e("s_cbranch_scc1 DLY_%s" % name)
    if "hdbg" in OPTS:
        e("s_memrealtime s[86:87]")
        e("s_load_dwordx2 s[84:85], s[0:1], 104")
        e("s_waitcnt lgkmcnt(0)")


def endpgm(e, idx):
    if "wgt" in OPTS:
        e("s_waitcnt vmcnt(0)")
        e("s_memrealtime s[88:89]")
        e("s_waitcnt lgkmcnt(0)")
        srd(e, 80, 84, 85, 0x4000000 + idx * 0x100000, 0x100000)
        e("s_mov_b64 exec, 1")
        e("v_mov_b32 v0, s86")
        e("v_mov_b32 v1, s88")
        e("s_lshl_b32 s90, s2, 4")
        e("s_add_u32 s90, s90, s3")
        e("s_lshl_b32 s90, s90, 3")
        e("v_mov_b32 v2, s90")
        e("buffer_store_dwordx2 v[0:1], v2, s[80:83], 0 offen")
    if "hdbg" in OPTS:
        e("s_waitcnt vmcnt(0)")
        e("s_memrealtime s[88:89]")
        e("s_waitcnt lgkmcnt(0)")
        e("s_sub_u32 s80, s84, %d" % (512 * idx))
        e("s_subb_u32 s81, s85, 0")
        e("s_and_b32 s81, s81, 0xffff")
        e("s_mov_b32 s82, 256")
        e("s_mov_b32 s83, 0x00020000")
        e("s_mov_b64 exec, 1")
        e("s_not_b32 s86, s86")
        e("v_mov_b32 v0, s86")
        e("v_mov_b32 v1, s88")
        e("v_mov_b32 v2, 0")
        e("buffer_atomic_umax v0, v2, s[80:83], 0 offen offset:%d" % (8 * idx))
        e("buffer_atomic_umax v1, v2, s[80:83], 0 offen offset:%d" % (8 * idx + 4))
    e("s_endpgm")


def kernel_desc(name, vgpr, sgpr=102, accum=None):
    if accum is None:
        accum = (vgpr + 3) // 4 * 4
    return """.section .rodata,"a"
.p2align 6
.amdhsa_kernel %s
  .amdhsa_next_free_vgpr %d
  .amdhsa_next_free_sgpr %d
  .amdhsa_accum_offset %d
  .amdhsa_group_segment_fixed_size 0
  .amdhsa_kernarg_size 120
  .amdhsa_user_sgpr_count 2
  .amdhsa_user_sgpr_kernarg_segment_ptr 1
  .amdhsa_system_sgpr_workgroup_id_x 1
.end_amdhsa_kernel
""" % (name, vgpr, sgpr, accum)


K1_LN = 128
K1_KG = 448
K1_GRID = K1_LN + K1_KG
KG_WSZ = 32 * 288
K1_LDS = 4 * KG_WSZ


def reduce64_multi(e, S, T, n):
    for mod in ("quad_perm:[1,0,3,2]", "quad_perm:[2,3,0,1]", "row_half_mirror", "row_mirror"):
        for r in range(n):
            e("v_add_f32_dpp v%d, v%d, v%d %s row_mask:0xf bank_mask:0xf" % (S + r, S + r, S + r, mod))
    for sw in ("v_permlane16_swap_b32", "v_permlane32_swap_b32"):
        for r in range(n):
            e("v_mov_b32 v%d, v%d" % (T + r, S + r))
        for r in range(n):
            e("%s v%d, v%d" % (sw, S + r, T + r))
        for r in range(n):
            e("v_add_f32 v%d, v%d, v%d" % (S + r, S + r, T + r))


def pkb(r):
    return (vr(r & ~1, 2), r & 1)


def pk_mul_b(e, dst, src, r):
    p, h = pkb(r)
    e("v_pk_mul_f32 %s, %s, %s op_sel:[0,%d] op_sel_hi:[1,%d]" % (vr(dst, 2), vr(src, 2), p, h, h))


def gen_k1(e):
    name = "k1_kernel"
    kernel_header(e, name)
    e("s_cmp_ge_u32 s2, %d" % K1_GRID)
    e("s_cbranch_scc1 K1_EXIT")
    e("s_load_dwordx2 s[4:5], s[0:1], 112")
    e("v_lshrrev_b32 v1, 6, v0")
    e("v_and_b32 v2, 63, v0")
    e("s_nop 0")
    e("v_readfirstlane_b32 s3, v1")
    e("s_cmp_ge_u32 s2, %d" % K1_KG)
    e("s_cbranch_scc0 K1_KGB")

    e.label("K1_LNB")
    if "noln" in OPTS: e("s_branch K1_END")
    e("s_load_dwordx2 s[6:7], s[0:1], 0")
    e("s_setprio 3")
    e("s_sub_u32 s20, s2, %d" % K1_KG)
    e("s_lshl_b32 s21, s20, 4")
    e("s_lshl_b32 s23, s3, 2")
    e("s_add_u32 s21, s21, s23")
    e("s_mul_i32 s22, s21, 896")
    e("v_lshlrev_b32 v3, 4, v2")
    RX = 32
    for i in range(16):
        e("v_mov_b32 v%d, 0" % (RX + i))
    e("s_mov_b64 s[24:25], exec")
    e("v_cmp_gt_u32 vcc, 56, v2")
    e("s_mov_b64 s[26:27], vcc")
    e("s_waitcnt lgkmcnt(0)")
    stamp_init(e, 160)
    stamp(e, 160)
    srd(e, 8, 6, 7, 0, TSZ)
    srd(e, 12, 4, 5, WS_UX, UXSZ)
    e("s_mov_b64 exec, s[26:27]")
    for r in range(4):
        e("buffer_load_dwordx4 %s, v3, s[8:11], s22 offen offset:%d" % (vr(RX + 4 * r, 4), r * 896))
    e("s_mov_b64 exec, s[24:25]")
    XT = 16 * 912
    e("s_mul_i32 s23, s23, 912")
    e("v_add_u32 v4, s23, v3")
    e("s_mov_b32 s28, 0x%x" % f32bits(1.0 / 448.0))
    e("s_mov_b32 s29, 0x%x" % f32bits(1e-5))
    e("s_mov_b32 s30, 0xffff0000")
    e("s_mov_b32 s40, 0x3f803f80")
    e("s_mov_b32 s41, 0x00003f80")
    e("s_mov_b32 s42, 0x3f800000")
    e("v_and_b32 v5, 15, v2")
    e("v_lshrrev_b32 v6, 4, v2")
    e("v_lshrrev_b32 v7, 2, v5")
    e("v_and_b32 v16, 3, v5")
    e("v_and_b32 v17, 1, v6")
    e("v_lshlrev_b32 v18, 3, v17")
    e("v_add_u32 v19, v18, v7")
    e("v_sub_u32 v20, 15, v19")
    e("v_add_u32 v19, 16, v19")
    e("v_cmp_gt_u32 vcc, 2, v6")
    e("v_cndmask_b32 v19, v19, v20, vcc")
    e("v_mul_u32_u24 v10, 912, v19")
    e("v_lshl_add_u32 v10, v16, 3, v10")
    e("s_lshl_b32 s33, s3, 5")
    e("v_add_u32 v10, s33, v10")
    e("v_mov_b32 v19, %d" % (4 * 912))
    e("v_mov_b32 v20, %d" % (-4 * 912))
    e("v_cndmask_b32 v19, v19, v20, vcc")
    e("v_add_u32 v11, v10, v19")
    e("v_lshrrev_b32 v12, 1, v5")
    e("v_lshlrev_b32 v12, 14, v12")
    e("v_and_b32 v19, 1, v5")
    e("v_lshl_add_u32 v12, v19, 5, v12")
    e("v_lshrrev_b32 v19, 1, v6")
    e("v_lshl_add_u32 v12, v19, 6, v12")
    e("v_lshl_add_u32 v12, v17, 4, v12")
    e("s_sub_u32 s34, 127, s20")
    e("s_lshl_b32 s34, s34, 7")
    e("s_lshl_b32 s35, s3, 17")
    e("s_add_u32 s34, s34, s35")
    S, T, X = 16, 64, 96
    for r in range(8):
        e("v_mov_b32 v%d, 0" % (S + r))
    for r in range(4):
        e("s_waitcnt vmcnt(%d)" % (3 - r))
        R = RX + 4 * r
        for k in range(4):
            e("v_dot2_f32_bf16 v%d, v%d, s40, v%d" % (S + r, R + k, S + r))
            e("v_dot2_f32_bf16 v%d, v%d, v%d, v%d" % (S + 4 + r, R + k, R + k, S + 4 + r))
    stamp(e, 160)
    e("s_mov_b64 exec, s[26:27]")
    for r in range(4):
        e("ds_write_b128 v4, %s offset:%d" % (vr(RX + 4 * r, 4), XT + r * 912))
    e("s_mov_b64 exec, s[24:25]")
    reduce64_multi(e, S, T, 8)
    V = S + 4
    for r in range(8):
        e("v_mul_f32 v%d, s28, v%d" % (S + r, S + r))
    for r in range(4):
        e("v_fma_f32 v%d, -v%d, v%d, v%d" % (V + r, S + r, S + r, V + r))
    for r in range(4):
        e("v_max_f32 v%d, 0, v%d" % (V + r, V + r))
    for r in range(4):
        e("v_cvt_pk_bf16_f32 v%d, v%d, v%d" % (S + r, S + r, S + r))
        e("v_cvt_pk_bf16_f32 v%d, v%d, v%d" % (V + r, V + r, V + r))
    for r in range(4):
        e("v_lshlrev_b32 v%d, 16, v%d" % (S + r, S + r))
        e("v_lshlrev_b32 v%d, 16, v%d" % (V + r, V + r))
    for r in range(4):
        e("v_add_f32 v%d, s29, v%d" % (V + r, V + r))
        e("v_sub_f32 v%d, 0, v%d" % (S + r, S + r))
    for r in range(4):
        e("v_cvt_pk_bf16_f32 v%d, v%d, v%d" % (V + r, V + r, V + r))
    for r in range(4):
        e("v_lshlrev_b32 v%d, 16, v%d" % (V + r, V + r))
    for r in range(4):
        e("v_sqrt_f32 v%d, v%d" % (V + r, V + r))
    for r in range(4):
        e("v_cvt_pk_bf16_f32 v%d, v%d, v%d" % (V + r, V + r, V + r))
    for r in range(4):
        e("v_lshlrev_b32 v%d, 16, v%d" % (V + r, V + r))
    for r in range(4):
        e("v_rcp_f32 v%d, v%d" % (V + r, V + r))
    for r in range(4):
        R = RX + 4 * r
        xb = X + 8 * r
        for k in range(4):
            e("v_dot2_f32_bf16 v%d, v%d, s41, v%d" % (xb + 2 * k, R + k, S + r))
            e("v_dot2_f32_bf16 v%d, v%d, s42, v%d" % (xb + 2 * k + 1, R + k, S + r))
    for r in range(4):
        R = RX + 4 * r
        xb = X + 8 * r
        for k in range(4):
            e("v_cvt_pk_bf16_f32 v%d, v%d, v%d" % (R + k, xb + 2 * k, xb + 2 * k + 1))
        for k in range(4):
            e("v_lshlrev_b32 v%d, 16, v%d" % (xb + 2 * k, R + k))
            e("v_and_b32 v%d, s30, v%d" % (xb + 2 * k + 1, R + k))
        for k in range(4):
            pk_mul_b(e, xb + 2 * k, xb + 2 * k, V + r)
        for k in range(4):
            e("v_cvt_pk_bf16_f32 v%d, v%d, v%d" % (R + k, xb + 2 * k, xb + 2 * k + 1))
    e("s_mov_b64 exec, s[26:27]")
    for r in range(4):
        e("ds_write_b128 v4, %s offset:%d" % (vr(RX + 4 * r, 4), r * 912))
    e("s_mov_b64 exec, s[24:25]")
    stamp(e, 160)
    e("s_waitcnt lgkmcnt(0)")
    e("s_barrier")
    stamp(e, 160)
    for k in range(7):
        b = 64 + 4 * k
        e("ds_read_b64_tr_b16 %s, v10 offset:%d" % (vr(b, 2), k * 128))
        e("ds_read_b64_tr_b16 %s, v11 offset:%d" % (vr(b + 2, 2), k * 128))
    for k in range(7):
        b = 64 + 4 * k
        e("s_waitcnt lgkmcnt(%d)" % (2 * (6 - k)))
        e("buffer_store_dwordx4 %s, v12, s[12:15], s34 offen" % vr(b, 4))
        if k < 6:
            e("s_add_u32 s34, s34, 0x%x" % (32 * 16384))
    stamp(e, 160)
    if "stamp" in OPTS:
        e("s_waitcnt vmcnt(0)")
        stamp(e, 160)
    e("s_branch K1_END")

    e.label("K1_KGB")
    if "nokg" in OPTS: e("s_branch K1_END")
    e("s_load_dwordx8 s[8:15], s[0:1], 8")
    e("s_load_dwordx2 s[16:17], s[0:1], 40")
    e("s_mov_b32 s20, s2")
    e("s_lshl_b32 s21, s20, 9")
    e("v_lshlrev_b32 v3, 1, v0")
    e("s_lshl_b32 s22, s20, 1")
    e("v_mov_b32 v4, 0")
    e("s_waitcnt lgkmcnt(0)")
    stamp_init(e, 166)
    stamp(e, 166)
    srd(e, 24, 8, 9, 0, D * N * 2)
    srd(e, 40, 16, 17, 0, D * 2)
    e("buffer_load_ushort v8, v3, s[24:27], s21 offen")
    e("buffer_load_ushort v12, v4, s[40:43], s22 offen")
    srd(e, 28, 10, 11, 0, D * N * 2)
    e("buffer_load_ushort v9, v3, s[28:31], s21 offen")
    srd(e, 32, 12, 13, 0, D * N * 2)
    e("buffer_load_ushort v10, v3, s[32:35], s21 offen")
    srd(e, 36, 14, 15, 0, D * N * 2)
    e("buffer_load_ushort v11, v3, s[36:39], s21 offen")
    import numpy as np
    lhi = np.float32(1.4426950408889634)
    llo = np.float32(1.4426950408889634 - float(lhi))
    e("s_mov_b32 s44, 0x%x" % f32bits(float(lhi)))
    e("s_mov_b32 s45, 0x%x" % f32bits(float(llo)))
    e("s_mov_b32 s46, 0x%x" % f32bits(0.6931471805599453))
    e("s_mov_b32 s48, 0x%x" % f32bits(0.15915494309189535))
    e("s_mul_i32 s50, s3, %d" % KG_WSZ)
    e("s_mov_b32 m0, s50")
    e("v_and_b32 v5, 15, v2")
    e("v_lshrrev_b32 v6, 4, v2")
    e("v_mul_u32_u24 v7, 288, v5")
    e("v_lshl_add_u32 v7, v6, 4, v7")
    e("v_add_u32 v7, s50, v7")
    e("v_lshrrev_b32 v1, 1, v6")
    e("v_lshlrev_b32 v1, 9, v1")
    e("v_and_b32 v14, 1, v6")
    e("v_lshl_add_u32 v1, v14, 4, v1")
    e("v_lshl_add_u32 v1, v5, 5, v1")
    e("v_add_u32 v1, s50, v1")
    e("v_lshlrev_b32 v3, 8, v6")
    e("v_add_u32 v3, s50, v3")
    e("v_lshl_add_u32 v13, v5, 2, v3")
    e("v_lshl_add_u32 v14, v5, 4, v3")
    e("v_lshl_add_u32 v15, v5, 3, v3")
    e("v_cmp_gt_u32 vcc, 2, v6")
    e("v_cndmask_b32 v3, v15, v14, vcc")
    e("v_add_u32 v14, 8, v3")
    e("v_add_u32 v15, 128, v3")
    e("v_cndmask_b32 v4, v15, v14, vcc")
    Z = 16
    EB = 40
    G0 = 72
    G1 = 104
    AF = 136
    ACC = 16
    e("s_waitcnt vmcnt(0)")
    stamp(e, 166)
    for r in (8, 9, 10, 11, 12):
        e("v_lshlrev_b32 v%d, 16, v%d" % (r, r))

    def exp_acc(dst, x, t1, t2):
        e("v_mul_f32 v%d, s44, v%d" % (t1, x))
        e("v_fma_f32 v%d, v%d, s44, -v%d" % (t2, x, t1))
        e("v_fmac_f32 v%d, s45, v%d" % (t2, x))
        e("v_exp_f32 v%d, v%d" % (t1, t1))
        e("v_mul_f32 v%d, s46, v%d" % (t2, t2))
        e("v_fma_f32 v%d, v%d, v%d, v%d" % (dst, t1, t2, t1))
        rb1(e, dst, dst)

    exp_acc(12, 12, 14, 15)
    exp_acc(8, 8, 14, 15)
    e("v_mul_f32 v8, v8, v12")
    e("v_mul_f32 v9, v9, v12")
    e("v_mul_f32 v8, s44, v8")
    e("v_mul_f32 v9, s48, v9")
    e("v_mul_f32 v%d, 0x%x, v10" % (G0, f32bits(1024.0)))
    e("v_mul_f32 v%d, 0x%x, v11" % (G0 + 1, f32bits(-1024.0)))
    e("v_mul_f32 v12, 0x%x, v12" % f32bits(2.0 ** -24))
    e("s_mov_b32 s52, 0x%x" % f32bits(32768.0))
    e("s_mov_b32 s53, s52")
    RT = AF
    order = [3, 4, 5, 6, 0, 1, 2, 7, 8, 9, 10, 11]
    e("v_mov_b32 v%d, v8" % RT)
    e("v_mov_b32 v%d, v9" % (RT + 1))
    for k in range(1, 12):
        e("v_pk_add_f32 %s, %s, %s" % (vr(RT + 2 * k, 2), vr(RT + 2 * k - 2, 2), vr(RT + 2 * k - 2, 2)))
    for k0 in range(0, 12, 4):
        ks = order[k0:k0 + 4]
        for k in ks:
            e("v_exp_f32 v%d, -v%d" % (RT + 2 * k, RT + 2 * k))
            e("v_fract_f32 v%d, v%d" % (RT + 2 * k + 1, RT + 2 * k + 1))
        for k in ks:
            e("v_cos_f32 v%d, v%d" % (Z + 2 * k, RT + 2 * k + 1))
            e("v_sin_f32 v%d, v%d" % (Z + 2 * k + 1, RT + 2 * k + 1))
        e.nop(1)
        for k in ks:
            pk_mul_b(e, Z + 2 * k, Z + 2 * k, RT + 2 * k)
    stamp(e, 166)

    def zr(k):
        return Z + 2 * k

    cnt = [0]

    def cmul_l(dst, a, b, conj=False):
        T = (8, 10)[cnt[0] & 1]; cnt[0] += 1
        return ["v_pk_mul_f32 %s, %s, %s op_sel:[1,1] op_sel_hi:[1,0]" % (vr(T, 2), vr(a, 2), vr(b, 2)),
                "v_pk_fma_f32 %s, %s, %s, %s op_sel:[0,0,0] op_sel_hi:[0,1,1] %s" % (vr(dst, 2), vr(a, 2), vr(b, 2), vr(T, 2), "neg_hi:[0,0,1]" if conj else "neg_lo:[0,0,1]")]

    def cmul(dst, a, b, conj=False):
        for x in cmul_l(dst, a, b, conj): e(x)

    def split_list(items):
        o = []
        TS = [(14, 15), (5, 6)]
        for k in range(0, len(items), 2):
            grp = items[k:k + 2]
            for (src_, row), (h, l) in zip(grp, TS):
                o.append("v_cvt_pk_f16_f32 v%d, v%d, v%d" % (h, src_, src_ + 1))
            for (src_, row), (h, l) in zip(grp, TS):
                o.append("v_fma_mixlo_f16 v%d, v%d, -1.0, v%d op_sel:[0,0,0] op_sel_hi:[1,0,0]" % (l, h, src_))
            for (src_, row), (h, l) in zip(grp, TS):
                o.append("v_fma_mixhi_f16 v%d, v%d, -1.0, v%d op_sel:[1,0,0] op_sel_hi:[1,0,0]" % (l, h, src_ + 1))
            for (src_, row), (h, l) in zip(grp, TS):
                o.append("ds_write_addtid_b32 v%d offset:%d" % (h, row * 288))
            for (src_, row), (h, l) in zip(grp, TS):
                o.append("ds_write_addtid_b32 v%d offset:%d" % (l, (row + 16) * 288))
        return o

    def frag_reads(base):
        for s in range(4):
            e("ds_read_b128 %s, v7 offset:%d" % (vr(base + 8 * s, 4), 64 * s))
            e("ds_read_b128 %s, v7 offset:%d" % (vr(base + 8 * s + 4, 4), 64 * s + 16 * 288))

    def mfma_l(t):
        o = []
        a = vr(ACC + 4 * t, 4)
        for s in range(4):
            ah, al = vr(AF + 8 * s, 4), vr(AF + 8 * s + 4, 4)
            bh, bl = vr(EB + 8 * s, 4), vr(EB + 8 * s + 4, 4)
            o.append("v_mfma_f32_16x16x32_f16 %s, %s, %s, %s" % (a, ah, bh, "0" if s == 0 else a))
            o.append("v_mfma_f32_16x16x32_f16 %s, %s, %s, %s" % (a, ah, bl, a))
            o.append("v_mfma_f32_16x16x32_f16 %s, %s, %s, %s" % (a, al, bh, a))
        return o

    def interleave(mf, other):
        per = (len(other) + len(mf) - 1) // len(mf) if mf else 0
        other = list(other)
        for m in mf:
            e(m)
            for _ in range(per):
                if other: e(other.pop(0))
        for x in other: e(x)

    e("v_mov_b32 v%d, s52" % EB)
    e("v_mov_b32 v%d, 0" % (EB + 1))
    Er = {0: EB}
    for b in range(1, 16):
        k = b.bit_length() - 1
        hb = 1 << k
        Er[b] = EB + 2 * b
        if b == hb:
            e("v_pk_mul_f32 %s, %s, s[52:53]" % (vr(Er[b], 2), vr(zr(3 + k), 2)))
        else:
            cmul(Er[b], zr(3 + k), Er[b - hb])
    for x in split_list([(Er[b], b) for b in range(16)]): e(x)
    G = {0: G0}
    for c in range(1, 8):
        k = c.bit_length() - 1
        G[c] = G0 + 2 * c
        cmul(G[c], zr(k), G[c - (1 << k)], True)
    frag_reads(EB)
    for c in range(8):
        G[128 + c] = G0 + 16 + 2 * c
        cmul(G[128 + c], zr(7), G[c], True)
    for x in split_list([(G[128 * a + c], 8 * a + c) for a in range(2) for c in range(8)]): e(x)
    frag_reads(AF)
    stamp(e, 166)
    t1rows = []
    for a in range(2):
        for c in range(4):
            p = 256 + 128 * a + 2 * c
            G[p] = G1 + 2 * (4 * a + c)
            cmul(G[p], zr(8), G[128 * a + 2 * c], True)
            t1rows.append((G[p], 4 * a + c))
    for gp in range(2):
        for i in range(4):
            a = 2 * gp + (i >> 1); c = i & 1
            p = 512 + 128 * a + 4 * c
            G[p] = G1 + 16 + 2 * (4 * gp + i)
            cmul(G[p], zr(9), G[128 * a + 4 * c], True)
            t1rows.append((G[p], 8 + 4 * gp + i))
    e("s_waitcnt lgkmcnt(0)")
    interleave(mfma_l(0), split_list(t1rows))
    frag_reads(AF)
    stamp(e, 166)
    t2rows = []
    slots = [G0 + 2 * r for r in (1, 2, 3, 4, 5, 6, 7, 9, 10)]
    for a in range(8):
        p = 1024 + 128 * a
        G[p] = slots[a]
        cmul(G[p], zr(10), G[128 * a], True)
        t2rows.append((G[p], a))
    G[2048] = slots[8]
    cmul(G[2048], zr(11), G[0], True)
    t2rows.append((G[2048], 8))
    e("s_waitcnt lgkmcnt(0)")
    interleave(mfma_l(1), split_list(t2rows))
    frag_reads(AF)
    stamp(e, 166)
    srd(e, 24, 4, 5, WS_K, D * KQS)
    e("s_mul_i32 s21, s20, %d" % KQS)
    e("v_lshlrev_b32 v9, 2, v0")
    e("s_waitcnt lgkmcnt(0)")
    mf = mfma_l(2)
    for m in mf[:6]: e(m)
    e("ds_write_b128 v1, %s" % vr(ACC, 4))
    for m in mf[6:9]: e(m)
    e("ds_write_b64 v3, %s offset:1024" % vr(ACC + 4, 2))
    e("ds_write_b64 v4, %s offset:1024" % vr(ACC + 6, 2))
    for m in mf[9:]: e(m)
    e.nop(14)
    for i in range(4):
        e("ds_write_b32 v13, v%d offset:%d" % (ACC + 8 + i, 2048 + 64 * i))
    e("s_waitcnt lgkmcnt(0)")
    e("s_barrier")
    stamp(e, 166)
    for m in range(3):
        for w in range(4):
            e("ds_read_b32 v%d, v9 offset:%d" % (40 + 4 * m + w, w * KG_WSZ + 1024 * m))
    for m in range(3):
        e("s_waitcnt lgkmcnt(%d)" % (8 - 4 * m))
        b = 40 + 4 * m
        e("v_add_f32 v%d, v%d, v%d" % (b, b, b + 1))
        e("v_add_f32 v%d, v%d, v%d" % (b + 2, b + 2, b + 3))
        e("v_add_f32 v%d, v%d, v%d" % (b, b, b + 2))
        e("v_mul_f32 v%d, v%d, v12" % (b, b))
        e("buffer_store_dword v%d, v9, s[24:27], s21 offen offset:%d" % (b, 1024 * m))
    if "stamp" in OPTS:
        e("s_waitcnt vmcnt(0)")
        stamp(e, 166)
    e.label("K1_END")
    endpgm(e, 0)
    e.label("K1_EXIT")
    e("s_endpgm")
    WGT_IDX[0] += 1
    return kernel_desc(name, 168)


def gen_k5(e, specs):
    name = "k5_kernel"
    e.raw(".text")
    e.raw(".globl %s" % name)
    e.raw(".p2align 8")
    e.raw(".type %s,@function" % name)
    e.label(name)
    e("s_cmp_ge_u32 s2, 1")
    e("s_cbranch_scc1 K5_EXIT")
    e("s_memtime s[30:31]")
    e("s_memrealtime s[32:33]")
    e("s_load_dwordx2 s[4:5], s[0:1], 112")
    e("s_load_dwordx2 s[6:7], s[0:1], 104")
    e("s_waitcnt lgkmcnt(0)")
    srd(e, 8, 4, 5, 0x4000000, 0x400000)
    srd(e, 12, 6, 7, 0, 256)
    e("s_sub_u32 s16, s6, %d" % (512 * len(specs)))
    e("s_subb_u32 s17, s7, 0")
    e("s_and_b32 s17, s17, 0xffff")
    e("s_mov_b32 s18, 256")
    e("s_mov_b32 s19, 0x00020000")
    e("v_mov_b32 v10, -1")
    e("v_mov_b32 v11, 0")
    e("v_lshlrev_b32 v12, 3, v0")
    e("v_and_b32 v13, 7, v0")
    e("v_lshlrev_b32 v13, 3, v13")
    e("ds_write_b64 v13, v[10:11]")
    e("s_waitcnt lgkmcnt(0)")
    for i, (g, nw) in enumerate(specs):
        e("v_mov_b32 v10, -1")
        e("v_mov_b32 v11, 0")
        for c in range((g + 63) // 64):
            e("v_add_u32 v1, %d, v0" % (64 * c))
            e("v_min_u32 v1, %d, v1" % (g - 1))
            e("v_lshlrev_b32 v1, 7, v1")
            e("s_mov_b32 s20, 0x%x" % (i * 0x100000))
            for w in range(nw):
                e("buffer_load_dwordx2 v[%d:%d], v1, s[8:11], s20 offen offset:%d" % (20 + 2 * w, 21 + 2 * w, 8 * w))
            e("s_waitcnt vmcnt(0)")
            for w in range(nw):
                e("v_min_u32 v10, v10, v%d" % (20 + 2 * w))
                e("v_max_u32 v11, v11, v%d" % (21 + 2 * w))
        e("v_mov_b32 v2, %d" % (8 * i))
        e("ds_min_u32 v2, v10")
        e("ds_max_u32 v2, v11 offset:4")
    e("s_waitcnt lgkmcnt(0)")
    e("v_lshlrev_b32 v3, 2, v0")
    e("v_mov_b32 v4, 0")
    e("ds_read_b32 v5, v3")
    e("ds_read_b32 v6, v4")
    e("s_waitcnt lgkmcnt(0)")
    e("v_sub_u32 v5, v5, v6")
    e("v_cmp_gt_u32 vcc, 8, v0")
    e("s_and_saveexec_b64 s[22:23], vcc")
    e("buffer_store_dword v5, v3, s[12:15], 0 offen")
    e("buffer_store_dword v5, v3, s[16:19], 0 offen")
    e("s_memtime s[34:35]")
    e("s_memrealtime s[36:37]")
    e("s_waitcnt lgkmcnt(0)")
    e("s_sub_u32 s34, s34, s30")
    e("s_sub_u32 s36, s36, s32")
    e("v_mov_b32 v14, s34")
    e("v_mov_b32 v15, s36")
    e("v_mov_b32 v16, s32")
    e("ds_read_b32 v8, v4")
    e("s_waitcnt lgkmcnt(0)")
    e("v_sub_u32 v16, v16, v8")
    e("s_mov_b64 exec, 1")
    e("buffer_store_dwordx3 v[14:16], v4, s[16:19], 0 offen offset:32")
    e.label("K5_EXIT")
    e("s_endpgm")
    return kernel_desc(name, 64)


def main():
    out = []
    hdr = open("cdna_kernels/%s.s.ref" % NAME).read().split("\n")
    for ln in hdr:
        if ln.startswith("; @launch") or not ln.startswith(";"):
            break
        out.append(ln)
    launches = []
    e = E()
    descs = []
    import gen_rest
    descs.append(gen_k1(e))
    launches.append(("k1_kernel", K1_GRID, 256, K1_LDS))
    for (nm, fn, grid, blk, lds) in gen_rest.kernels():
        descs.append(fn(e))
        launches.append((nm, grid, blk, lds))
    if "k5" in OPTS:
        descs.append(gen_k5(e, [(g, b // 64) for (_, g, b, _) in launches]))
        launches.append(("k5_kernel", 1, 64, 1024))
    nl = int(sys.argv[1]) if len(sys.argv) > 1 else len(launches)
    for (nm, g, b, l) in launches[:nl]:
        out.append("; @launch kernel=%s grid=(%d,1,1) block=(%d,1,1) lds=%d" % (nm, g, b, l))
    out.append('.amdgcn_target "amdgcn-amd-amdhsa--gfx950"')
    txt = "\n".join(out) + "\n" + e.text() + "".join(descs)
    open(os.environ.get("GENOUT", "cdna_kernels/%s.s" % NAME), "w").write(txt)
    print("written", len(txt), "bytes")


if __name__ == "__main__":
    main()
```

```python
from gen import *

K2_CONV = 224
K2_GRID = 256
UC_STRIDE = 4160
UC_SZ = 8 * UC_STRIDE
CH_SZ = UC_SZ + KCH
K2_LDS = max(2 * CH_SZ + 20480, 8 * 64 * 192)


def gen_k2(e):
    name = "k2_kernel"
    kernel_header(e, name)
    e("s_cmp_ge_u32 s2, %d" % K2_GRID)
    e("s_cbranch_scc1 K2_EXIT")
    e("s_load_dwordx2 s[4:5], s[0:1], 112")
    e("s_load_dwordx2 s[6:7], s[0:1], 48")
    e("v_lshrrev_b32 v1, 6, v0")
    e("v_and_b32 v2, 63, v0")
    e("s_nop 0")
    e("v_readfirstlane_b32 s3, v1")
    e("s_cmp_ge_u32 s2, %d" % K2_CONV)
    e("s_cbranch_scc1 K2_PACK")
    e("s_waitcnt lgkmcnt(0)")
    stamp_init(e, 62)
    stamp(e, 62)
    srd(e, 8, 4, 5, WS_UT, TSZ)
    srd(e, 12, 4, 5, WS_K, D * KQS)
    srd(e, 16, 4, 5, WS_XT, TSZ)
    srd(e, 20, 4, 5, WS_HT, TSZ)
    srd(e, 24, 6, 7, 0, D * 2)
    e("s_lshl_b32 s28, s2, 1")
    e("s_mov_b32 s47, 0xffff0000")
    e("v_lshrrev_b32 v3, 8, v0")
    e("v_and_b32 v4, 255, v0")
    e("v_lshlrev_b32 v5, 12, v3")
    e("v_lshl_add_u32 v5, v4, 4, v5")
    e("s_lshl_b32 s29, s28, 12")
    e("buffer_load_dwordx4 v[8:11], v5, s[8:11], s29 offen")
    e("buffer_load_dwordx4 v[12:15], v5, s[8:11], s29 offen offset:16")
    KQ = 2 * CH_SZ
    e("s_mul_i32 s30, s28, %d" % KQS)
    e("v_lshlrev_b32 v6, 4, v0")
    e("v_cmp_gt_u32 vcc, 384, v0")
    e("s_and_saveexec_b64 s[34:35], vcc")
    e("s_cbranch_execz K2_P2A")
    e("buffer_load_dwordx4 v[32:35], v6, s[12:15], s30 offen")
    e.label("K2_P2A")
    e("s_mov_b64 exec, s[34:35]")
    e("s_mov_b32 s56, 0x7fff")
    e("v_lshlrev_b32 v36, 3, v4")
    for jj in range(8):
        e("v_add_u32 v%d, %d, v36" % (40 + jj, jj))
    for jj in range(8):
        e("v_cvt_f32_u32 v%d, v%d" % (48 + jj, 40 + jj))
    for jj in range(8):
        e("v_bfe_u32 v%d, v%d, 16, 1" % (64 + jj, 48 + jj))
    for jj in range(8):
        e("v_add3_u32 v%d, v%d, v%d, s56" % (48 + jj, 48 + jj, 64 + jj))
    for jj in range(8):
        e("v_lshrrev_b32 v%d, 16, v%d" % (48 + jj, 48 + jj))
    for jj in range(8):
        e("v_subrev_u32 v%d, 0x%x, v%d" % (48 + jj, 0x4380 - 256, 48 + jj))
    e("v_cmp_gt_u32 vcc, 32, v4")
    e("s_and_saveexec_b64 s[34:35], vcc")
    for jj in range(8):
        e("v_mov_b32 v%d, v%d" % (48 + jj, 40 + jj))
    e("s_mov_b64 exec, s[34:35]")
    e("v_mul_u32_u24 v36, %d, v3" % KQS)
    e("v_add_u32 v36, %d, v36" % KQ)
    for jj in range(8):
        e("v_lshl_add_u32 v%d, v%d, 2, v36" % (48 + jj, 48 + jj))
    e("s_mov_b32 s36, %d" % CH_SZ)
    e("v_mul_lo_u32 v7, v3, s36")
    e("v_lshl_add_u32 v7, v4, 4, v7")
    e("v_add_u32 v37, %d, v6" % KQ)
    e("s_waitcnt vmcnt(0)")
    e("v_cmp_gt_u32 vcc, 384, v0")
    e("s_and_saveexec_b64 s[34:35], vcc")
    e("ds_write_b128 v37, v[32:35]")
    e("s_mov_b64 exec, s[34:35]")
    e("v_cmp_eq_u32 vcc, 255, v4")
    e.nop(1)
    for i in range(4):
        e("v_cndmask_b32 v%d, v%d, 0, vcc" % (12 + i, 12 + i))
    W = 8
    e("ds_write_b128 v7, v[8:11] offset:0")
    for phi in range(1, 8):
        q = phi >> 1
        if phi & 1:
            for i in range(4):
                e("v_alignbit_b32 v%d, v%d, v%d, 16" % (16 + 4 * (phi & 3) + i, W + q + i + 1, W + q + i))
            e("ds_write_b128 v7, %s offset:%d" % (vr(16 + 4 * (phi & 3), 4), phi * UC_STRIDE))
        elif q % 2 == 0:
            e("ds_write_b128 v7, %s offset:%d" % (vr(W + q, 4), phi * UC_STRIDE))
        else:
            for i in range(4):
                e("v_mov_b32 v%d, v%d" % (16 + 4 * (phi & 3) + i, W + q + i))
            e("ds_write_b128 v7, %s offset:%d" % (vr(16 + 4 * (phi & 3), 4), phi * UC_STRIDE))
    for i in range(4):
        e("v_mov_b32 v%d, 0" % (56 + i))
    e("v_lshrrev_b32 v60, 2, v4")
    e("v_mul_u32_u24 v60, %d, v60" % UC_STRIDE)
    e("v_and_b32 v61, 3, v4")
    e("v_lshl_add_u32 v60, v61, 4, v60")
    e("v_mul_lo_u32 v61, v3, s36")
    e("v_add_u32 v60, v60, v61")
    e("v_cmp_gt_u32 vcc, 32, v4")
    e("s_and_saveexec_b64 s[34:35], vcc")
    e("ds_write_b128 v60, v[56:59] offset:4096")
    e("s_mov_b64 exec, s[34:35]")
    e("v_lshlrev_b32 v60, 4, v4")
    e("v_add_u32 v60, v60, v61")
    e("v_cmp_gt_u32 vcc, 96, v4")
    e("s_and_saveexec_b64 s[34:35], vcc")
    e("ds_write_b128 v60, v[56:59] offset:%d" % UC_SZ)
    e("ds_write_b128 v60, v[56:59] offset:%d" % (UC_SZ + KCH // 2))
    e("s_mov_b64 exec, s[34:35]")
    stamp(e, 62)
    e("s_waitcnt lgkmcnt(0)")
    e("s_barrier")
    for jj in range(8):
        e("ds_read_b32 v%d, v%d" % (40 + jj, 48 + jj))
    e("v_lshrrev_b32 v60, 2, v4")
    e("v_mul_u32_u24 v60, 96, v60")
    e("v_and_b32 v36, 3, v4")
    e("v_lshl_add_u32 v60, v36, 4, v60")
    e("v_add_u32 v60, v60, v61")
    e("s_mov_b32 s57, 0x0000bf80")
    e("s_mov_b32 s58, 0xbf800000")
    e("s_waitcnt lgkmcnt(0)")
    for p in range(4):
        e("v_cvt_pk_bf16_f32 v%d, v%d, v%d" % (32 + p, 40 + 2 * p, 41 + 2 * p))
    for p in range(4):
        e("v_dot2_f32_bf16 v%d, v%d, s57, v%d" % (48 + 2 * p, 32 + p, 40 + 2 * p))
        e("v_dot2_f32_bf16 v%d, v%d, s58, v%d" % (49 + 2 * p, 32 + p, 41 + 2 * p))
    e("ds_write_b128 v60, v[32:35] offset:%d" % (UC_SZ + 16 * 96))
    e.nop(2)
    for p in range(4):
        e("v_cvt_pk_bf16_f32 v%d, v%d, v%d" % (36 + p, 48 + 2 * p, 49 + 2 * p))
    e("ds_write_b128 v60, v[36:39] offset:%d" % (UC_SZ + 16 * 96 + KCH // 2))
    e("s_lshr_b32 s37, s3, 2")
    e("s_and_b32 s48, s3, 3")
    e("s_sub_u32 s38, 3, s48")
    e("s_mul_i32 s52, s48, 20")
    e("s_mov_b32 s43, 5")
    e("s_mov_b32 s51, 3")
    e("s_cmp_eq_u32 s48, 2")
    e("s_cselect_b32 s43, 2, s43")
    e("s_cmp_eq_u32 s48, 3")
    e("s_cselect_b32 s43, 4, s43")
    e("s_cselect_b32 s51, 1, s51")
    e("s_cselect_b32 s52, 0, s52")
    e("s_mul_i32 s40, s37, %d" % CH_SZ)
    e("v_and_b32 v3, 15, v2")
    e("v_lshrrev_b32 v4, 4, v2")
    e("v_and_b32 v5, 7, v3")
    e("v_sub_u32 v5, 7, v5")
    e("v_mul_u32_u24 v5, %d, v5" % UC_STRIDE)
    e("v_lshrrev_b32 v6, 3, v3")
    e("v_sub_u32 v6, v4, v6")
    e("v_lshl_add_u32 v5, v6, 4, v5")
    e("s_add_u32 s41, s40, %d" % (255 * 16 - 32 - 7 * 64))
    e("v_add_u32 v60, s41, v5")
    e("v_mul_u32_u24 v6, 96, v3")
    e("v_lshl_add_u32 v6, v4, 4, v6")
    e("s_add_u32 s42, s40, %d" % (UC_SZ + 16 * 96 - 7 * 96 - 16 * 96))
    e("v_add_u32 v61, s42, v6")
    e("s_lshl_b32 s55, s52, 6")
    e("v_subrev_u32 v5, s55, v60")
    e("s_mul_i32 s55, s51, %d" % (16 * 96))
    e("s_mul_i32 s56, s52, 96")
    e("s_sub_u32 s55, s55, s56")
    e("v_add_u32 v6, s55, v61")
    e("s_mul_i32 s55, s37, 10240")
    e("s_add_u32 s55, s55, %d" % (2 * CH_SZ))
    e("v_lshlrev_b32 v178, 4, v2")
    e("v_add_u32 v178, s55, v178")
    e("s_add_u32 s44, s28, s37")
    e("s_lshl_b32 s45, s44, 1")
    e("v_mov_b32 v176, 0")
    e("buffer_load_ushort v176, v176, s[24:27], s45 offen")
    e("v_lshlrev_b32 v8, 5, v3")
    e("v_lshl_add_u32 v8, v4, 2, v8")
    e("s_lshl_b32 s46, s38, 9")
    e("v_add_u32 v8, s46, v8")
    e("v_lshlrev_b32 v177, 1, v8")
    e("s_lshl_b32 s45, s44, 12")
    e("buffer_load_dwordx2 v[10:11], v177, s[16:19], s45 offen")
    e("buffer_load_dwordx2 v[12:13], v177, s[16:19], s45 offen offset:32")
    ACC = 16
    ACQ = 160
    for i in range(8):
        e("v_mov_b32 v%d, 0" % (ACC + i))
        e("v_mov_b32 v%d, 0" % (ACQ + i))
    e("s_waitcnt lgkmcnt(0)")
    e("s_barrier")
    stamp(e, 62)

    FR = [64, 88, 112, 136]

    def issue(i, joint):
        if "k2nord" in OPTS: return
        b = FR[i & 3]
        e("ds_read_b128 %s, v5 offset:%d" % (vr(b, 4), 448 - 64 * i + 32))
        e("ds_read_b128 %s, v6 offset:%d" % (vr(b + 8, 4), 1536 + 672 - 96 * i))
        e("ds_read_b128 %s, v5 offset:%d" % (vr(b + 4, 4), 448 - 64 * i))
        e("ds_read_b128 %s, v6 offset:%d" % (vr(b + 12, 4), 1536 + 672 - 96 * i + KCH // 2))
        if joint:
            e("ds_read_b128 %s, v6 offset:%d" % (vr(b + 16, 4), 672 - 96 * i))
            e("ds_read_b128 %s, v6 offset:%d" % (vr(b + 20, 4), 672 - 96 * i + KCH // 2))

    def mm(i, joint):
        if "k2nomm" in OPTS: return
        b = FR[i & 3]
        a0, a1 = vr(ACC, 4), vr(ACC + 4, 4)
        q0, q1 = vr(ACQ, 4), vr(ACQ + 4, 4)
        e("v_mfma_f32_16x16x32_bf16 %s, %s, %s, %s" % (a0, vr(b, 4), vr(b + 8, 4), a0))
        e("v_mfma_f32_16x16x32_bf16 %s, %s, %s, %s" % (a1, vr(b + 4, 4), vr(b + 8, 4), a1))
        if joint:
            e("v_mfma_f32_16x16x32_bf16 %s, %s, %s, %s" % (q0, vr(b, 4), vr(b + 16, 4), q0))
            e("v_mfma_f32_16x16x32_bf16 %s, %s, %s, %s" % (q1, vr(b + 4, 4), vr(b + 16, 4), q1))
        e("v_mfma_f32_16x16x32_bf16 %s, %s, %s, %s" % (a0, vr(b, 4), vr(b + 12, 4), a0))
        e("v_mfma_f32_16x16x32_bf16 %s, %s, %s, %s" % (a1, vr(b + 4, 4), vr(b + 12, 4), a1))
        if joint:
            e("v_mfma_f32_16x16x32_bf16 %s, %s, %s, %s" % (q0, vr(b, 4), vr(b + 20, 4), q0))
            e("v_mfma_f32_16x16x32_bf16 %s, %s, %s, %s" % (q1, vr(b + 4, 4), vr(b + 20, 4), q1))

    def seg_loop(tag, joint):
        n = 6 if joint else 4
        issue(0, joint); issue(1, joint)
        e("s_sub_u32 s43, s43, 1")
        e.label("K2_LOOP%s" % tag)
        for i in range(4):
            issue(i + 2, joint)
            e("s_waitcnt lgkmcnt(%d)" % (2 * n))
            mm(i, joint)
        e("v_subrev_u32 v5, 256, v5")
        e("v_subrev_u32 v6, 384, v6")
        e("s_sub_u32 s43, s43, 1")
        e("s_cmp_lg_u32 s43, 0")
        e("s_cbranch_scc1 K2_LOOP%s" % tag)
        for i in range(4):
            if i < 2:
                issue(i + 2, joint)
            e("s_waitcnt lgkmcnt(%d)" % (n * min(2, 3 - i)))
            mm(i, joint)
        e("v_subrev_u32 v5, 256, v5")
        e("v_subrev_u32 v6, 384, v6")

    def wr(acc, slot):
        e("ds_write_b128 v178, %s offset:%d" % (vr(acc, 4), slot * 2048))
        e("ds_write_b128 v178, %s offset:%d" % (vr(acc + 4, 4), slot * 2048 + 1024))

    def rd_add(slots):
        for k, sl in enumerate(slots):
            e("ds_read_b128 %s, v178 offset:%d" % (vr(64 + 8 * k, 4), sl * 2048))
            e("ds_read_b128 %s, v178 offset:%d" % (vr(68 + 8 * k, 4), sl * 2048 + 1024))
        e("s_waitcnt lgkmcnt(0)")
        for k in range(len(slots)):
            for i in range(8):
                e("v_add_f32 v%d, v%d, v%d" % (ACC + i, ACC + i, 64 + 8 * k + i))

    seg_loop("J", True)
    e("s_cmp_ge_u32 s48, 2")
    e("s_cbranch_scc1 K2_CD")
    e.nop(8)
    e("s_cmp_eq_u32 s48, 1")
    e("s_cbranch_scc1 K2_B")
    wr(ACQ, 0)
    e("s_waitcnt lgkmcnt(0)")
    e("s_barrier")
    rd_add([1, 2])
    e("s_branch K2_EPI")
    e.label("K2_B")
    wr(ACC, 1)
    for i in range(8):
        e("v_mov_b32 v%d, v%d" % (ACC + i, ACQ + i))
    e("s_waitcnt lgkmcnt(0)")
    e("s_barrier")
    rd_add([0, 3])
    e("s_branch K2_EPI")
    e.label("K2_CD")
    e("s_mov_b32 s43, 4")
    e("s_cmp_eq_u32 s48, 2")
    e("s_cbranch_scc1 K2_C1")
    e("s_mov_b32 s43, 2")
    e("v_subrev_u32 v5, 512, v5")
    e("v_subrev_u32 v6, 768, v6")
    e.label("K2_C1")
    seg_loop("S1", False)
    e.nop(8)
    e("s_cmp_eq_u32 s48, 2")
    e("s_cbranch_scc1 K2_C2")
    wr(ACC, 4)
    for i in range(8):
        e("v_mov_b32 v%d, v%d" % (ACC + i, ACQ + i))
    e("s_waitcnt lgkmcnt(0)")
    e("s_barrier")
    e("s_branch K2_EPI")
    e.label("K2_C2")
    wr(ACC, 2)
    wr(ACQ, 3)
    for i in range(8):
        e("v_mov_b32 v%d, 0" % (ACC + i))
    e("v_subrev_u32 v5, %d, v60" % (16 * 64))
    e("v_add_u32 v6, %d, v61" % (16 * 96 - 16 * 96))
    e("s_mov_b32 s43, 2")
    seg_loop("S2", False)
    e("s_barrier")
    rd_add([4])
    e.label("K2_EPI")
    stamp(e, 62)
    e("v_mov_b32 v9, v177")
    e("v_sub_u32 v14, %d, v9" % (2 * 2028))
    e("v_add_u32 v14, s40, v14")
    e("ds_read_b64 v[24:25], v14 offset:32")
    e("ds_read_b64 v[26:27], v14")
    e("s_waitcnt vmcnt(0) lgkmcnt(0)")
    e("v_lshlrev_b32 v7, 16, v176")
    for T in range(2):
        A = ACC + 4 * T
        U = 24 + 2 * T
        Xr = 10 + 2 * T
        e("v_and_b32 v32, s47, v%d" % (U + 1))
        e("v_lshlrev_b32 v33, 16, v%d" % (U + 1))
        e("v_and_b32 v34, s47, v%d" % U)
        e("v_lshlrev_b32 v35, 16, v%d" % U)
        for i in range(4):
            e("v_mul_f32 v%d, v%d, v7" % (32 + i, 32 + i))
        e("v_cvt_pk_bf16_f32 v36, v32, v33")
        e("v_cvt_pk_bf16_f32 v37, v34, v35")
        e("v_cvt_pk_bf16_f32 v38, v%d, v%d" % (A, A + 1))
        e("v_cvt_pk_bf16_f32 v39, v%d, v%d" % (A + 2, A + 3))
        e("v_lshlrev_b32 v32, 16, v36")
        e("v_and_b32 v33, s47, v36")
        e("v_lshlrev_b32 v34, 16, v37")
        e("v_and_b32 v35, s47, v37")
        e("v_lshlrev_b32 v40, 16, v38")
        e("v_and_b32 v41, s47, v38")
        e("v_lshlrev_b32 v42, 16, v39")
        e("v_and_b32 v43, s47, v39")
        for i in range(4):
            e("v_add_f32 v%d, v%d, v%d" % (32 + i, 32 + i, 40 + i))
        e("v_cvt_pk_bf16_f32 v36, v32, v33")
        e("v_cvt_pk_bf16_f32 v37, v34, v35")
        e("v_lshlrev_b32 v32, 16, v36")
        e("v_and_b32 v33, s47, v36")
        e("v_lshlrev_b32 v34, 16, v37")
        e("v_and_b32 v35, s47, v37")
        e("v_lshlrev_b32 v40, 16, v%d" % Xr)
        e("v_and_b32 v41, s47, v%d" % Xr)
        e("v_lshlrev_b32 v42, 16, v%d" % (Xr + 1))
        e("v_and_b32 v43, s47, v%d" % (Xr + 1))
        for i in range(4):
            e("v_add_f32 v%d, v%d, v%d" % (32 + i, 32 + i, 40 + i))
        e("v_cvt_pk_bf16_f32 v%d, v32, v33" % (44 + 2 * T))
        e("v_cvt_pk_bf16_f32 v%d, v34, v35" % (45 + 2 * T))
        e("buffer_store_dwordx2 %s, v9, s[20:23], s45 offen offset:%d" % (vr(44 + 2 * T, 2), 32 * T))
    if "stamp" in OPTS:
        e("s_waitcnt vmcnt(0)")
        stamp(e, 62)
    endpgm(e, 1)
    e.label("K2_PACK")
    if "nopk" in OPTS: e("s_branch K2_END")
    e("s_load_dwordx2 s[8:9], s[0:1], 64")
    e("s_load_dwordx2 s[10:11], s[0:1], 80")
    e("s_sub_u32 s20, s2, %d" % K2_CONV)
    e("s_lshl_b32 s20, s20, 3")
    e("s_add_u32 s20, s20, s3")
    e("s_waitcnt lgkmcnt(0)")
    srd(e, 12, 4, 5, WS_WP, 2 * W1P_SZ)
    srd(e, 24, 8, 9, 0, D * F * 2)
    srd(e, 28, 10, 11, 0, D * F * 2)
    PRS = 192
    e("v_lshrrev_b32 v3, 3, v2")
    e("v_and_b32 v4, 7, v2")
    e("v_lshlrev_b32 v5, 4, v4")
    e("s_mov_b32 s21, 3584")
    e("v_mul_lo_u32 v6, v3, s21")
    e("v_add_u32 v6, v6, v5")
    e("v_mul_u32_u24 v7, 896, v3")
    e("v_add_u32 v7, v7, v5")
    e("s_mul_i32 s22, s3, %d" % (64 * PRS))
    e("v_mul_u32_u24 v8, %d, v3" % PRS)
    e("v_add_u32 v8, v8, v5")
    e("v_add_u32 v8, s22, v8")
    e("v_and_b32 v9, 15, v2")
    e("v_lshrrev_b32 v10, 2, v9")
    e("v_lshrrev_b32 v11, 5, v2")
    e("v_lshl_add_u32 v10, v11, 3, v10")
    e("v_mul_u32_u24 v10, %d, v10" % PRS)
    e("v_and_b32 v11, 3, v9")
    e("v_lshl_add_u32 v10, v11, 3, v10")
    e("v_bfe_u32 v11, v2, 4, 1")
    e("v_lshl_add_u32 v10, v11, 5, v10")
    e("v_add_u32 v10, s22, v10")
    e("v_lshrrev_b32 v11, 5, v2")
    e("v_mul_u32_u24 v11, %d, v11" % (4 * PRS))
    e("v_sub_u32 v12, v10, v11")
    e("v_lshlrev_b32 v11, 4, v2")
    e("s_cmp_ge_u32 s20, 196")
    e("s_cbranch_scc1 K2_PKA2")
    e("s_mul_hi_u32 s32, s20, 0x%x" % ((2**32 + 27) // 28))
    e("s_mul_i32 s33, s32, 28")
    e("s_sub_u32 s33, s20, s33")
    e("s_mul_i32 s34, s32, %d" % (64 * 3584))
    e("s_lshl_b32 s35, s33, 7")
    e("s_add_u32 s34, s34, s35")
    for i in range(8):
        e("buffer_load_dwordx4 %s, v6, s[24:27], s34 offen" % vr(16 + 4 * i, 4))
        e("s_add_u32 s34, s34, %d" % (8 * 3584))
    e("s_mul_i32 s36, s33, %d" % (2 * 28 * 1024))
    e("s_lshl_b32 s37, s32, 12")
    e("s_add_u32 s36, s36, s37")
    e("s_mov_b32 s38, %d" % (28 * 1024))
    e("v_mov_b32 v13, v10")
    e("s_mov_b32 s39, %d" % (4 * PRS))
    e("s_branch K2_PKA3")
    e.label("K2_PKA2")
    e("s_sub_u32 s41, s20, 196")
    e("s_mul_hi_u32 s32, s41, 0x%x" % ((2**32 + 6) // 7))
    e("s_mul_i32 s33, s32, 7")
    e("s_sub_u32 s33, s41, s33")
    e("v_mov_b32 v13, v12")
    e("s_mov_b32 s39, %d" % (8 * PRS))
    e("s_mul_i32 s34, s32, %d" % (64 * 896))
    e("s_lshl_b32 s35, s33, 7")
    e("s_add_u32 s34, s34, s35")
    for i in range(8):
        e("buffer_load_dwordx4 %s, v7, s[28:31], s34 offen" % vr(16 + 4 * i, 4))
        e("s_add_u32 s34, s34, %d" % (8 * 896))
    e("s_mul_i32 s36, s33, %d" % (2 * 112 * 1024))
    e("s_lshl_b32 s37, s32, 12")
    e("s_add_u32 s36, s36, s37")
    e("s_add_u32 s36, s36, %d" % W1P_SZ)
    e("s_mov_b32 s38, %d" % (112 * 1024))
    e.label("K2_PKA3")
    e("s_cmp_ge_u32 s20, 136")
    e("s_cbranch_scc1 K2_PKB0")
    e("s_add_u32 s41, s20, 60")
    e("s_mul_hi_u32 s32, s41, 0x%x" % ((2**32 + 6) // 7))
    e("s_mul_i32 s33, s32, 7")
    e("s_sub_u32 s33, s41, s33")
    e("s_mul_i32 s34, s32, %d" % (64 * 896))
    e("s_lshl_b32 s35, s33, 7")
    e("s_add_u32 s34, s34, s35")
    for i in range(8):
        e("buffer_load_dwordx4 %s, v7, s[28:31], s34 offen" % vr(48 + 4 * i, 4))
        e("s_add_u32 s34, s34, %d" % (8 * 896))
    e("s_mul_i32 s40, s33, %d" % (2 * 112 * 1024))
    e("s_lshl_b32 s37, s32, 12")
    e("s_add_u32 s40, s40, s37")
    e("s_add_u32 s40, s40, %d" % W1P_SZ)
    e("s_waitcnt vmcnt(8)")
    e("s_branch K2_PKB1")
    e.label("K2_PKB0")
    e("s_waitcnt vmcnt(0)")
    e.label("K2_PKB1")

    def pack_unit(src, sdst, scs, va, vb):
        for i in range(8):
            e("ds_write_b128 v8, %s offset:%d" % (vr(src + 4 * i, 4), i * 8 * PRS))
        for c in range(2):
            for j in range(4):
                b = 80 + 4 * (4 * c + j)
                o = j * 16 * PRS + 64 * c
                e("ds_read_b64_tr_b16 %s, v%d offset:%d" % (vr(b, 2), va, o))
                e("ds_read_b64_tr_b16 %s, v%d offset:%d" % (vr(b + 2, 2), vb, o))
        for c in range(2):
            for j in range(4):
                b = 80 + 4 * (4 * c + j)
                e("s_waitcnt lgkmcnt(%d)" % (14 - 2 * (4 * c + j)))
                e("buffer_store_dwordx4 %s, v11, s[12:15], s%d offen offset:%d" % (vr(b, 4), sdst, j * 1024))
            if c == 0:
                e("s_add_u32 s%d, s%d, %s" % (sdst, sdst, scs))

    e("v_add_u32 v14, s39, v13")
    e("v_add_u32 v15, %d, v12" % (8 * PRS))
    pack_unit(16, 36, "s38", 13, 14)
    e("s_cmp_ge_u32 s20, 136")
    e("s_cbranch_scc1 K2_END")
    e("s_waitcnt vmcnt(8)")
    e("s_waitcnt vmcnt(0)")
    pack_unit(48, 40, "%d" % (112 * 1024), 12, 15)
    e.label("K2_END")
    endpgm(e, 1)
    e.label("K2_EXIT")
    e("s_endpgm")
    WGT_IDX[0] += 1
    return kernel_desc(name, 184)


K3_GRID = 224
A_RS = 192
AT = 2048
K3_LDS = AT + 448 * A_RS


def gen_k3(e):
    name = "k3_kernel"
    kernel_header(e, name)
    e("s_cmp_ge_u32 s2, %d" % K3_GRID)
    e("s_cbranch_scc1 K3_EXIT")
    e("s_load_dwordx2 s[4:5], s[0:1], 112")
    e("s_load_dwordx2 s[6:7], s[0:1], 72")
    e("v_lshrrev_b32 v1, 6, v0")
    e("v_and_b32 v2, 63, v0")
    e("s_nop 0")
    e("v_readfirstlane_b32 s3, v1")
    e("s_waitcnt lgkmcnt(0)")
    stamp_init(e, 0)
    stamp(e, 0)
    srd(e, 8, 4, 5, WS_HT, TSZ)
    srd(e, 12, 4, 5, WS_WP, W1P_SZ)
    srd(e, 16, 4, 5, WS_H1, 64 * 112 * 1024)
    srd(e, 20, 6, 7, 0, F * 2)
    e("s_and_b32 s24, s2, 31")
    e("s_lshr_b32 s25, s2, 5")
    e("s_lshl_b32 s26, s25, 3")
    e("s_add_u32 s26, s26, s3")
    e("s_mov_b32 s47, 0xffff0000")
    e("v_lshrrev_b32 v3, 3, v2")
    e("v_and_b32 v4, 7, v2")
    e("v_lshlrev_b32 v5, 12, v3")
    e("v_lshl_add_u32 v5, v4, 4, v5")
    e("s_lshl_b32 s27, s3, 15")
    e("s_lshl_b32 s28, s24, 7")
    e("s_add_u32 s27, s27, s28")
    HR = 8
    for i in range(7):
        e("buffer_load_dwordx4 %s, v5, s[8:11], s27 offen" % vr(HR + 4 * i, 4))
        e("s_add_u32 s27, s27, 0x%x" % (64 * 4096))
    WF = 144
    e("v_lshlrev_b32 v6, 4, v2")
    e("s_mul_i32 s29, s26, %d" % (28 * 1024))
    e("v_lshrrev_b32 v7, 5, v2")
    e("v_lshlrev_b32 v7, 3, v7")
    e("s_lshl_b32 s30, s26, 6")
    pl = []
    for s in range(28):
        it = []
        if s % 4 == 0 and s > 0:
            it.append("s_add_u32 s29, s29, 4096")
        it.append("buffer_load_dwordx4 %s, v6, s[12:15], s29 offen offset:%d" % (vr(WF + 4 * s, 4), (s % 4) * 1024))
        pl.append(it)
    for q in range(4):
        pl.append(["buffer_load_dwordx2 %s, v7, s[20:23], s30 offen offset:%d" % (vr(136 + 2 * q, 2), 16 * q)])

    def pend(n):
        for _ in range(n):
            if pl:
                for x in pl.pop(0):
                    e(x)

    def issued():
        return 32 - len(pl)
    K3PRE = int(os.environ.get("K3PRE", "8"))
    pend(K3PRE)
    e("v_mul_u32_u24 v57, %d, v3" % A_RS)
    e("v_lshl_add_u32 v57, v4, 4, v57")
    e("s_mul_i32 s38, s3, %d" % (8 * A_RS))
    e("s_add_u32 s38, s38, %d" % AT)
    e("v_add_u32 v57, s38, v57")
    e("v_add_u32 v62, %d, v57" % (4 * 64 * A_RS))
    e("v_and_b32 v58, 15, v2")
    e("v_lshrrev_b32 v59, 2, v58")
    e("v_lshrrev_b32 v60, 5, v2")
    e("v_lshl_add_u32 v59, v60, 3, v59")
    e("v_mul_u32_u24 v59, %d, v59" % A_RS)
    e("v_and_b32 v60, 3, v58")
    e("v_lshl_add_u32 v59, v60, 3, v59")
    e("v_bfe_u32 v60, v2, 4, 1")
    e("v_lshl_add_u32 v59, v60, 5, v59")
    e("s_and_b32 s31, s3, 1")
    e("s_lshr_b32 s32, s3, 1")
    e("s_lshl_b32 s33, s31, 6")
    e("s_mul_i32 s34, s32, %d" % (16 * A_RS))
    e("s_add_u32 s33, s33, s34")
    e("s_add_u32 s33, s33, %d" % AT)
    e("v_add_u32 v59, s33, v59")
    e("v_add_u32 v61, %d, v59" % (4 * 4 * 16 * A_RS))
    e("s_mul_i32 s35, s31, %d" % (28 * 1024))
    e("s_lshl_b32 s36, s32, 10")
    e("s_add_u32 s35, s35, s36")
    e("s_add_u32 s35, s35, %d" % AT)
    e("v_add_u32 v63, s35, v6")
    e("v_and_b32 v56, 31, v2")
    e("v_lshlrev_b32 v56, 3, v56")
    e("s_lshl_b32 s36, s31, 10")
    e("v_add_u32 v56, s36, v56")
    e("s_lshl_b32 s37, s32, 8")
    e("v_add_u32 v55, s37, v56")
    e("s_mov_b32 s40, 0x3f803f80")
    e("s_mov_b32 s41, 0x00003f80")
    e("s_mov_b32 s42, 0x3f800000")
    e("s_waitcnt vmcnt(%d)" % K3PRE)
    stamp(e, 0)
    for i in range(7):
        e("ds_write_b128 v%d, %s offset:%d" % (57 if i < 4 else 62, vr(HR + 4 * i, 4), (i & 3) * 64 * A_RS))
    pend(12 - K3PRE)
    for i in range(4):
        e("v_mov_b32 v%d, 0" % (40 + i))
    e("s_waitcnt lgkmcnt(0)")
    e("s_barrier")
    stamp(e, 0)
    RF = 8
    for j in range(7):
        o = (j & 3) * 4 * 16 * A_RS
        va = 59 if j < 4 else 61
        e("ds_read_b64_tr_b16 %s, v%d offset:%d" % (vr(RF + 4 * j, 2), va, o))
        e("ds_read_b64_tr_b16 %s, v%d offset:%d" % (vr(RF + 4 * j + 2, 2), va, o + 4 * A_RS))
    for j in range(7):
        e("s_waitcnt lgkmcnt(%d)" % (12 - 2 * j))
        pend(1)
        for k in range(4):
            R = RF + 4 * j + k
            if "nodots" in OPTS:
                e("v_lshlrev_b32 v44, 16, v%d" % R)
                e("v_and_b32 v45, s47, v%d" % R)
                e("v_add_f32 v40, v40, v44")
                e("v_add_f32 v41, v41, v45")
                e("v_fmac_f32 v42, v44, v44")
                e("v_fmac_f32 v43, v45, v45")
            else:
                e("v_dot2_f32_bf16 v%d, v%d, s40, v%d" % (40 + (k & 1), R, 40 + (k & 1)))
                e("v_dot2_f32_bf16 v%d, v%d, v%d, v%d" % (42 + (k & 1), R, R, 42 + (k & 1)))
    e.nop(4)
    e("v_add_f32 v40, v40, v41")
    e("v_add_f32 v41, v42, v43")
    e("v_mov_b32 v42, v40")
    e("v_mov_b32 v43, v41")
    e.nop(1)
    e("v_permlane32_swap_b32 v40, v42")
    e("v_permlane32_swap_b32 v41, v43")
    e("v_add_f32 v40, v40, v42")
    e("v_add_f32 v41, v41, v43")
    e("ds_write_b64 v55, v[40:41]")
    e("s_waitcnt lgkmcnt(0)")
    e("s_barrier")
    stamp(e, 0)
    for w in range(4):
        e("ds_read_b64 %s, v56 offset:%d" % (vr(44 + 2 * w, 2), 256 * w))
    e("s_mov_b32 s36, 0x%x" % f32bits(1.0 / 448.0))
    e("s_mov_b32 s37, 0x%x" % f32bits(1e-5))
    e("s_waitcnt lgkmcnt(0)")
    e("v_add_f32 v40, v44, v46")
    e("v_add_f32 v41, v45, v47")
    e("v_add_f32 v42, v48, v50")
    e("v_add_f32 v43, v49, v51")
    e("v_add_f32 v40, v40, v42")
    e("v_add_f32 v41, v41, v43")
    e("v_mul_f32 v40, s36, v40")
    e("v_mul_f32 v41, s36, v41")
    e("v_fma_f32 v41, -v40, v40, v41")
    e("v_max_f32 v41, 0, v41")
    rb1(e, 40, 40)
    rb1(e, 41, 41)
    e("v_add_f32 v41, s37, v41")
    rb1(e, 41, 41)
    e("v_sqrt_f32 v41, v41")
    e("v_sub_f32 v40, 0, v40")
    rb1(e, 41, 41)
    e("v_rcp_f32 v41, v41")
    for j in range(7):
        R = RF + 4 * j
        T = 44 + 8 * (j & 1)
        for k in range(4):
            if "nodotn" in OPTS:
                e("v_lshlrev_b32 v%d, 16, v%d" % (T + 2 * k, R + k))
                e("v_and_b32 v%d, s47, v%d" % (T + 2 * k + 1, R + k))
                e("v_add_f32 v%d, v%d, v40" % (T + 2 * k, T + 2 * k))
                e("v_add_f32 v%d, v%d, v40" % (T + 2 * k + 1, T + 2 * k + 1))
            else:
                e("v_dot2_f32_bf16 v%d, v%d, s41, v40" % (T + 2 * k, R + k))
                e("v_dot2_f32_bf16 v%d, v%d, s42, v40" % (T + 2 * k + 1, R + k))
        for k in range(4):
            e("v_cvt_pk_bf16_f32 v%d, v%d, v%d" % (R + k, T + 2 * k, T + 2 * k + 1))
        for k in range(4):
            e("v_lshlrev_b32 v%d, 16, v%d" % (T + 2 * k, R + k))
            e("v_mul_f32 v%d, v%d, v41" % (T + 2 * k, T + 2 * k))
            e("v_and_b32 v%d, s47, v%d" % (T + 2 * k + 1, R + k))
            e("v_mul_f32 v%d, v%d, v41" % (T + 2 * k + 1, T + 2 * k + 1))
        for k in range(4):
            e("v_cvt_pk_bf16_f32 v%d, v%d, v%d" % (R + k, T + 2 * k, T + 2 * k + 1))
        e("ds_write_b128 v63, %s offset:%d" % (vr(R, 4), 4096 * j))
        if j % 2 == 1: pend(1)
    ACC = 72
    for i in range(32):
        e("v_mov_b32 v%d, 0" % (ACC + i))
    e("v_add_u32 v59, %d, v6" % AT)
    e("s_waitcnt lgkmcnt(0)")
    e("s_barrier")
    stamp(e, 0)
    BF = [104, 108, 112, 116]

    def issue(t, s):
        e("ds_read_b128 %s, v59 offset:%d" % (vr(BF[s & 3], 4), (t * 28 + s) * 1024))

    BI = 40
    cgel = -2.0 * 0.7978845608028654 * 1.4426950408889634

    def epi(t):
        o = []
        A = ACC + 16 * t
        for hh in range(2):
            ps = range(4 * hh, 4 * hh + 4)
            for p in ps:
                o.append("v_cvt_pk_bf16_f32 v%d, v%d, v%d" % (24 + (p & 3), A + 2 * p, A + 2 * p + 1))
            for p in ps:
                x = 8 + 2 * (p & 3)
                o.append("v_dot2_f32_bf16 v%d, v%d, s41, v%d" % (x, 24 + (p & 3), BI + 2 * p))
                o.append("v_dot2_f32_bf16 v%d, v%d, s42, v%d" % (x + 1, 24 + (p & 3), BI + 2 * p + 1))
            o.append("s_nop 1")
            for p in ps:
                x = 8 + 2 * (p & 3)
                o.append("v_cvt_pk_bf16_f32 v%d, v%d, v%d" % (24 + (p & 3), x, x + 1))
            for p in ps:
                x = 8 + 2 * (p & 3)
                o.append("v_lshlrev_b32 v%d, 16, v%d" % (x, 24 + (p & 3)))
                o.append("v_mul_f32 v%d, v%d, v%d" % (x + 8, x, x))
                o.append("v_and_b32 v%d, s47, v%d" % (x + 1, 24 + (p & 3)))
                o.append("v_mul_f32 v%d, v%d, v%d" % (x + 9, x + 1, x + 1))
            for i in range(8):
                o.append("v_fma_f32 v%d, v%d, s44, v28" % (16 + i, 16 + i))
            for i in range(8):
                o.append("v_mul_f32 v%d, v%d, v%d" % (16 + i, 16 + i, 8 + i))
            for i in range(8):
                o.append("v_exp_f32 v%d, v%d" % (16 + i, 16 + i))
            for i in range(8):
                o.append("v_add_f32 v%d, 1.0, v%d" % (16 + i, 16 + i))
            for i in range(8):
                o.append("v_rcp_f32 v%d, v%d" % (16 + i, 16 + i))
            for i in range(8):
                o.append("v_mul_f32 v%d, v%d, v%d" % (8 + i, 8 + i, 16 + i))
            for p in ps:
                x = 8 + 2 * (p & 3)
                o.append("v_cvt_pk_bf16_f32 v%d, v%d, v%d" % (120 + 8 * t + p, x, x + 1))
            o.append("buffer_store_dwordx4 %s, v6, s[16:19], s48 offen offset:%d" % (vr(120 + 8 * t + 4 * hh, 4), 1024 * hh))
        o.append("s_add_u32 s48, s48, %d" % (112 * 1024))
        return o

    for s in range(3):
        issue(0, s)
    for s in range(28):
        if s + 3 < 28:
            issue(0, s + 3)
        else:
            issue(1, s + 3 - 28)
        pend(1)
        e("s_waitcnt lgkmcnt(3) vmcnt(%d)" % (issued() - (s + 1)))
        a = vr(ACC, 16)
        e("v_mfma_f32_32x32x16_bf16 %s, %s, %s, %s" % (a, vr(WF + 4 * s, 4), vr(BF[s & 3], 4), a))
    e("s_waitcnt vmcnt(0)")
    stamp(e, 0)
    pre = []
    for q in range(4):
        pre.append("v_lshlrev_b32 v%d, 16, v%d" % (40 + 4 * q, 136 + 2 * q))
        pre.append("v_and_b32 v%d, s47, v%d" % (41 + 4 * q, 136 + 2 * q))
        pre.append("v_lshlrev_b32 v%d, 16, v%d" % (42 + 4 * q, 137 + 2 * q))
        pre.append("v_and_b32 v%d, s47, v%d" % (43 + 4 * q, 137 + 2 * q))
    e("s_mov_b32 s44, 0x%x" % f32bits(0.044715 * cgel))
    e("v_mov_b32 v28, 0x%x" % f32bits(cgel))
    e("s_mul_i32 s48, s24, %d" % (2 * 112 * 1024))
    e("s_lshl_b32 s43, s26, 11")
    e("s_add_u32 s48, s48, s43")
    lst = pre + epi(0)
    per = (len(lst) + 26) // 27
    for s in range(28):
        if s + 3 < 28:
            issue(1, s + 3)
        e("s_waitcnt lgkmcnt(%d)" % min(3, 27 - s))
        a = vr(ACC + 16, 16)
        e("v_mfma_f32_32x32x16_bf16 %s, %s, %s, %s" % (a, vr(WF + 4 * s, 4), vr(BF[s & 3], 4), a))
        if s >= 1:
            for _ in range(per):
                if lst: e(lst.pop(0))
    for x in lst:
        e(x)
    e.nop(16)
    stamp(e, 0)
    for x in epi(1):
        e(x)
    if "stamp" in OPTS:
        e("s_waitcnt vmcnt(0)")
        stamp(e, 0)
    e.label("K3_END")
    endpgm(e, 2)
    e.label("K3_EXIT")
    e("s_endpgm")
    WGT_IDX[0] += 1
    return kernel_desc(name, 256)


K4_GRID = 224
P_RS = 272
P_SZ = 64 * P_RS
H_RS = 192
HT_SZ = 64 * H_RS
K4_LDS = 4 * P_SZ + HT_SZ


def gen_k4(e):
    name = NAME + "_kernel"
    kernel_header(e, name)
    e("s_cmp_ge_u32 s2, %d" % K4_GRID)
    e("s_cbranch_scc1 K4_EXIT")
    e("s_load_dwordx2 s[4:5], s[0:1], 112")
    e("s_load_dwordx2 s[6:7], s[0:1], 88")
    e("s_load_dwordx2 s[44:45], s[0:1], 96")
    e("v_lshrrev_b32 v1, 6, v0")
    e("v_and_b32 v2, 63, v0")
    e("s_nop 0")
    e("v_readfirstlane_b32 s3, v1")
    e("s_waitcnt lgkmcnt(0)")
    stamp_init(e, 200)
    stamp(e, 200)
    srd(e, 8, 4, 5, WS_H1, 64 * 112 * 1024)
    srd(e, 12, 4, 5, WS_WP + W1P_SZ, W1P_SZ)
    srd(e, 16, 4, 5, WS_HT, TSZ)
    srd(e, 20, 6, 7, 0, D * 2)
    srd(e, 24, 44, 45, 0, TSZ)
    e("s_and_b32 s28, s2, 31")
    e("s_lshr_b32 s29, s2, 5")
    e("s_mov_b32 s47, 0xffff0000")
    e("v_lshlrev_b32 v6, 4, v2")
    e("s_mul_i32 s30, s3, %d" % (28 * 1024))
    e("s_mul_i32 s31, s28, %d" % (2 * 112 * 1024))
    e("s_add_u32 s31, s31, s30")
    e("s_add_u32 s32, s31, %d" % (112 * 1024))
    e("s_mul_i32 s33, s29, %d" % (2 * 112 * 1024))
    e("s_add_u32 s33, s33, s30")
    e("s_add_u32 s34, s33, %d" % (112 * 1024))
    RING = 7
    RB = 80

    def ld(s):
        b = RB + 16 * (s % RING)
        o = (s % 4) * 1024
        e("buffer_load_dwordx4 %s, v6, s[12:15], s33 offen offset:%d" % (vr(b, 4), o))
        e("buffer_load_dwordx4 %s, v6, s[8:11], s31 offen offset:%d" % (vr(b + 8, 4), o))
        e("buffer_load_dwordx4 %s, v6, s[12:15], s34 offen offset:%d" % (vr(b + 4, 4), o))
        e("buffer_load_dwordx4 %s, v6, s[8:11], s32 offen offset:%d" % (vr(b + 12, 4), o))
        if s % 4 == 3:
            for r in (31, 32, 33, 34):
                e("s_add_u32 s%d, s%d, 4096" % (r, r))

    e("v_lshrrev_b32 v3, 3, v0")
    e("v_and_b32 v4, 7, v0")
    e("v_lshlrev_b32 v5, 12, v3")
    e("v_lshl_add_u32 v5, v4, 4, v5")
    e("s_lshl_b32 s35, s29, 18")
    e("s_lshl_b32 s36, s28, 7")
    e("s_add_u32 s35, s35, s36")
    e("buffer_load_dwordx4 v[8:11], v5, s[16:19], s35 offen")
    e("s_add_u32 s35, s35, 0x%x" % (32 * 4096))
    e("buffer_load_dwordx4 v[12:15], v5, s[16:19], s35 offen")
    e("v_lshrrev_b32 v204, 4, v2")
    e("v_lshlrev_b32 v204, 4, v204")
    e("s_lshl_b32 s40, s29, 7")
    e("buffer_load_dwordx4 v[192:195], v204, s[20:23], s40 offen")
    e("buffer_load_dwordx4 v[196:199], v204, s[20:23], s40 offen offset:64")
    for s in range(RING):
        ld(s)
    ACC = 16
    for i in range(64):
        e("v_mov_b32 v%d, 0" % (ACC + i))
    e("v_mul_u32_u24 v7, %d, v3" % H_RS)
    e("v_lshl_add_u32 v7, v4, 4, v7")
    e("s_waitcnt vmcnt(%d)" % (4 * RING))
    e("ds_write_b128 v7, v[8:11] offset:%d" % (0))
    e("ds_write_b128 v7, v[12:15] offset:%d" % (32 * H_RS))
    for s in range(28):
        outstanding_after = min(28 - 1 - s, RING - 1) * 4
        e("s_waitcnt vmcnt(%d)" % outstanding_after)
        if s in (0, 7, 14, 21): stamp(e, 200)
        b = RB + 16 * (s % RING)
        for dl in range(2):
            for t in range(2):
                a = vr(ACC + 16 * (2 * dl + t), 16)
                e("v_mfma_f32_32x32x16_bf16 %s, %s, %s, %s" % (a, vr(b + 4 * dl, 4), vr(b + 8 + 4 * t, 4), a))
        if s + RING < 28:
            ld(s + RING)
    stamp(e, 200)
    e("v_and_b32 v3, 31, v2")
    e("v_mul_u32_u24 v3, %d, v3" % P_RS)
    e("v_lshrrev_b32 v4, 5, v2")
    e("v_lshl_add_u32 v3, v4, 4, v3")
    e("s_mul_i32 s37, s3, %d" % P_SZ)
    e("v_add_u32 v3, s37, v3")
    e.nop(12)
    for dl in range(2):
        for t in range(2):
            for q in range(4):
                e("ds_write_b128 v3, %s offset:%d" % (vr(ACC + 16 * (2 * dl + t) + 4 * q, 4), HT_SZ + t * 32 * P_RS + dl * 128 + q * 32))
    e("s_waitcnt lgkmcnt(0)")
    e("s_barrier")
    e("v_and_b32 v3, 15, v2")
    e("v_lshrrev_b32 v4, 4, v2")
    e("s_lshl_b32 s38, s3, 4")
    e("v_add_u32 v5, s38, v3")
    e("v_mul_u32_u24 v7, %d, v5" % P_RS)
    e("v_lshl_add_u32 v7, v4, 5, v7")
    e("v_lshrrev_b32 v8, 2, v3")
    e("v_lshl_add_u32 v8, v4, 3, v8")
    e("v_mul_u32_u24 v8, %d, v8" % H_RS)
    e("v_and_b32 v9, 3, v3")
    e("v_lshl_add_u32 v8, v9, 3, v8")
    e("s_lshl_b32 s39, s3, 5")
    e("v_add_u32 v8, s39, v8")
    e("v_lshlrev_b32 v9, 4, v4")
    e("s_mov_b32 s41, 896")
    e("v_mul_lo_u32 v10, v5, s41")
    e("v_add_u32 v10, v10, v9")
    e("s_mul_i32 s42, s28, %d" % (64 * 896))
    e("s_add_u32 s42, s42, s40")
    for hf in range(2):
        for w in range(4):
            e("ds_read_b128 %s, v7 offset:%d" % (vr(16 + 8 * w, 4), HT_SZ + w * P_SZ + hf * 128))
            e("ds_read_b128 %s, v7 offset:%d" % (vr(20 + 8 * w, 4), HT_SZ + w * P_SZ + hf * 128 + 16))
        e("ds_read_b64_tr_b16 v[48:49], v8 offset:%d" % (hf * 32 * H_RS))
        e("ds_read_b64_tr_b16 v[50:51], v8 offset:%d" % (hf * 32 * H_RS + 4 * H_RS))
        e("s_waitcnt lgkmcnt(0) vmcnt(0)")
        for i in range(8):
            e("v_add_f32 v%d, v%d, v%d" % (16 + i, 16 + i, 24 + i))
            e("v_add_f32 v%d, v%d, v%d" % (32 + i, 32 + i, 40 + i))
            e("v_add_f32 v%d, v%d, v%d" % (16 + i, 16 + i, 32 + i))
        BB = 192 + 4 * hf
        for p in range(4):
            e("v_cvt_pk_bf16_f32 v24, v%d, v%d" % (16 + 2 * p, 17 + 2 * p))
            e("v_and_b32 v25, s47, v24")
            e("v_lshlrev_b32 v24, 16, v24")
            e("v_lshlrev_b32 v26, 16, v%d" % (BB + p))
            e("v_and_b32 v27, s47, v%d" % (BB + p))
            e("v_add_f32 v24, v24, v26")
            e("v_add_f32 v25, v25, v27")
            e("v_cvt_pk_bf16_f32 v24, v24, v25")
            e("v_and_b32 v25, s47, v24")
            e("v_lshlrev_b32 v24, 16, v24")
            e("v_lshlrev_b32 v26, 16, v%d" % (48 + p))
            e("v_and_b32 v27, s47, v%d" % (48 + p))
            e("v_add_f32 v24, v24, v26")
            e("v_add_f32 v25, v25, v27")
            e("v_cvt_pk_bf16_f32 v%d, v24, v25" % (52 + 4 * hf + p))
        e("buffer_store_dwordx4 %s, v10, s[24:27], s42 offen offset:%d" % (vr(52 + 4 * hf, 4), 64 * hf))
    e("s_waitcnt vmcnt(0)")
    stamp(e, 200)
    e.label("K4_END")
    endpgm(e, 3)
    e.label("K4_EXIT")
    e("s_endpgm")
    WGT_IDX[0] += 1
    return kernel_desc(name, 208)


def kernels():
    return [
        ("k2_kernel", gen_k2, K2_GRID, 512, K2_LDS),
        ("k3_kernel", gen_k3, K3_GRID, 512, K3_LDS),
        (NAME + "_kernel", gen_k4, K4_GRID, 256, K4_LDS),
    ]
```

```python
import sys, struct, os
OPTS = os.environ.get("GENOPTS", "").split(",")

NAME = "sequential_preLN__ssm_conv_s4d__dense_activation_gelu__prompt"
L = 2048; D = 448; N = 256; F = 1792

WS_UT = 0x0
WS_XT = 0x200000
WS_K = 0x400000
KCH = 15360
KQS = 3072
WS_HT = 0xC00000
WS_H1 = 0x1000000
WS_WP = 0x1800000
W1P_SZ = 56 * 28 * 1024
TSZ = D * L * 2


def f32bits(x):
    return struct.unpack("<I", struct.pack("<f", x))[0]


class E:
    def __init__(self):
        self.lines = []

    def __call__(self, s):
        self.lines.append("    " + s)

    def label(self, s):
        self.lines.append(s + ":")

    def c(self, s):
        self.lines.append("    ; " + s)

    def raw(self, s):
        self.lines.append(s)

    def nop(self, n):
        while n > 0:
            k = min(n, 16)
            self("s_nop %d" % (k - 1))
            n -= k

    def text(self):
        return "\n".join(self.lines) + "\n"


def vr(a, n=1):
    return "v%d" % a if n == 1 else "v[%d:%d]" % (a, a + n - 1)


def sr(a, n=1):
    return "s%d" % a if n == 1 else "s[%d:%d]" % (a, a + n - 1)


def srd(e, dst, base_lo, base_hi, off, size):
    if off:
        e("s_add_u32 s%d, s%d, 0x%x" % (dst, base_lo, off))
        e("s_addc_u32 s%d, s%d, 0" % (dst + 1, base_hi))
    else:
        e("s_mov_b32 s%d, s%d" % (dst, base_lo))
        e("s_mov_b32 s%d, s%d" % (dst + 1, base_hi))
    e("s_and_b32 s%d, s%d, 0xffff" % (dst + 1, dst + 1))
    e("s_mov_b32 s%d, 0x%x" % (dst + 2, size))
    e("s_mov_b32 s%d, 0x00020000" % (dst + 3))


def reduce64(e, v, t):
    e.nop(2)
    e("v_add_f32_dpp v%d, v%d, v%d quad_perm:[1,0,3,2] row_mask:0xf bank_mask:0xf" % (v, v, v))
    e.nop(2)
    e("v_add_f32_dpp v%d, v%d, v%d quad_perm:[2,3,0,1] row_mask:0xf bank_mask:0xf" % (v, v, v))
    e.nop(2)
    e("v_add_f32_dpp v%d, v%d, v%d row_half_mirror row_mask:0xf bank_mask:0xf" % (v, v, v))
    e.nop(2)
    e("v_add_f32_dpp v%d, v%d, v%d row_mirror row_mask:0xf bank_mask:0xf" % (v, v, v))
    e("v_mov_b32 v%d, v%d" % (t, v))
    e.nop(2)
    e("v_permlane16_swap_b32 v%d, v%d" % (v, t))
    e("v_add_f32 v%d, v%d, v%d" % (v, v, t))
    e("v_mov_b32 v%d, v%d" % (t, v))
    e.nop(2)
    e("v_permlane32_swap_b32 v%d, v%d" % (v, t))
    e("v_add_f32 v%d, v%d, v%d" % (v, v, t))


def rb1(e, dst, src):
    e("v_cvt_pk_bf16_f32 v%d, v%d, v%d" % (dst, src, src))
    e("v_lshlrev_b32 v%d, 16, v%d" % (dst, dst))


STAMP_WG = int(os.environ.get("STAMPWG", "0"))
def stamp_init(e, vtmp):
    if "stamp" not in OPTS: return
    e("s_load_dwordx2 s[90:91], s[0:1], 104")
    e("s_waitcnt lgkmcnt(0)")
    e("s_mov_b32 s92, s90")
    e("s_and_b32 s93, s91, 0xffff")
    e("s_mov_b32 s94, 256")
    e("s_mov_b32 s95, 0x00020000")
    e.stampn = 0
    stamp(e, vtmp, 100)

def stamp(e, vtmp, sreg=96):
    if "stamp" not in OPTS: return
    n = e.stampn; e.stampn += 1
    lab = "STP_%d" % len(e.lines)
    e("s_cmp_lg_u32 s2, %d" % STAMP_WG)
    e("s_cbranch_scc1 %s" % lab)
    e("s_cmp_lg_u32 s3, %d" % int(os.environ.get("STAMPWAVE", "0")))
    e("s_cbranch_scc1 %s" % lab)
    if sreg == 96:
        e("s_memtime s[96:97]")
        e("s_waitcnt lgkmcnt(0)")
    e("v_mov_b32 v%d, s%d" % (vtmp, sreg))
    e("s_mov_b64 s[98:99], exec")
    e("s_mov_b64 exec, 1")
    e("v_mov_b32 v%d, 0" % (vtmp + 1))
    e("buffer_store_dword v%d, v%d, s[92:95], 0 offen offset:%d" % (vtmp, vtmp + 1, 4 * n))
    e("s_mov_b64 exec, s[98:99]")
    e.label(lab)


WGT_IDX = [0]
def kernel_header(e, name):
    e.raw(".text")
    e.raw(".globl %s" % name)
    e.raw(".p2align 8")
    e.raw(".type %s,@function" % name)
    e.label(name)
    if "wgt" in OPTS:
        e("s_memrealtime s[86:87]")
        e("s_load_dwordx2 s[84:85], s[0:1], 112")
        e("s_waitcnt lgkmcnt(0)")
    if "stamp" in OPTS:
        e("s_memtime s[100:101]")
    dl = os.environ.get("DELAY", "")
    if dl and dl.split(":")[0] == name[:2]:
        e("s_memrealtime s[96:97]")
        e("s_waitcnt lgkmcnt(0)")
        e.label("DLY_%s" % name)
        e("s_memrealtime s[98:99]")
        e("s_waitcnt lgkmcnt(0)")
        e("s_sub_u32 s98, s98, s96")
        e("s_cmp_lt_u32 s98, %d" % int(dl.split(":")[1]))
        e("s_cbranch_scc1 DLY_%s" % name)
    if "hdbg" in OPTS:
        e("s_memrealtime s[86:87]")
        e("s_load_dwordx2 s[84:85], s[0:1], 104")
        e("s_waitcnt lgkmcnt(0)")


def endpgm(e, idx):
    if "wgt" in OPTS:
        e("s_waitcnt vmcnt(0)")
        e("s_memrealtime s[88:89]")
        e("s_waitcnt lgkmcnt(0)")
        srd(e, 80, 84, 85, 0x4000000 + idx * 0x100000, 0x100000)
        e("s_mov_b64 exec, 1")
        e("v_mov_b32 v0, s86")
        e("v_mov_b32 v1, s88")
        e("s_lshl_b32 s90, s2, 4")
        e("s_add_u32 s90, s90, s3")
        e("s_lshl_b32 s90, s90, 3")
        e("v_mov_b32 v2, s90")
        e("buffer_store_dwordx2 v[0:1], v2, s[80:83], 0 offen")
    if "hdbg" in OPTS:
        e("s_waitcnt vmcnt(0)")
        e("s_memrealtime s[88:89]")
        e("s_waitcnt lgkmcnt(0)")
        e("s_sub_u32 s80, s84, %d" % (512 * idx))
        e("s_subb_u32 s81, s85, 0")
        e("s_and_b32 s81, s81, 0xffff")
        e("s_mov_b32 s82, 256")
        e("s_mov_b32 s83, 0x00020000")
        e("s_mov_b64 exec, 1")
        e("s_not_b32 s86, s86")
        e("v_mov_b32 v0, s86")
        e("v_mov_b32 v1, s88")
        e("v_mov_b32 v2, 0")
        e("buffer_atomic_umax v0, v2, s[80:83], 0 offen offset:%d" % (8 * idx))
        e("buffer_atomic_umax v1, v2, s[80:83], 0 offen offset:%d" % (8 * idx + 4))
    e("s_endpgm")


def kernel_desc(name, vgpr, sgpr=102, accum=None):
    if accum is None:
        accum = (vgpr + 3) // 4 * 4
    return """.section .rodata,"a"
.p2align 6
.amdhsa_kernel %s
  .amdhsa_next_free_vgpr %d
  .amdhsa_next_free_sgpr %d
  .amdhsa_accum_offset %d
  .amdhsa_group_segment_fixed_size 0
  .amdhsa_kernarg_size 120
  .amdhsa_user_sgpr_count 2
  .amdhsa_user_sgpr_kernarg_segment_ptr 1
  .amdhsa_system_sgpr_workgroup_id_x 1
.end_amdhsa_kernel
""" % (name, vgpr, sgpr, accum)


K1_KG = 224
K1_GRID = 256
K1_BLK = 512
KG_WSZ = 32 * 288
LNB = 8 * KG_WSZ
K1_LDS = LNB + 2 * 8 * 912


def reduce64_multi(e, S, T, n):
    for mod in ("quad_perm:[1,0,3,2]", "quad_perm:[2,3,0,1]", "row_half_mirror", "row_mirror"):
        for r in range(n):
            e("v_add_f32_dpp v%d, v%d, v%d %s row_mask:0xf bank_mask:0xf" % (S + r, S + r, S + r, mod))
    for sw in ("v_permlane16_swap_b32", "v_permlane32_swap_b32"):
        for r in range(n):
            e("v_mov_b32 v%d, v%d" % (T + r, S + r))
        for r in range(n):
            e("%s v%d, v%d" % (sw, S + r, T + r))
        for r in range(n):
            e("v_add_f32 v%d, v%d, v%d" % (S + r, S + r, T + r))


def pkb(r):
    return (vr(r & ~1, 2), r & 1)


def pk_mul_b(e, dst, src, r):
    p, h = pkb(r)
    e("v_pk_mul_f32 %s, %s, %s op_sel:[0,%d] op_sel_hi:[1,%d]" % (vr(dst, 2), vr(src, 2), p, h, h))


def gen_k1(e):
    name = "k1_kernel"
    kernel_header(e, name)
    e("s_cmp_ge_u32 s2, %d" % K1_GRID)
    e("s_cbranch_scc1 K1_EXIT")
    e("s_load_dwordx2 s[4:5], s[0:1], 112")
    e("s_load_dwordx2 s[6:7], s[0:1], 0")
    e("s_load_dwordx8 s[8:15], s[0:1], 8")
    e("s_load_dwordx2 s[16:17], s[0:1], 40")
    e("v_lshrrev_b32 v1, 6, v0")
    e("v_and_b32 v2, 63, v0")
    e("v_and_b32 v0, 255, v0")
    e("v_readfirstlane_b32 s3, v1")
    e("v_lshlrev_b32 v3, 1, v0")
    e("v_mov_b32 v4, 0")
    RX = 136
    e("v_lshlrev_b32 v160, 4, v2")
    for i in range(4):
        e("v_mov_b32 v%d, 0" % (RX + i))
    e("s_lshl_b32 s22, s2, 3")
    e("s_add_u32 s22, s22, s3")
    e("s_mul_i32 s22, s22, 896")
    e("s_lshr_b32 s51, s3, 2")
    e("s_lshl_b32 s20, s2, 1")
    e("s_add_u32 s20, s20, s51")
    e("s_lshl_b32 s21, s20, 9")
    e("s_lshl_b32 s23, s20, 1")
    e("s_mov_b64 s[60:61], exec")
    e("v_cmp_gt_u32 vcc, 56, v2")
    e("s_mov_b64 s[62:63], vcc")
    e("s_waitcnt lgkmcnt(0)")
    stamp_init(e, 166)
    stamp(e, 166)
    srd(e, 64, 6, 7, 0, TSZ)
    e("s_mov_b64 exec, s[62:63]")
    e("buffer_load_dwordx4 %s, v160, s[64:67], s22 offen" % vr(RX, 4))
    e("s_mov_b64 exec, s[60:61]")
    e("s_cmp_ge_u32 s2, %d" % K1_KG)
    e("s_cbranch_scc1 K1_NOLD")
    srd(e, 24, 8, 9, 0, D * N * 2)
    srd(e, 40, 16, 17, 0, D * 2)
    e("buffer_load_ushort v8, v3, s[24:27], s21 offen")
    e("buffer_load_ushort v12, v4, s[40:43], s23 offen")
    srd(e, 28, 10, 11, 0, D * N * 2)
    e("buffer_load_ushort v9, v3, s[28:31], s21 offen")
    srd(e, 32, 12, 13, 0, D * N * 2)
    e("buffer_load_ushort v10, v3, s[32:35], s21 offen")
    srd(e, 36, 14, 15, 0, D * N * 2)
    e("buffer_load_ushort v11, v3, s[36:39], s21 offen")
    e.label("K1_NOLD")
    srd(e, 68, 4, 5, WS_UT, WS_XT + TSZ)
    XT = 8 * 912
    e("s_mul_i32 s72, s3, 912")
    e("s_add_u32 s72, s72, %d" % LNB)
    e("v_add_u32 v160, s72, v160")
    e("s_mov_b32 s73, 0x%x" % f32bits(1.0 / 448.0))
    e("s_mov_b32 s74, 0x%x" % f32bits(1e-5))
    e("s_mov_b32 s75, 0xffff0000")
    e("s_mov_b32 s76, 0x3f803f80")
    e("s_mov_b32 s77, 0x00003f80")
    e("s_mov_b32 s78, 0x3f800000")
    e("v_and_b32 v5, 15, v2")
    e("v_lshrrev_b32 v6, 4, v2")
    e("v_lshrrev_b32 v7, 2, v5")
    e("v_and_b32 v140, 3, v5")
    e("v_and_b32 v141, 1, v6")
    e("v_sub_u32 v143, 7, v7")
    e("v_add_u32 v142, 8, v7")
    e("v_cmp_gt_u32 vcc, 2, v6")
    e("v_cndmask_b32 v142, v142, v143, vcc")
    e("v_mul_u32_u24 v161, 912, v142")
    e("v_lshl_add_u32 v161, v140, 3, v161")
    e("v_lshl_add_u32 v161, v141, 5, v161")
    e("s_lshl_b32 s72, s3, 6")
    e("s_add_u32 s72, s72, %d" % LNB)
    e("v_add_u32 v161, s72, v161")
    e("v_mov_b32 v142, %d" % (4 * 912))
    e("v_mov_b32 v143, %d" % (-4 * 912))
    e("v_cndmask_b32 v142, v142, v143, vcc")
    e("v_add_u32 v162, v161, v142")
    e("v_lshl_add_u32 v163, v141, 4, v5")
    e("v_lshlrev_b32 v163, 12, v163")
    e("s_lshl_b32 s79, s2, 4")
    e("s_sub_u32 s72, 4080, s79")
    e("s_add_u32 s79, s79, 0x%x" % WS_XT)
    e("v_mov_b32 v142, s79")
    e("v_mov_b32 v143, s72")
    e("v_cndmask_b32 v142, v142, v143, vcc")
    e("v_add_u32 v163, v163, v142")
    e("s_lshl_b32 s79, s3, 17")
    S, T, X = 140, 144, 148
    for r in range(4):
        e("v_mov_b32 v%d, 0" % (S + r))
    e("s_cmp_ge_u32 s2, %d" % K1_KG)
    e("s_cbranch_scc1 K1_W0")
    e("s_waitcnt vmcnt(5)")
    e("s_branch K1_W1")
    e.label("K1_W0")
    e("s_waitcnt vmcnt(0)")
    e.label("K1_W1")
    for k in range(4):
        e("v_dot2_f32_bf16 v%d, v%d, s76, v%d" % (S + 2 * (k & 1), RX + k, S + 2 * (k & 1)))
        e("v_dot2_f32_bf16 v%d, v%d, v%d, v%d" % (S + 1 + 2 * (k & 1), RX + k, RX + k, S + 1 + 2 * (k & 1)))
    e("s_mov_b64 exec, s[62:63]")
    e("ds_write_b128 v160, %s offset:%d" % (vr(RX, 4), XT))
    e("s_mov_b64 exec, s[60:61]")
    e.nop(1)
    e("v_pk_add_f32 %s, %s, %s" % (vr(S, 2), vr(S, 2), vr(S + 2, 2)))
    for mod in ("quad_perm:[1,0,3,2]", "quad_perm:[2,3,0,1]", "row_half_mirror", "row_mirror"):
        e.nop(1)
        for r in range(2):
            e("v_add_f32_dpp v%d, v%d, v%d %s row_mask:0xf bank_mask:0xf" % (S + r, S + r, S + r, mod))
    for sw in ("v_permlane16_swap_b32", "v_permlane32_swap_b32"):
        for r in range(2):
            e("v_mov_b32 v%d, v%d" % (T + r, S + r))
        e.nop(1)
        for r in range(2):
            e("%s v%d, v%d" % (sw, S + r, T + r))
        e("v_pk_add_f32 %s, %s, %s" % (vr(S, 2), vr(S, 2), vr(T, 2)))
    V = S + 1
    e("v_mul_f32 v%d, s73, v%d" % (S, S))
    e("v_mul_f32 v%d, s73, v%d" % (V, V))
    e("v_fma_f32 v%d, -v%d, v%d, v%d" % (V, S, S, V))
    e("v_max_f32 v%d, 0, v%d" % (V, V))
    rb1(e, S, S)
    rb1(e, V, V)
    e("v_add_f32 v%d, s74, v%d" % (V, V))
    e("v_sub_f32 v%d, 0, v%d" % (S, S))
    rb1(e, V, V)
    e("v_sqrt_f32 v%d, v%d" % (V, V))
    for k in range(4):
        e("v_dot2_f32_bf16 v%d, v%d, s77, v%d" % (X + 2 * k, RX + k, S))
        e("v_dot2_f32_bf16 v%d, v%d, s78, v%d" % (X + 2 * k + 1, RX + k, S))
    rb1(e, V, V)
    e("v_rcp_f32 v%d, v%d" % (V, V))
    for k in range(4):
        e("v_cvt_pk_bf16_f32 v%d, v%d, v%d" % (RX + k, X + 2 * k, X + 2 * k + 1))
    for k in range(4):
        e("v_lshlrev_b32 v%d, 16, v%d" % (X + 2 * k, RX + k))
        e("v_and_b32 v%d, s75, v%d" % (X + 2 * k + 1, RX + k))
    for k in range(4):
        pk_mul_b(e, X + 2 * k, X + 2 * k, V)
    for k in range(4):
        e("v_cvt_pk_bf16_f32 v%d, v%d, v%d" % (RX + k, X + 2 * k, X + 2 * k + 1))
    e("s_mov_b64 exec, s[62:63]")
    e("ds_write_b128 v160, %s" % vr(RX, 4))
    e("s_mov_b64 exec, s[60:61]")
    e("s_waitcnt lgkmcnt(0) vmcnt(0)")
    e("s_barrier")
    e("ds_read_b64_tr_b16 %s, v161" % vr(104, 2))
    e("ds_read_b64_tr_b16 %s, v162" % vr(106, 2))
    e("s_cmp_ge_u32 s3, 6")
    e("s_cbranch_scc1 K1_P2B")
    e("ds_read_b64_tr_b16 %s, v161 offset:512" % vr(108, 2))
    e("ds_read_b64_tr_b16 %s, v162 offset:512" % vr(110, 2))
    e("s_add_u32 s72, s79, 0x%x" % (8 * 32 * 4096))
    e("s_waitcnt lgkmcnt(0)")
    e("buffer_store_dwordx4 %s, v163, s[68:71], s72 offen" % vr(108, 4))
    e.label("K1_P2B")
    e("s_waitcnt lgkmcnt(0)")
    e("buffer_store_dwordx4 %s, v163, s[68:71], s79 offen" % vr(104, 4))
    stamp(e, 166)
    e("s_cmp_ge_u32 s2, %d" % K1_KG)
    e("s_cbranch_scc1 K1_END")
    import numpy as np
    lhi = np.float32(1.4426950408889634)
    llo = np.float32(1.4426950408889634 - float(lhi))
    e("s_mov_b32 s44, 0x%x" % f32bits(float(lhi)))
    e("s_mov_b32 s45, 0x%x" % f32bits(float(llo)))
    e("s_mov_b32 s46, 0x%x" % f32bits(0.6931471805599453))
    e("s_mov_b32 s48, 0x%x" % f32bits(0.15915494309189535))
    e("s_mul_i32 s50, s3, %d" % KG_WSZ)
    e("s_mov_b32 m0, s50")
    e("v_and_b32 v5, 15, v2")
    e("v_lshrrev_b32 v6, 4, v2")
    e("v_mul_u32_u24 v7, 288, v5")
    e("v_lshl_add_u32 v7, v6, 4, v7")
    e("v_add_u32 v7, s50, v7")
    e("v_lshrrev_b32 v1, 1, v6")
    e("v_lshlrev_b32 v1, 9, v1")
    e("v_and_b32 v14, 1, v6")
    e("v_lshl_add_u32 v1, v14, 4, v1")
    e("v_lshl_add_u32 v1, v5, 5, v1")
    e("v_add_u32 v1, s50, v1")
    e("v_lshlrev_b32 v3, 8, v6")
    e("v_add_u32 v3, s50, v3")
    e("v_lshl_add_u32 v13, v5, 2, v3")
    e("v_lshl_add_u32 v14, v5, 4, v3")
    e("v_lshl_add_u32 v15, v5, 3, v3")
    e("v_cmp_gt_u32 vcc, 2, v6")
    e("v_cndmask_b32 v3, v15, v14, vcc")
    e("v_add_u32 v14, 8, v3")
    e("v_add_u32 v15, 128, v3")
    e("v_cndmask_b32 v4, v15, v14, vcc")
    Z = 16
    EB = 40
    G0 = 72
    G1 = 104
    AF = 136
    ACC = 16
    stamp(e, 166)
    for r in (8, 9, 10, 11, 12):
        e("v_lshlrev_b32 v%d, 16, v%d" % (r, r))

    def exp_acc(dst, x, t1, t2):
        e("v_mul_f32 v%d, s44, v%d" % (t1, x))
        e("v_fma_f32 v%d, v%d, s44, -v%d" % (t2, x, t1))
        e("v_fmac_f32 v%d, s45, v%d" % (t2, x))
        e("v_exp_f32 v%d, v%d" % (t1, t1))
        e("v_mul_f32 v%d, s46, v%d" % (t2, t2))
        e("v_fma_f32 v%d, v%d, v%d, v%d" % (dst, t1, t2, t1))
        rb1(e, dst, dst)

    exp_acc(12, 12, 14, 15)
    exp_acc(8, 8, 14, 15)
    e("v_mul_f32 v8, v8, v12")
    e("v_mul_f32 v9, v9, v12")
    e("v_mul_f32 v8, s44, v8")
    e("v_mul_f32 v9, s48, v9")
    e("v_mul_f32 v%d, 0x%x, v10" % (G0, f32bits(1024.0)))
    e("v_mul_f32 v%d, 0x%x, v11" % (G0 + 1, f32bits(-1024.0)))
    e("v_mul_f32 v12, 0x%x, v12" % f32bits(2.0 ** -24))
    e("s_mov_b32 s52, 0x%x" % f32bits(32768.0))
    e("s_mov_b32 s53, s52")
    RT = AF
    order = [3, 4, 5, 6, 0, 1, 2, 7, 8, 9, 10, 11]
    e("v_mov_b32 v%d, v8" % RT)
    e("v_mov_b32 v%d, v9" % (RT + 1))
    for k in range(1, 12):
        e("v_pk_add_f32 %s, %s, %s" % (vr(RT + 2 * k, 2), vr(RT + 2 * k - 2, 2), vr(RT + 2 * k - 2, 2)))
    for k0 in range(0, 12, 4):
        ks = order[k0:k0 + 4]
        for k in ks:
            e("v_exp_f32 v%d, -v%d" % (RT + 2 * k, RT + 2 * k))
            e("v_fract_f32 v%d, v%d" % (RT + 2 * k + 1, RT + 2 * k + 1))
        for k in ks:
            e("v_cos_f32 v%d, v%d" % (Z + 2 * k, RT + 2 * k + 1))
            e("v_sin_f32 v%d, v%d" % (Z + 2 * k + 1, RT + 2 * k + 1))
        e.nop(1)
        for k in ks:
            pk_mul_b(e, Z + 2 * k, Z + 2 * k, RT + 2 * k)
    stamp(e, 166)

    def zr(k):
        return Z + 2 * k

    cnt = [0]

    def cmul_l(dst, a, b, conj=False):
        T = (8, 10)[cnt[0] & 1]; cnt[0] += 1
        return ["v_pk_mul_f32 %s, %s, %s op_sel:[1,1] op_sel_hi:[1,0]" % (vr(T, 2), vr(a, 2), vr(b, 2)),
                "v_pk_fma_f32 %s, %s, %s, %s op_sel:[0,0,0] op_sel_hi:[0,1,1] %s" % (vr(dst, 2), vr(a, 2), vr(b, 2), vr(T, 2), "neg_hi:[0,0,1]" if conj else "neg_lo:[0,0,1]")]

    def cmul(dst, a, b, conj=False):
        for x in cmul_l(dst, a, b, conj): e(x)

    def split_list(items):
        o = []
        TS = [(14, 15), (5, 6)]
        for k in range(0, len(items), 2):
            grp = items[k:k + 2]
            for (src_, row), (h, l) in zip(grp, TS):
                o.append("v_cvt_pk_f16_f32 v%d, v%d, v%d" % (h, src_, src_ + 1))
            for (src_, row), (h, l) in zip(grp, TS):
                o.append("v_fma_mixlo_f16 v%d, v%d, -1.0, v%d op_sel:[0,0,0] op_sel_hi:[1,0,0]" % (l, h, src_))
            for (src_, row), (h, l) in zip(grp, TS):
                o.append("v_fma_mixhi_f16 v%d, v%d, -1.0, v%d op_sel:[1,0,0] op_sel_hi:[1,0,0]" % (l, h, src_ + 1))
            for (src_, row), (h, l) in zip(grp, TS):
                o.append("ds_write_addtid_b32 v%d offset:%d" % (h, row * 288))
            for (src_, row), (h, l) in zip(grp, TS):
                o.append("ds_write_addtid_b32 v%d offset:%d" % (l, (row + 16) * 288))
        return o

    def frag_reads(base):
        for s in range(4):
            e("ds_read_b128 %s, v7 offset:%d" % (vr(base + 8 * s, 4), 64 * s))
            e("ds_read_b128 %s, v7 offset:%d" % (vr(base + 8 * s + 4, 4), 64 * s + 16 * 288))

    def mfma_l(t):
        o = []
        a = vr(ACC + 4 * t, 4)
        for s in range(4):
            ah, al = vr(AF + 8 * s, 4), vr(AF + 8 * s + 4, 4)
            bh, bl = vr(EB + 8 * s, 4), vr(EB + 8 * s + 4, 4)
            o.append("v_mfma_f32_16x16x32_f16 %s, %s, %s, %s" % (a, ah, bh, "0" if s == 0 else a))
            o.append("v_mfma_f32_16x16x32_f16 %s, %s, %s, %s" % (a, ah, bl, a))
            o.append("v_mfma_f32_16x16x32_f16 %s, %s, %s, %s" % (a, al, bh, a))
        return o

    def interleave(mf, other):
        per = (len(other) + len(mf) - 1) // len(mf) if mf else 0
        other = list(other)
        for m in mf:
            e(m)
            for _ in range(per):
                if other: e(other.pop(0))
        for x in other: e(x)

    e("v_mov_b32 v%d, s52" % EB)
    e("v_mov_b32 v%d, 0" % (EB + 1))
    Er = {0: EB}
    for b in range(1, 16):
        k = b.bit_length() - 1
        hb = 1 << k
        Er[b] = EB + 2 * b
        if b == hb:
            e("v_pk_mul_f32 %s, %s, s[52:53]" % (vr(Er[b], 2), vr(zr(3 + k), 2)))
        else:
            cmul(Er[b], zr(3 + k), Er[b - hb])
    for x in split_list([(Er[b], b) for b in range(16)]): e(x)
    G = {0: G0}
    for c in range(1, 8):
        k = c.bit_length() - 1
        G[c] = G0 + 2 * c
        cmul(G[c], zr(k), G[c - (1 << k)], True)
    frag_reads(EB)
    for c in range(8):
        G[128 + c] = G0 + 16 + 2 * c
        cmul(G[128 + c], zr(7), G[c], True)
    for x in split_list([(G[128 * a + c], 8 * a + c) for a in range(2) for c in range(8)]): e(x)
    frag_reads(AF)
    stamp(e, 166)
    t1rows = []
    for a in range(2):
        for c in range(4):
            p = 256 + 128 * a + 2 * c
            G[p] = G1 + 2 * (4 * a + c)
            cmul(G[p], zr(8), G[128 * a + 2 * c], True)
            t1rows.append((G[p], 4 * a + c))
    for gp in range(2):
        for i in range(4):
            a = 2 * gp + (i >> 1); c = i & 1
            p = 512 + 128 * a + 4 * c
            G[p] = G1 + 16 + 2 * (4 * gp + i)
            cmul(G[p], zr(9), G[128 * a + 4 * c], True)
            t1rows.append((G[p], 8 + 4 * gp + i))
    e("s_waitcnt lgkmcnt(0)")
    interleave(mfma_l(0), split_list(t1rows))
    frag_reads(AF)
    stamp(e, 166)
    t2rows = []
    slots = [G0 + 2 * r for r in (1, 2, 3, 4, 5, 6, 7, 9, 10)]
    for a in range(8):
        p = 1024 + 128 * a
        G[p] = slots[a]
        cmul(G[p], zr(10), G[128 * a], True)
        t2rows.append((G[p], a))
    G[2048] = slots[8]
    cmul(G[2048], zr(11), G[0], True)
    t2rows.append((G[2048], 8))
    e("s_waitcnt lgkmcnt(0)")
    interleave(mfma_l(1), split_list(t2rows))
    frag_reads(AF)
    stamp(e, 166)
    srd(e, 24, 4, 5, WS_K, D * KQS)
    e("s_mul_i32 s21, s20, %d" % KQS)
    e("v_lshlrev_b32 v9, 2, v0")
    e("s_mul_i32 s51, s51, %d" % (4 * KG_WSZ))
    e("v_add_u32 v8, s51, v9")
    e("s_waitcnt lgkmcnt(0)")
    mf = mfma_l(2)
    for m in mf[:6]: e(m)
    e("ds_write_b128 v1, %s" % vr(ACC, 4))
    for m in mf[6:9]: e(m)
    e("ds_write_b64 v3, %s offset:1024" % vr(ACC + 4, 2))
    e("ds_write_b64 v4, %s offset:1024" % vr(ACC + 6, 2))
    for m in mf[9:]: e(m)
    e.nop(14)
    for i in range(4):
        e("ds_write_b32 v13, v%d offset:%d" % (ACC + 8 + i, 2048 + 64 * i))
    e("s_waitcnt lgkmcnt(0)")
    e("s_barrier")
    stamp(e, 166)
    for m in range(3):
        for w in range(4):
            e("ds_read_b32 v%d, v8 offset:%d" % (40 + 4 * m + w, w * KG_WSZ + 1024 * m))
    for m in range(3):
        e("s_waitcnt lgkmcnt(%d)" % (8 - 4 * m))
        b = 40 + 4 * m
        e("v_add_f32 v%d, v%d, v%d" % (b, b, b + 1))
        e("v_add_f32 v%d, v%d, v%d" % (b + 2, b + 2, b + 3))
        e("v_add_f32 v%d, v%d, v%d" % (b, b, b + 2))
        e("v_mul_f32 v%d, v%d, v12" % (b, b))
        e("buffer_store_dword v%d, v9, s[24:27], s21 offen offset:%d" % (b, 1024 * m))
    if "stamp" in OPTS:
        e("s_waitcnt vmcnt(0)")
        stamp(e, 166)
    e.label("K1_END")
    endpgm(e, 0)
    e.label("K1_EXIT")
    e("s_endpgm")
    WGT_IDX[0] += 1
    return kernel_desc(name, 168)


def gen_k5(e, specs):
    name = "k5_kernel"
    e.raw(".text")
    e.raw(".globl %s" % name)
    e.raw(".p2align 8")
    e.raw(".type %s,@function" % name)
    e.label(name)
    e("s_cmp_ge_u32 s2, 1")
    e("s_cbranch_scc1 K5_EXIT")
    e("s_memtime s[30:31]")
    e("s_memrealtime s[32:33]")
    e("s_load_dwordx2 s[4:5], s[0:1], 112")
    e("s_load_dwordx2 s[6:7], s[0:1], 104")
    e("s_waitcnt lgkmcnt(0)")
    srd(e, 8, 4, 5, 0x4000000, 0x400000)
    srd(e, 12, 6, 7, 0, 256)
    e("s_sub_u32 s16, s6, %d" % (512 * len(specs)))
    e("s_subb_u32 s17, s7, 0")
    e("s_and_b32 s17, s17, 0xffff")
    e("s_mov_b32 s18, 256")
    e("s_mov_b32 s19, 0x00020000")
    e("v_mov_b32 v10, -1")
    e("v_mov_b32 v11, 0")
    e("v_lshlrev_b32 v12, 3, v0")
    e("v_and_b32 v13, 7, v0")
    e("v_lshlrev_b32 v13, 3, v13")
    e("ds_write_b64 v13, v[10:11]")
    e("s_waitcnt lgkmcnt(0)")
    for i, (g, nw) in enumerate(specs):
        e("v_mov_b32 v10, -1")
        e("v_mov_b32 v11, 0")
        for c in range((g + 63) // 64):
            e("v_add_u32 v1, %d, v0" % (64 * c))
            e("v_min_u32 v1, %d, v1" % (g - 1))
            e("v_lshlrev_b32 v1, 7, v1")
            e("s_mov_b32 s20, 0x%x" % (i * 0x100000))
            for w in range(nw):
                e("buffer_load_dwordx2 v[%d:%d], v1, s[8:11], s20 offen offset:%d" % (20 + 2 * w, 21 + 2 * w, 8 * w))
            e("s_waitcnt vmcnt(0)")
            for w in range(nw):
                e("v_min_u32 v10, v10, v%d" % (20 + 2 * w))
                e("v_max_u32 v11, v11, v%d" % (21 + 2 * w))
        e("v_mov_b32 v2, %d" % (8 * i))
        e("ds_min_u32 v2, v10")
        e("ds_max_u32 v2, v11 offset:4")
    e("s_waitcnt lgkmcnt(0)")
    e("v_lshlrev_b32 v3, 2, v0")
    e("v_mov_b32 v4, 0")
    e("ds_read_b32 v5, v3")
    e("ds_read_b32 v6, v4")
    e("s_waitcnt lgkmcnt(0)")
    e("v_sub_u32 v5, v5, v6")
    e("v_cmp_gt_u32 vcc, 8, v0")
    e("s_and_saveexec_b64 s[22:23], vcc")
    e("buffer_store_dword v5, v3, s[12:15], 0 offen")
    e("buffer_store_dword v5, v3, s[16:19], 0 offen")
    e("s_memtime s[34:35]")
    e("s_memrealtime s[36:37]")
    e("s_waitcnt lgkmcnt(0)")
    e("s_sub_u32 s34, s34, s30")
    e("s_sub_u32 s36, s36, s32")
    e("v_mov_b32 v14, s34")
    e("v_mov_b32 v15, s36")
    e("v_mov_b32 v16, s32")
    e("ds_read_b32 v8, v4")
    e("s_waitcnt lgkmcnt(0)")
    e("v_sub_u32 v16, v16, v8")
    e("s_mov_b64 exec, 1")
    e("buffer_store_dwordx3 v[14:16], v4, s[16:19], 0 offen offset:32")
    e.label("K5_EXIT")
    e("s_endpgm")
    return kernel_desc(name, 64)


def main():
    out = []
    hdr = open("cdna_kernels/%s.s.ref" % NAME).read().split("\n")
    for ln in hdr:
        if ln.startswith("; @launch") or not ln.startswith(";"):
            break
        out.append(ln)
    launches = []
    e = E()
    descs = []
    import gen_rest
    descs.append(gen_k1(e))
    launches.append(("k1_kernel", K1_GRID, K1_BLK, K1_LDS))
    for (nm, fn, grid, blk, lds) in gen_rest.kernels():
        descs.append(fn(e))
        launches.append((nm, grid, blk, lds))
    if "k5" in OPTS:
        descs.append(gen_k5(e, [(g, b // 64) for (_, g, b, _) in launches]))
        launches.append(("k5_kernel", 1, 64, 1024))
    nl = int(sys.argv[1]) if len(sys.argv) > 1 else len(launches)
    for (nm, g, b, l) in launches[:nl]:
        out.append("; @launch kernel=%s grid=(%d,1,1) block=(%d,1,1) lds=%d" % (nm, g, b, l))
    out.append('.amdgcn_target "amdgcn-amd-amdhsa--gfx950"')
    txt = "\n".join(out) + "\n" + e.text() + "".join(descs)
    open(os.environ.get("GENOUT", "cdna_kernels/%s.s" % NAME), "w").write(txt)
    print("written", len(txt), "bytes")


if __name__ == "__main__":
    main()
```

```python
import sys, struct, os
OPTS = os.environ.get("GENOPTS", "").split(",")

NAME = "sequential_preLN__ssm_conv_s4d__dense_activation_gelu__prompt"
L = 2048; D = 448; N = 256; F = 1792

WS_UT = 0x0
WS_XT = 0x200000
WS_K = 0x400000
KCH = 15360
KQS = 3072
WS_HT = 0xC00000
WS_H1 = 0x1000000
WS_WP = 0x1800000
W1P_SZ = 56 * 28 * 1024
TSZ = D * L * 2


def f32bits(x):
    return struct.unpack("<I", struct.pack("<f", x))[0]


class E:
    def __init__(self):
        self.lines = []

    def __call__(self, s):
        self.lines.append("    " + s)

    def label(self, s):
        self.lines.append(s + ":")

    def c(self, s):
        self.lines.append("    ; " + s)

    def raw(self, s):
        self.lines.append(s)

    def nop(self, n):
        while n > 0:
            k = min(n, 16)
            self("s_nop %d" % (k - 1))
            n -= k

    def text(self):
        return "\n".join(self.lines) + "\n"


def vr(a, n=1):
    return "v%d" % a if n == 1 else "v[%d:%d]" % (a, a + n - 1)


def sr(a, n=1):
    return "s%d" % a if n == 1 else "s[%d:%d]" % (a, a + n - 1)


def srd(e, dst, base_lo, base_hi, off, size):
    if off:
        e("s_add_u32 s%d, s%d, 0x%x" % (dst, base_lo, off))
        e("s_addc_u32 s%d, s%d, 0" % (dst + 1, base_hi))
    else:
        e("s_mov_b32 s%d, s%d" % (dst, base_lo))
        e("s_mov_b32 s%d, s%d" % (dst + 1, base_hi))
    e("s_and_b32 s%d, s%d, 0xffff" % (dst + 1, dst + 1))
    e("s_mov_b32 s%d, 0x%x" % (dst + 2, size))
    e("s_mov_b32 s%d, 0x00020000" % (dst + 3))


def reduce64(e, v, t):
    e.nop(2)
    e("v_add_f32_dpp v%d, v%d, v%d quad_perm:[1,0,3,2] row_mask:0xf bank_mask:0xf" % (v, v, v))
    e.nop(2)
    e("v_add_f32_dpp v%d, v%d, v%d quad_perm:[2,3,0,1] row_mask:0xf bank_mask:0xf" % (v, v, v))
    e.nop(2)
    e("v_add_f32_dpp v%d, v%d, v%d row_half_mirror row_mask:0xf bank_mask:0xf" % (v, v, v))
    e.nop(2)
    e("v_add_f32_dpp v%d, v%d, v%d row_mirror row_mask:0xf bank_mask:0xf" % (v, v, v))
    e("v_mov_b32 v%d, v%d" % (t, v))
    e.nop(2)
    e("v_permlane16_swap_b32 v%d, v%d" % (v, t))
    e("v_add_f32 v%d, v%d, v%d" % (v, v, t))
    e("v_mov_b32 v%d, v%d" % (t, v))
    e.nop(2)
    e("v_permlane32_swap_b32 v%d, v%d" % (v, t))
    e("v_add_f32 v%d, v%d, v%d" % (v, v, t))


def rb1(e, dst, src):
    e("v_cvt_pk_bf16_f32 v%d, v%d, v%d" % (dst, src, src))
    e("v_lshlrev_b32 v%d, 16, v%d" % (dst, dst))


STAMP_WG = int(os.environ.get("STAMPWG", "0"))
def stamp_init(e, vtmp):
    if "stamp" not in OPTS: return
    e("s_load_dwordx2 s[90:91], s[0:1], 104")
    e("s_waitcnt lgkmcnt(0)")
    e("s_mov_b32 s92, s90")
    e("s_and_b32 s93, s91, 0xffff")
    e("s_mov_b32 s94, 256")
    e("s_mov_b32 s95, 0x00020000")
    e.stampn = 0
    stamp(e, vtmp, 100)

def stamp(e, vtmp, sreg=96):
    if "stamp" not in OPTS: return
    n = e.stampn; e.stampn += 1
    lab = "STP_%d" % len(e.lines)
    e("s_cmp_lg_u32 s2, %d" % STAMP_WG)
    e("s_cbranch_scc1 %s" % lab)
    e("s_cmp_lg_u32 s3, %d" % int(os.environ.get("STAMPWAVE", "0")))
    e("s_cbranch_scc1 %s" % lab)
    if sreg == 96:
        e("s_memtime s[96:97]")
        e("s_waitcnt lgkmcnt(0)")
    e("v_mov_b32 v%d, s%d" % (vtmp, sreg))
    e("s_mov_b64 s[98:99], exec")
    e("s_mov_b64 exec, 1")
    e("v_mov_b32 v%d, 0" % (vtmp + 1))
    e("buffer_store_dword v%d, v%d, s[92:95], 0 offen offset:%d" % (vtmp, vtmp + 1, 4 * n))
    e("s_mov_b64 exec, s[98:99]")
    e.label(lab)


WGT_IDX = [0]
def kernel_header(e, name):
    e.raw(".text")
    e.raw(".globl %s" % name)
    e.raw(".p2align 8")
    e.raw(".type %s,@function" % name)
    e.label(name)
    if "wgt" in OPTS:
        e("s_memrealtime s[86:87]")
        e("s_load_dwordx2 s[84:85], s[0:1], 112")
        e("s_waitcnt lgkmcnt(0)")
    if "stamp" in OPTS:
        e("s_memtime s[100:101]")
    dl = os.environ.get("DELAY", "")
    if dl and dl.split(":")[0] == name[:2]:
        e("s_memrealtime s[96:97]")
        e("s_waitcnt lgkmcnt(0)")
        e.label("DLY_%s" % name)
        e("s_memrealtime s[98:99]")
        e("s_waitcnt lgkmcnt(0)")
        e("s_sub_u32 s98, s98, s96")
        e("s_cmp_lt_u32 s98, %d" % int(dl.split(":")[1]))
        e("s_cbranch_scc1 DLY_%s" % name)
    if "hdbg" in OPTS:
        e("s_memrealtime s[86:87]")
        e("s_load_dwordx2 s[84:85], s[0:1], 104")
        e("s_waitcnt lgkmcnt(0)")


def endpgm(e, idx):
    if "wgt" in OPTS:
        e("s_waitcnt vmcnt(0)")
        e("s_memrealtime s[88:89]")
        e("s_waitcnt lgkmcnt(0)")
        srd(e, 80, 84, 85, 0x4000000 + idx * 0x100000, 0x100000)
        e("s_mov_b64 exec, 1")
        e("v_mov_b32 v0, s86")
        e("v_mov_b32 v1, s88")
        e("s_lshl_b32 s90, s2, 4")
        e("s_add_u32 s90, s90, s3")
        e("s_lshl_b32 s90, s90, 3")
        e("v_mov_b32 v2, s90")
        e("buffer_store_dwordx2 v[0:1], v2, s[80:83], 0 offen")
    if "hdbg" in OPTS:
        e("s_waitcnt vmcnt(0)")
        e("s_memrealtime s[88:89]")
        e("s_waitcnt lgkmcnt(0)")
        e("s_sub_u32 s80, s84, %d" % (512 * idx))
        e("s_subb_u32 s81, s85, 0")
        e("s_and_b32 s81, s81, 0xffff")
        e("s_mov_b32 s82, 256")
        e("s_mov_b32 s83, 0x00020000")
        e("s_mov_b64 exec, 1")
        e("s_not_b32 s86, s86")
        e("v_mov_b32 v0, s86")
        e("v_mov_b32 v1, s88")
        e("v_mov_b32 v2, 0")
        e("buffer_atomic_umax v0, v2, s[80:83], 0 offen offset:%d" % (8 * idx))
        e("buffer_atomic_umax v1, v2, s[80:83], 0 offen offset:%d" % (8 * idx + 4))
    e("s_endpgm")


def kernel_desc(name, vgpr, sgpr=102, accum=None):
    if accum is None:
        accum = (vgpr + 3) // 4 * 4
    return """.section .rodata,"a"
.p2align 6
.amdhsa_kernel %s
  .amdhsa_next_free_vgpr %d
  .amdhsa_next_free_sgpr %d
  .amdhsa_accum_offset %d
  .amdhsa_group_segment_fixed_size 0
  .amdhsa_kernarg_size 120
  .amdhsa_user_sgpr_count 2
  .amdhsa_user_sgpr_kernarg_segment_ptr 1
  .amdhsa_system_sgpr_workgroup_id_x 1
.end_amdhsa_kernel
""" % (name, vgpr, sgpr, accum)


K1_KG = 224
K1_GRID = 256
K1_BLK = 512
KG_WSZ = 32 * 288
LNB = 8 * KG_WSZ
K1_LDS = LNB + 2 * 8 * 912


def reduce64_multi(e, S, T, n):
    for mod in ("quad_perm:[1,0,3,2]", "quad_perm:[2,3,0,1]", "row_half_mirror", "row_mirror"):
        for r in range(n):
            e("v_add_f32_dpp v%d, v%d, v%d %s row_mask:0xf bank_mask:0xf" % (S + r, S + r, S + r, mod))
    for sw in ("v_permlane16_swap_b32", "v_permlane32_swap_b32"):
        for r in range(n):
            e("v_mov_b32 v%d, v%d" % (T + r, S + r))
        for r in range(n):
            e("%s v%d, v%d" % (sw, S + r, T + r))
        for r in range(n):
            e("v_add_f32 v%d, v%d, v%d" % (S + r, S + r, T + r))


def pkb(r):
    return (vr(r & ~1, 2), r & 1)


def pk_mul_b(e, dst, src, r):
    p, h = pkb(r)
    e("v_pk_mul_f32 %s, %s, %s op_sel:[0,%d] op_sel_hi:[1,%d]" % (vr(dst, 2), vr(src, 2), p, h, h))


def gen_k1(e):
    name = "k1_kernel"
    kernel_header(e, name)
    e("s_cmp_ge_u32 s2, %d" % K1_GRID)
    e("s_cbranch_scc1 K1_EXIT")
    e("s_load_dwordx2 s[4:5], s[0:1], 112")
    e("s_load_dwordx2 s[6:7], s[0:1], 0")
    e("s_load_dwordx8 s[8:15], s[0:1], 8")
    e("s_load_dwordx2 s[16:17], s[0:1], 40")
    e("v_lshrrev_b32 v1, 6, v0")
    e("v_and_b32 v2, 63, v0")
    e("v_and_b32 v0, 255, v0")
    e("v_readfirstlane_b32 s3, v1")
    e("v_lshlrev_b32 v3, 1, v0")
    e("v_mov_b32 v4, 0")
    RX = 136
    e("v_lshlrev_b32 v160, 4, v2")
    for i in range(4):
        e("v_mov_b32 v%d, 0" % (RX + i))
    e("s_and_b32 s59, s2, 7")
    e("s_lshl_b32 s59, s59, 5")
    e("s_lshr_b32 s22, s2, 3")
    e("s_add_u32 s59, s59, s22")
    e("s_lshl_b32 s22, s59, 3")
    e("s_add_u32 s22, s22, s3")
    e("s_mul_i32 s22, s22, 896")
    e("s_lshr_b32 s51, s3, 2")
    e("s_lshl_b32 s20, s2, 1")
    e("s_add_u32 s20, s20, s51")
    e("s_lshl_b32 s21, s20, 9")
    e("s_lshl_b32 s23, s20, 1")
    e("s_mov_b64 s[60:61], exec")
    e("v_cmp_gt_u32 vcc, 56, v2")
    e("s_mov_b64 s[62:63], vcc")
    e("s_waitcnt lgkmcnt(0)")
    stamp_init(e, 166)
    stamp(e, 166)
    srd(e, 64, 6, 7, 0, TSZ)
    e("s_mov_b64 exec, s[62:63]")
    e("buffer_load_dwordx4 %s, v160, s[64:67], s22 offen" % vr(RX, 4))
    e("s_mov_b64 exec, s[60:61]")
    e("s_cmp_ge_u32 s2, %d" % K1_KG)
    e("s_cbranch_scc1 K1_NOLD")
    srd(e, 24, 8, 9, 0, D * N * 2)
    srd(e, 40, 16, 17, 0, D * 2)
    e("buffer_load_ushort v8, v3, s[24:27], s21 offen")
    e("buffer_load_ushort v12, v4, s[40:43], s23 offen")
    srd(e, 28, 10, 11, 0, D * N * 2)
    e("buffer_load_ushort v9, v3, s[28:31], s21 offen")
    srd(e, 32, 12, 13, 0, D * N * 2)
    e("buffer_load_ushort v10, v3, s[32:35], s21 offen")
    srd(e, 36, 14, 15, 0, D * N * 2)
    e("buffer_load_ushort v11, v3, s[36:39], s21 offen")
    e.label("K1_NOLD")
    srd(e, 68, 4, 5, WS_UT, WS_XT + TSZ)
    XT = 8 * 912
    e("s_mul_i32 s72, s3, 912")
    e("s_add_u32 s72, s72, %d" % LNB)
    e("v_add_u32 v160, s72, v160")
    e("s_mov_b32 s73, 0x%x" % f32bits(1.0 / 448.0))
    e("s_mov_b32 s74, 0x%x" % f32bits(1e-5))
    e("s_mov_b32 s75, 0xffff0000")
    e("s_mov_b32 s76, 0x3f803f80")
    e("s_mov_b32 s77, 0x00003f80")
    e("s_mov_b32 s78, 0x3f800000")
    e("v_and_b32 v5, 15, v2")
    e("v_lshrrev_b32 v6, 4, v2")
    e("v_lshrrev_b32 v7, 2, v5")
    e("v_and_b32 v140, 3, v5")
    e("v_and_b32 v141, 1, v6")
    e("v_sub_u32 v143, 7, v7")
    e("v_add_u32 v142, 8, v7")
    e("v_cmp_gt_u32 vcc, 2, v6")
    e("v_cndmask_b32 v142, v142, v143, vcc")
    e("v_mul_u32_u24 v161, 912, v142")
    e("v_lshl_add_u32 v161, v140, 3, v161")
    e("v_lshl_add_u32 v161, v141, 5, v161")
    e("s_lshl_b32 s72, s3, 6")
    e("s_add_u32 s72, s72, %d" % LNB)
    e("v_add_u32 v161, s72, v161")
    e("v_mov_b32 v142, %d" % (4 * 912))
    e("v_mov_b32 v143, %d" % (-4 * 912))
    e("v_cndmask_b32 v142, v142, v143, vcc")
    e("v_add_u32 v162, v161, v142")
    e("v_lshl_add_u32 v163, v141, 4, v5")
    e("v_lshlrev_b32 v163, 12, v163")
    e("s_lshl_b32 s79, s59, 4")
    e("s_sub_u32 s72, 4080, s79")
    e("s_add_u32 s79, s79, 0x%x" % WS_XT)
    e("v_mov_b32 v142, s79")
    e("v_mov_b32 v143, s72")
    e("v_cndmask_b32 v142, v142, v143, vcc")
    e("v_add_u32 v163, v163, v142")
    e("s_lshl_b32 s79, s3, 17")
    S, T, X = 140, 144, 148
    for r in range(4):
        e("v_mov_b32 v%d, 0" % (S + r))
    e("s_cmp_ge_u32 s2, %d" % K1_KG)
    e("s_cbranch_scc1 K1_W0")
    e("s_waitcnt vmcnt(5)")
    e("s_branch K1_W1")
    e.label("K1_W0")
    e("s_waitcnt vmcnt(0)")
    e.label("K1_W1")
    for k in range(4):
        e("v_dot2_f32_bf16 v%d, v%d, s76, v%d" % (S + 2 * (k & 1), RX + k, S + 2 * (k & 1)))
        e("v_dot2_f32_bf16 v%d, v%d, v%d, v%d" % (S + 1 + 2 * (k & 1), RX + k, RX + k, S + 1 + 2 * (k & 1)))
    e("s_mov_b64 exec, s[62:63]")
    e("ds_write_b128 v160, %s offset:%d" % (vr(RX, 4), XT))
    e("s_mov_b64 exec, s[60:61]")
    e.nop(1)
    e("v_pk_add_f32 %s, %s, %s" % (vr(S, 2), vr(S, 2), vr(S + 2, 2)))
    for mod in ("quad_perm:[1,0,3,2]", "quad_perm:[2,3,0,1]", "row_half_mirror", "row_mirror"):
        e.nop(1)
        for r in range(2):
            e("v_add_f32_dpp v%d, v%d, v%d %s row_mask:0xf bank_mask:0xf" % (S + r, S + r, S + r, mod))
    for sw in ("v_permlane16_swap_b32", "v_permlane32_swap_b32"):
        for r in range(2):
            e("v_mov_b32 v%d, v%d" % (T + r, S + r))
        e.nop(1)
        for r in range(2):
            e("%s v%d, v%d" % (sw, S + r, T + r))
        e("v_pk_add_f32 %s, %s, %s" % (vr(S, 2), vr(S, 2), vr(T, 2)))
    V = S + 1
    e("v_mul_f32 v%d, s73, v%d" % (S, S))
    e("v_mul_f32 v%d, s73, v%d" % (V, V))
    e("v_fma_f32 v%d, -v%d, v%d, v%d" % (V, S, S, V))
    e("v_max_f32 v%d, 0, v%d" % (V, V))
    rb1(e, S, S)
    rb1(e, V, V)
    e("v_add_f32 v%d, s74, v%d" % (V, V))
    e("v_sub_f32 v%d, 0, v%d" % (S, S))
    rb1(e, V, V)
    e("v_sqrt_f32 v%d, v%d" % (V, V))
    for k in range(4):
        e("v_dot2_f32_bf16 v%d, v%d, s77, v%d" % (X + 2 * k, RX + k, S))
        e("v_dot2_f32_bf16 v%d, v%d, s78, v%d" % (X + 2 * k + 1, RX + k, S))
    rb1(e, V, V)
    e("v_rcp_f32 v%d, v%d" % (V, V))
    for k in range(4):
        e("v_cvt_pk_bf16_f32 v%d, v%d, v%d" % (RX + k, X + 2 * k, X + 2 * k + 1))
    for k in range(4):
        e("v_lshlrev_b32 v%d, 16, v%d" % (X + 2 * k, RX + k))
        e("v_and_b32 v%d, s75, v%d" % (X + 2 * k + 1, RX + k))
    for k in range(4):
        pk_mul_b(e, X + 2 * k, X + 2 * k, V)
    for k in range(4):
        e("v_cvt_pk_bf16_f32 v%d, v%d, v%d" % (RX + k, X + 2 * k, X + 2 * k + 1))
    e("s_mov_b64 exec, s[62:63]")
    e("ds_write_b128 v160, %s" % vr(RX, 4))
    e("s_mov_b64 exec, s[60:61]")
    e("s_waitcnt lgkmcnt(0) vmcnt(0)")
    e("s_barrier")
    e("ds_read_b64_tr_b16 %s, v161" % vr(104, 2))
    e("ds_read_b64_tr_b16 %s, v162" % vr(106, 2))
    e("s_cmp_ge_u32 s3, 6")
    e("s_cbranch_scc1 K1_P2B")
    e("ds_read_b64_tr_b16 %s, v161 offset:512" % vr(108, 2))
    e("ds_read_b64_tr_b16 %s, v162 offset:512" % vr(110, 2))
    e("s_add_u32 s72, s79, 0x%x" % (8 * 32 * 4096))
    e("s_waitcnt lgkmcnt(0)")
    e("buffer_store_dwordx4 %s, v163, s[68:71], s72 offen" % vr(108, 4))
    e.label("K1_P2B")
    e("s_waitcnt lgkmcnt(0)")
    e("buffer_store_dwordx4 %s, v163, s[68:71], s79 offen" % vr(104, 4))
    stamp(e, 166)
    e("s_cmp_ge_u32 s2, %d" % K1_KG)
    e("s_cbranch_scc1 K1_END")
    import numpy as np
    lhi = np.float32(1.4426950408889634)
    llo = np.float32(1.4426950408889634 - float(lhi))
    e("s_mov_b32 s44, 0x%x" % f32bits(float(lhi)))
    e("s_mov_b32 s45, 0x%x" % f32bits(float(llo)))
    e("s_mov_b32 s46, 0x%x" % f32bits(0.6931471805599453))
    e("s_mov_b32 s48, 0x%x" % f32bits(0.15915494309189535))
    e("s_mul_i32 s50, s3, %d" % KG_WSZ)
    e("s_mov_b32 m0, s50")
    e("v_and_b32 v5, 15, v2")
    e("v_lshrrev_b32 v6, 4, v2")
    e("v_mul_u32_u24 v7, 288, v5")
    e("v_lshl_add_u32 v7, v6, 4, v7")
    e("v_add_u32 v7, s50, v7")
    e("v_lshrrev_b32 v1, 1, v6")
    e("v_lshlrev_b32 v1, 9, v1")
    e("v_and_b32 v14, 1, v6")
    e("v_lshl_add_u32 v1, v14, 4, v1")
    e("v_lshl_add_u32 v1, v5, 5, v1")
    e("v_add_u32 v1, s50, v1")
    e("v_lshlrev_b32 v3, 8, v6")
    e("v_add_u32 v3, s50, v3")
    e("v_lshl_add_u32 v13, v5, 2, v3")
    e("v_lshl_add_u32 v14, v5, 4, v3")
    e("v_lshl_add_u32 v15, v5, 3, v3")
    e("v_cmp_gt_u32 vcc, 2, v6")
    e("v_cndmask_b32 v3, v15, v14, vcc")
    e("v_add_u32 v14, 8, v3")
    e("v_add_u32 v15, 128, v3")
    e("v_cndmask_b32 v4, v15, v14, vcc")
    Z = 16
    EB = 40
    G0 = 72
    G1 = 104
    AF = 136
    ACC = 16
    stamp(e, 166)
    for r in (8, 9, 10, 11, 12):
        e("v_lshlrev_b32 v%d, 16, v%d" % (r, r))

    def exp_acc(dst, x, t1, t2):
        e("v_mul_f32 v%d, s44, v%d" % (t1, x))
        e("v_fma_f32 v%d, v%d, s44, -v%d" % (t2, x, t1))
        e("v_fmac_f32 v%d, s45, v%d" % (t2, x))
        e("v_exp_f32 v%d, v%d" % (t1, t1))
        e("v_mul_f32 v%d, s46, v%d" % (t2, t2))
        e("v_fma_f32 v%d, v%d, v%d, v%d" % (dst, t1, t2, t1))
        rb1(e, dst, dst)

    exp_acc(12, 12, 14, 15)
    exp_acc(8, 8, 14, 15)
    e("v_mul_f32 v8, v8, v12")
    e("v_mul_f32 v9, v9, v12")
    e("v_mul_f32 v8, s44, v8")
    e("v_mul_f32 v9, s48, v9")
    e("v_mul_f32 v%d, 0x%x, v10" % (G0, f32bits(1024.0)))
    e("v_mul_f32 v%d, 0x%x, v11" % (G0 + 1, f32bits(-1024.0)))
    e("v_mul_f32 v12, 0x%x, v12" % f32bits(2.0 ** -24))
    e("s_mov_b32 s52, 0x%x" % f32bits(32768.0))
    e("s_mov_b32 s53, s52")
    RT = AF
    order = [3, 4, 5, 6, 0, 1, 2, 7, 8, 9, 10, 11]
    e("v_mov_b32 v%d, v8" % RT)
    e("v_mov_b32 v%d, v9" % (RT + 1))
    for k in range(1, 12):
        e("v_pk_add_f32 %s, %s, %s" % (vr(RT + 2 * k, 2), vr(RT + 2 * k - 2, 2), vr(RT + 2 * k - 2, 2)))
    for k0 in range(0, 12, 4):
        ks = order[k0:k0 + 4]
        for k in ks:
            e("v_exp_f32 v%d, -v%d" % (RT + 2 * k, RT + 2 * k))
            e("v_fract_f32 v%d, v%d" % (RT + 2 * k + 1, RT + 2 * k + 1))
        for k in ks:
            e("v_cos_f32 v%d, v%d" % (Z + 2 * k, RT + 2 * k + 1))
            e("v_sin_f32 v%d, v%d" % (Z + 2 * k + 1, RT + 2 * k + 1))
        e.nop(1)
        for k in ks:
            pk_mul_b(e, Z + 2 * k, Z + 2 * k, RT + 2 * k)
    stamp(e, 166)

    def zr(k):
        return Z + 2 * k

    cnt = [0]

    def cmul_l(dst, a, b, conj=False):
        T = (8, 10)[cnt[0] & 1]; cnt[0] += 1
        return ["v_pk_mul_f32 %s, %s, %s op_sel:[1,1] op_sel_hi:[1,0]" % (vr(T, 2), vr(a, 2), vr(b, 2)),
                "v_pk_fma_f32 %s, %s, %s, %s op_sel:[0,0,0] op_sel_hi:[0,1,1] %s" % (vr(dst, 2), vr(a, 2), vr(b, 2), vr(T, 2), "neg_hi:[0,0,1]" if conj else "neg_lo:[0,0,1]")]

    def cmul(dst, a, b, conj=False):
        for x in cmul_l(dst, a, b, conj): e(x)

    def split_list(items):
        o = []
        TS = [(14, 15), (5, 6)]
        for k in range(0, len(items), 2):
            grp = items[k:k + 2]
            for (src_, row), (h, l) in zip(grp, TS):
                o.append("v_cvt_pk_f16_f32 v%d, v%d, v%d" % (h, src_, src_ + 1))
            for (src_, row), (h, l) in zip(grp, TS):
                o.append("v_fma_mixlo_f16 v%d, v%d, -1.0, v%d op_sel:[0,0,0] op_sel_hi:[1,0,0]" % (l, h, src_))
            for (src_, row), (h, l) in zip(grp, TS):
                o.append("v_fma_mixhi_f16 v%d, v%d, -1.0, v%d op_sel:[1,0,0] op_sel_hi:[1,0,0]" % (l, h, src_ + 1))
            for (src_, row), (h, l) in zip(grp, TS):
                o.append("ds_write_addtid_b32 v%d offset:%d" % (h, row * 288))
            for (src_, row), (h, l) in zip(grp, TS):
                o.append("ds_write_addtid_b32 v%d offset:%d" % (l, (row + 16) * 288))
        return o

    def frag_reads(base):
        for s in range(4):
            e("ds_read_b128 %s, v7 offset:%d" % (vr(base + 8 * s, 4), 64 * s))
            e("ds_read_b128 %s, v7 offset:%d" % (vr(base + 8 * s + 4, 4), 64 * s + 16 * 288))

    def mfma_l(t):
        o = []
        a = vr(ACC + 4 * t, 4)
        for s in range(4):
            ah, al = vr(AF + 8 * s, 4), vr(AF + 8 * s + 4, 4)
            bh, bl = vr(EB + 8 * s, 4), vr(EB + 8 * s + 4, 4)
            o.append("v_mfma_f32_16x16x32_f16 %s, %s, %s, %s" % (a, ah, bh, "0" if s == 0 else a))
            o.append("v_mfma_f32_16x16x32_f16 %s, %s, %s, %s" % (a, ah, bl, a))
            o.append("v_mfma_f32_16x16x32_f16 %s, %s, %s, %s" % (a, al, bh, a))
        return o

    def interleave(mf, other):
        per = (len(other) + len(mf) - 1) // len(mf) if mf else 0
        other = list(other)
        for m in mf:
            e(m)
            for _ in range(per):
                if other: e(other.pop(0))
        for x in other: e(x)

    e("v_mov_b32 v%d, s52" % EB)
    e("v_mov_b32 v%d, 0" % (EB + 1))
    Er = {0: EB}
    for b in range(1, 16):
        k = b.bit_length() - 1
        hb = 1 << k
        Er[b] = EB + 2 * b
        if b == hb:
            e("v_pk_mul_f32 %s, %s, s[52:53]" % (vr(Er[b], 2), vr(zr(3 + k), 2)))
        else:
            cmul(Er[b], zr(3 + k), Er[b - hb])
    for x in split_list([(Er[b], b) for b in range(16)]): e(x)
    G = {0: G0}
    for c in range(1, 8):
        k = c.bit_length() - 1
        G[c] = G0 + 2 * c
        cmul(G[c], zr(k), G[c - (1 << k)], True)
    frag_reads(EB)
    for c in range(8):
        G[128 + c] = G0 + 16 + 2 * c
        cmul(G[128 + c], zr(7), G[c], True)
    for x in split_list([(G[128 * a + c], 8 * a + c) for a in range(2) for c in range(8)]): e(x)
    frag_reads(AF)
    stamp(e, 166)
    t1rows = []
    for a in range(2):
        for c in range(4):
            p = 256 + 128 * a + 2 * c
            G[p] = G1 + 2 * (4 * a + c)
            cmul(G[p], zr(8), G[128 * a + 2 * c], True)
            t1rows.append((G[p], 4 * a + c))
    for gp in range(2):
        for i in range(4):
            a = 2 * gp + (i >> 1); c = i & 1
            p = 512 + 128 * a + 4 * c
            G[p] = G1 + 16 + 2 * (4 * gp + i)
            cmul(G[p], zr(9), G[128 * a + 4 * c], True)
            t1rows.append((G[p], 8 + 4 * gp + i))
    e("s_waitcnt lgkmcnt(0)")
    interleave(mfma_l(0), split_list(t1rows))
    frag_reads(AF)
    stamp(e, 166)
    t2rows = []
    slots = [G0 + 2 * r for r in (1, 2, 3, 4, 5, 6, 7, 9, 10)]
    for a in range(8):
        p = 1024 + 128 * a
        G[p] = slots[a]
        cmul(G[p], zr(10), G[128 * a], True)
        t2rows.append((G[p], a))
    G[2048] = slots[8]
    cmul(G[2048], zr(11), G[0], True)
    t2rows.append((G[2048], 8))
    e("s_waitcnt lgkmcnt(0)")
    interleave(mfma_l(1), split_list(t2rows))
    frag_reads(AF)
    stamp(e, 166)
    srd(e, 24, 4, 5, WS_K, D * KQS)
    e("s_mul_i32 s21, s20, %d" % KQS)
    e("v_lshlrev_b32 v9, 2, v0")
    e("s_mul_i32 s51, s51, %d" % (4 * KG_WSZ))
    e("v_add_u32 v8, s51, v9")
    e("s_waitcnt lgkmcnt(0)")
    mf = mfma_l(2)
    for m in mf[:6]: e(m)
    e("ds_write_b128 v1, %s" % vr(ACC, 4))
    for m in mf[6:9]: e(m)
    e("ds_write_b64 v3, %s offset:1024" % vr(ACC + 4, 2))
    e("ds_write_b64 v4, %s offset:1024" % vr(ACC + 6, 2))
    for m in mf[9:]: e(m)
    e.nop(14)
    for i in range(4):
        e("ds_write_b32 v13, v%d offset:%d" % (ACC + 8 + i, 2048 + 64 * i))
    e("s_waitcnt lgkmcnt(0)")
    e("s_barrier")
    stamp(e, 166)
    for m in range(3):
        for w in range(4):
            e("ds_read_b32 v%d, v8 offset:%d" % (40 + 4 * m + w, w * KG_WSZ + 1024 * m))
    for m in range(3):
        e("s_waitcnt lgkmcnt(%d)" % (8 - 4 * m))
        b = 40 + 4 * m
        e("v_add_f32 v%d, v%d, v%d" % (b, b, b + 1))
        e("v_add_f32 v%d, v%d, v%d" % (b + 2, b + 2, b + 3))
        e("v_add_f32 v%d, v%d, v%d" % (b, b, b + 2))
        e("v_mul_f32 v%d, v%d, v12" % (b, b))
        e("buffer_store_dword v%d, v9, s[24:27], s21 offen offset:%d" % (b, 1024 * m))
    if "stamp" in OPTS:
        e("s_waitcnt vmcnt(0)")
        stamp(e, 166)
    e.label("K1_END")
    endpgm(e, 0)
    e.label("K1_EXIT")
    e("s_endpgm")
    WGT_IDX[0] += 1
    return kernel_desc(name, 168)


def gen_k5(e, specs):
    name = "k5_kernel"
    e.raw(".text")
    e.raw(".globl %s" % name)
    e.raw(".p2align 8")
    e.raw(".type %s,@function" % name)
    e.label(name)
    e("s_cmp_ge_u32 s2, 1")
    e("s_cbranch_scc1 K5_EXIT")
    e("s_memtime s[30:31]")
    e("s_memrealtime s[32:33]")
    e("s_load_dwordx2 s[4:5], s[0:1], 112")
    e("s_load_dwordx2 s[6:7], s[0:1], 104")
    e("s_waitcnt lgkmcnt(0)")
    srd(e, 8, 4, 5, 0x4000000, 0x400000)
    srd(e, 12, 6, 7, 0, 256)
    e("s_sub_u32 s16, s6, %d" % (512 * len(specs)))
    e("s_subb_u32 s17, s7, 0")
    e("s_and_b32 s17, s17, 0xffff")
    e("s_mov_b32 s18, 256")
    e("s_mov_b32 s19, 0x00020000")
    e("v_mov_b32 v10, -1")
    e("v_mov_b32 v11, 0")
    e("v_lshlrev_b32 v12, 3, v0")
    e("v_and_b32 v13, 7, v0")
    e("v_lshlrev_b32 v13, 3, v13")
    e("ds_write_b64 v13, v[10:11]")
    e("s_waitcnt lgkmcnt(0)")
    for i, (g, nw) in enumerate(specs):
        e("v_mov_b32 v10, -1")
        e("v_mov_b32 v11, 0")
        for c in range((g + 63) // 64):
            e("v_add_u32 v1, %d, v0" % (64 * c))
            e("v_min_u32 v1, %d, v1" % (g - 1))
            e("v_lshlrev_b32 v1, 7, v1")
            e("s_mov_b32 s20, 0x%x" % (i * 0x100000))
            for w in range(nw):
                e("buffer_load_dwordx2 v[%d:%d], v1, s[8:11], s20 offen offset:%d" % (20 + 2 * w, 21 + 2 * w, 8 * w))
            e("s_waitcnt vmcnt(0)")
            for w in range(nw):
                e("v_min_u32 v10, v10, v%d" % (20 + 2 * w))
                e("v_max_u32 v11, v11, v%d" % (21 + 2 * w))
        e("v_mov_b32 v2, %d" % (8 * i))
        e("ds_min_u32 v2, v10")
        e("ds_max_u32 v2, v11 offset:4")
    e("s_waitcnt lgkmcnt(0)")
    e("v_lshlrev_b32 v3, 2, v0")
    e("v_mov_b32 v4, 0")
    e("ds_read_b32 v5, v3")
    e("ds_read_b32 v6, v4")
    e("s_waitcnt lgkmcnt(0)")
    e("v_sub_u32 v5, v5, v6")
    e("v_cmp_gt_u32 vcc, 8, v0")
    e("s_and_saveexec_b64 s[22:23], vcc")
    e("buffer_store_dword v5, v3, s[12:15], 0 offen")
    e("buffer_store_dword v5, v3, s[16:19], 0 offen")
    e("s_memtime s[34:35]")
    e("s_memrealtime s[36:37]")
    e("s_waitcnt lgkmcnt(0)")
    e("s_sub_u32 s34, s34, s30")
    e("s_sub_u32 s36, s36, s32")
    e("v_mov_b32 v14, s34")
    e("v_mov_b32 v15, s36")
    e("v_mov_b32 v16, s32")
    e("ds_read_b32 v8, v4")
    e("s_waitcnt lgkmcnt(0)")
    e("v_sub_u32 v16, v16, v8")
    e("s_mov_b64 exec, 1")
    e("buffer_store_dwordx3 v[14:16], v4, s[16:19], 0 offen offset:32")
    e.label("K5_EXIT")
    e("s_endpgm")
    return kernel_desc(name, 64)


def main():
    out = []
    hdr = open("cdna_kernels/%s.s.ref" % NAME).read().split("\n")
    for ln in hdr:
        if ln.startswith("; @launch") or not ln.startswith(";"):
            break
        out.append(ln)
    launches = []
    e = E()
    descs = []
    import gen_rest
    descs.append(gen_k1(e))
    launches.append(("k1_kernel", K1_GRID, K1_BLK, K1_LDS))
    for (nm, fn, grid, blk, lds) in gen_rest.kernels():
        descs.append(fn(e))
        launches.append((nm, grid, blk, lds))
    if "k5" in OPTS:
        descs.append(gen_k5(e, [(g, b // 64) for (_, g, b, _) in launches]))
        launches.append(("k5_kernel", 1, 64, 1024))
    nl = int(sys.argv[1]) if len(sys.argv) > 1 else len(launches)
    for (nm, g, b, l) in launches[:nl]:
        out.append("; @launch kernel=%s grid=(%d,1,1) block=(%d,1,1) lds=%d" % (nm, g, b, l))
    out.append('.amdgcn_target "amdgcn-amd-amdhsa--gfx950"')
    txt = "\n".join(out) + "\n" + e.text() + "".join(descs)
    open(os.environ.get("GENOUT", "cdna_kernels/%s.s" % NAME), "w").write(txt)
    print("written", len(txt), "bytes")


if __name__ == "__main__":
    main()
```
